```python
import torch

def _softmax(x, axis=-1):
    return torch.softmax(x, dim=axis)

def _gelu(x):
    return torch.nn.functional.gelu(x, approximate='tanh')

def _silu(x):
    return torch.nn.functional.silu(x)

def _sigmoid(x):
    return torch.sigmoid(x)

def _layernorm(x, axis=-1, eps=1e-05):
    m = x.mean(dim=axis, keepdim=True)
    v = x.var(dim=axis, keepdim=True, unbiased=False)
    return (x - m) / torch.sqrt(v + eps)

def _scatter_add(tgt, idx, src, axis=0):
    return tgt.clone().index_add_(axis, idx, src)

def _segment_sum(src, seg, n):
    out = torch.zeros((n,) + src.shape[1:], dtype=src.dtype)
    return out.index_add_(0, seg, src)

def _pad(x, pw):
    flat = tuple((v for pair in reversed(pw) for v in pair))
    return torch.nn.functional.pad(x, flat)
kernel_name = 'adaLN_cond__grouped_kv_mqa__glu_gated_reglu__prompt'

def setup_inputs():

    _w = lambda a: (lambda t: t.to(torch.bfloat16) if t.is_floating_point() else t)(torch.as_tensor(a))

    def _A_setup():
        B, S, D, H = (1, 2048, 576, 32)
        Dh = D // H
        return {'x': _w((lambda *s: torch.randn(*s, dtype=torch.bfloat16) * 0.05)(B, S, D)), 'wq': _w((lambda *s: torch.randn(*s, dtype=torch.bfloat16) * 0.05)(D, H * Dh)), 'wk': _w((lambda *s: torch.randn(*s, dtype=torch.bfloat16) * 0.05)(D, Dh)), 'wv': _w((lambda *s: torch.randn(*s, dtype=torch.bfloat16) * 0.05)(D, Dh)), 'wo': _w((lambda *s: torch.randn(*s, dtype=torch.bfloat16) * 0.05)(H * Dh, D))}
    _A_in = _A_setup()

    def _B_setup():
        B, S, D, F = (1, 2048, 576, 4608)
        return {'x': _w((lambda *s: torch.randn(*s, dtype=torch.bfloat16) * 0.05)(B, S, D)), 'W_gate': _w((lambda *s: torch.randn(*s, dtype=torch.bfloat16) * 0.8)(D, F) * (2.0 / D) ** 0.5), 'W_up': _w((lambda *s: torch.randn(*s, dtype=torch.bfloat16) * 0.8)(D, F) * (2.0 / D) ** 0.5), 'W_down': _w((lambda *s: torch.randn(*s, dtype=torch.bfloat16) * 0.8)(F, D) * (1.0 / F) ** 0.5)}
    _B_in = _B_setup()
    return {'A_x': _A_in['x'], 'A_wq': _A_in['wq'], 'A_wk': _A_in['wk'], 'A_wv': _A_in['wv'], 'A_wo': _A_in['wo'], 'B_x': _B_in['x'], 'B_W_gate': _B_in['W_gate'], 'B_W_up': _B_in['W_up'], 'B_W_down': _B_in['W_down'], 'c': _w((lambda *s: torch.randn(*s, dtype=torch.bfloat16) * 0.2)(1, 576) * 8.0), 'w_mod': _w((lambda *s: torch.randn(*s, dtype=torch.bfloat16) * 0.2)(576, 6 * 576) * 576 ** (-0.5) * 8.0)}

def reference(A_x, A_wq, A_wk, A_wv, A_wo, B_x, B_W_gate, B_W_up, B_W_down, c, w_mod):

    def _A_ref(x, wq, wk, wv, wo):
        B, S, D = x.shape
        H = 32
        Dh = D // H
        q = (lambda x, *d: x.permute(*d))((x @ wq).reshape(B, S, H, Dh), 0, 2, 1, 3)
        k = x @ wk
        v = x @ wv
        scores = torch.einsum('bhqd,bkd->bhqk', q, k) * Dh ** (-0.5)
        p = _softmax(scores, axis=-1)
        o = torch.einsum('bhqk,bkd->bhqd', p, v)
        return (lambda x, *d: x.permute(*d))(o, 0, 2, 1, 3).reshape(B, S, H * Dh) @ wo

    def _B_ref(x, W_gate, W_up, W_down):
        gate = torch.einsum('bsd,df->bsf', x, W_gate)
        up = torch.einsum('bsd,df->bsf', x, W_up)
        gate = gate * (lambda x, dt: x.to(dt))(gate > 0, gate.dtype)
        h = gate * up
        return torch.einsum('bsf,fd->bsd', h, W_down)
    x = A_x
    mod = (_silu(c) @ w_mod).reshape(c.shape[0], 6, 1, -1)
    sa, ca, ga, sb, cb, gb = (mod[:, 0].clone(), mod[:, 1].clone(), mod[:, 2].clone(), mod[:, 3].clone(), mod[:, 4].clone(), mod[:, 5].clone())
    h = _layernorm(x, axis=-1) * (1 + ca) + sa
    x = x + ga * _A_ref(h, A_wq, A_wk, A_wv, A_wo)
    h = _layernorm(x, axis=-1) * (1 + cb) + sb
    x = x + gb * _B_ref(h, B_W_gate, B_W_up, B_W_down)
    return x
```

```python
S, D, H, DH, F = 2048, 576, 32, 18, 4608
WS_MOD  = 0x0
WS_KV   = 0x10000
WS_WQKV = 0x40000
WS_WO   = WS_WQKV + 20 * 36 * 1024
WS_ST   = 0x200000
WS_XN   = 0x300000
WS_Q    = 0x600000
WS_O    = 0x900000
WS_X1   = 0xC00000
WS_WP   = 0x1000000
WS_PART = 0x2000000
WS_SIZE = 0x10000000
XBYTES = S * D * 2
KV_TILE = 2368
KV_V = 1024
KV_K2 = 2240
KV_BYTES = 64 * KV_TILE
ARG = dict(x=0, wq=8, wk=16, wv=24, wo=32, bx=40, wg=48, wu=56, wd=64, c=72, wmod=80, out=88, dbg=96, ws=104)

class Asm:
    def __init__(self):
        self.lines = []
    def __call__(self, s):
        for l in s.strip('\n').split('\n'):
            l = l.strip()
            if not l: continue
            if l.endswith(':') or l.startswith('.'):
                self.lines.append(l)
            else:
                self.lines.append('    ' + l)
    def text(self):
        return '\n'.join(self.lines) + '\n'

def kernel_head(name):
    return f""".globl {name}
.p2align 8
.type {name},@function
{name}:
"""

def kernel_desc(name, vgpr, sgpr, accum=None):
    if accum is None:
        accum = (vgpr + 3) // 4 * 4
    return f""".p2align 6
.amdhsa_kernel {name}
  .amdhsa_next_free_vgpr {vgpr}
  .amdhsa_next_free_sgpr {sgpr}
  .amdhsa_accum_offset {accum}
  .amdhsa_group_segment_fixed_size 0
  .amdhsa_kernarg_size 112
  .amdhsa_user_sgpr_count 2
  .amdhsa_user_sgpr_kernarg_segment_ptr 1
  .amdhsa_system_sgpr_workgroup_id_x 1
.end_amdhsa_kernel
"""

def vr(b, n=4): return f"v[{b}:{b+n-1}]"
def ar(b, n=4): return f"a[{b}:{b+n-1}]"
def sr(b, n=2): return f"s[{b}:{b+n-1}]"
def srd(a, d, base, nbytes):
    if d != base:
        a(f"s_mov_b32 s{d}, s{base}\ns_mov_b32 s{d+1}, s{base+1}")
    a(f"s_mov_b32 s{d+2}, {nbytes:#x}\ns_mov_b32 s{d+3}, 0x20000")
```

```python
import re

REG = re.compile(r'\b([vas])(\d+)\b|\b([vas])\[(\d+):(\d+)\]')
def regs(tok):
    out = []
    tok = tok.strip()
    for m in REG.finditer(tok):
        if m.group(1):
            out.append((m.group(1), int(m.group(2))))
        else:
            out += [(m.group(3), i) for i in range(int(m.group(4)), int(m.group(5)) + 1)]
    if re.search(r'\bvcc\b', tok): out += [('s', 'vcc')]
    if re.search(r'\bm0\b', tok): out += [('s', 'm0')]
    if re.search(r'\bexec\b', tok): out += [('s', 'exec')]
    return out

TRANS = ('v_exp_', 'v_log_', 'v_rcp_', 'v_rsq_', 'v_sqrt_', 'v_sin_', 'v_cos_')
class I:
    def __init__(self, text, line):
        self.text = text; self.line = line
        t = text.split(';')[0].strip()
        parts = t.split(None, 1)
        self.op = parts[0]
        rest = parts[1] if len(parts) > 1 else ''
        ops = []; depth = 0; cur = ''
        for ch in rest:
            if ch in '[(': depth += 1
            if ch in '])': depth -= 1
            if ch == ',' and depth == 0: ops.append(cur); cur = ''
            else: cur += ch
        ops.append(cur)
        self.ops = [o.strip() for o in ops]
        op = self.op
        self.mfma = op.startswith('v_mfma')
        self.valu = op.startswith('v_') and not self.mfma
        self.salu = op.startswith('s_')
        self.ds = op.startswith('ds_')
        self.vmem = op.startswith(('buffer_', 'global_', 'flat_'))
        self.trans = op.startswith(TRANS)
        self.dpp = ('_dpp' in op) or bool(re.search(r'quad_perm|row_shr|row_shl|row_ror|row_mirror|row_half_mirror|row_bcast|wave_', rest))
        self.w = []; self.r = []
        o = self.ops
        if self.mfma:
            self.w = regs(o[0]); self.a = regs(o[1]); self.b = regs(o[2]); self.c = regs(o[3].split()[0])
            self.r = self.a + self.b + self.c
            self.passes = 8 if '32x32' in op else 4
        elif self.valu:
            if op.startswith('v_cmp'):
                self.w = regs(o[0]); self.r = sum((regs(x) for x in o[1:]), [])
                if op.startswith('v_cmpx'): self.w += [('s', 'exec')]
            elif op.startswith('v_permlane') and 'swap' in op:
                self.w = regs(o[0]) + regs(o[1]); self.r = list(self.w)
            elif op.startswith(('v_add_co', 'v_sub_co', 'v_addc_co', 'v_subb_co', 'v_subrev_co')):
                self.w = regs(o[0]) + regs(o[1]); self.r = sum((regs(x) for x in o[2:]), [])
            elif op == 'v_nop':
                pass
            else:
                self.w = regs(o[0]); self.r = sum((regs(x) for x in o[1:]), [])
                if op.startswith(('v_fmac', 'v_dot2c', 'v_writelane')) or self.dpp: self.r += self.w
                if op.startswith('v_cndmask') and len(o) == 3: self.r += [('s', 'vcc')]
        elif self.ds:
            if 'read' in op or 'permute' in op or 'swizzle' in op:
                self.w = regs(o[0]); self.r = sum((regs(x.split(' offset')[0]) for x in o[1:]), [])
            else:
                self.r = sum((regs(x) for x in o), [])
        elif self.vmem:
            lds = bool(re.search(r'\blds\b', rest)) or 'load_lds' in op
            self.lds = lds
            if op in ('buffer_wbl2', 'buffer_inv'):
                pass
            elif 'load' in op and not lds:
                self.w = regs(o[0]); self.r = sum((regs(x) for x in o[1:]), [])
            elif 'atomic' in op and 'sc0' in rest:
                if op.startswith('global'):
                    self.w = regs(o[0]); self.r = sum((regs(x) for x in o[1:]), [])
                else:
                    self.w = regs(o[0]); self.r = sum((regs(x) for x in o), [])
            else:
                self.r = sum((regs(x) for x in o), [])
                if lds: self.r += [('s', 'm0')]
            self.store_data = []
            if 'store' in op and ('x4' in op or 'x3' in op):
                self.store_data = regs(o[0]) if op.startswith('buffer') else regs(o[1])
        elif self.salu:
            if op.startswith(('s_cmp', 's_cbranch', 's_branch', 's_waitcnt', 's_barrier', 's_nop', 's_endpgm', 's_setprio', 's_sleep', 's_bitcmp', 's_set_gpr_idx_off', 's_set_gpr_idx_mode')):
                self.r = sum((regs(x) for x in o), [])
            elif op.startswith('s_set_gpr_idx'):
                self.r = regs(o[0]); self.w = [('s', 'm0')]
            else:
                self.w = regs(o[0]); self.r = sum((regs(x) for x in o[1:]), [])
                if 'saveexec' in op: self.w += [('s', 'exec')]
        self.states = 1
        if op == 's_nop': self.states = int(o[0], 0) + 1

def need(p, c):
    n = 0
    pw = set(p.w); cr = set(c.r); cw = set(c.w)
    pwv = {x for x in pw if x[0] in 'va'}; pws = {x for x in pw if x[0] == 's'}
    if p.valu:
        if c.mfma and pwv & cr: n = max(n, 2)
        if c.mfma and ('s', 'exec') in pw: n = max(n, 4)
        if p.trans and c.valu and not c.trans and pwv & cr: n = max(n, 1)
        if p.trans and (c.mfma) and pwv & cr: n = max(n, 2)
        if c.vmem and pws & cr: n = max(n, 5)
        if c.valu and pws & cr:
            n = max(n, 2)
            if c.op.startswith(('v_readlane', 'v_writelane')): n = max(n, 4)
        if c.valu and c.dpp and pwv & cr: n = max(n, 2)
        if c.valu and c.dpp and ('s', 'exec') in pw: n = max(n, 5)
        if c.op.startswith(('v_readlane', 'v_readfirstlane')) and pwv & cr: n = max(n, 1)
        if c.op.startswith(('v_readlane', 'v_readfirstlane', 'v_writelane', 'v_permlane')) and ('s', 'exec') in pw: n = max(n, 4)
        if c.op.startswith('v_permlane') and pwv & cr: n = max(n, 2)
        if ('sdwa' in p.op or 'op_sel' in p.text) and not p.op.startswith('v_pk') and c.valu and pwv & (cr | cw): n = max(n, 1)
    if p.salu and ('s', 'm0') in pw:
        if c.vmem and getattr(c, 'lds', False): n = max(n, 1)
        if c.op.startswith(('s_movrel', 'v_movrel')): n = max(n, 1)
    if p.mfma:
        P = p.passes
        if c.mfma:
            if pwv & set(c.a + c.b): n = max(n, {4: 8, 8: 12}[P])
            if pwv & set(c.c):
                if c.c == p.w and c.passes == P: pass
                else: n = max(n, {4: 6, 8: 10}[P])
            elif pwv & cw: n = max(n, {4: 6, 8: 10}[P])
        elif (c.valu or c.vmem or c.ds) and pwv & (cr | cw): n = max(n, {4: 8, 8: 12}[P])
        if c.valu and set(p.c) & cw: n = max(n, {4: 3, 8: 7}[P])
        if (c.ds or c.vmem) and set(p.c) & cw: n = max(n, {4: 3, 8: 7}[P])
    if p.vmem and getattr(p, 'store_data', None):
        if set(p.store_data) & cw: n = max(n, 2 if c.valu else 1)
    return n

def check(text, maxdist=14):
    lines = text.split('\n')
    ins = []; labels = {}
    for ln, l in enumerate(lines, 1):
        s = l.split(';')[0].strip()
        if not s or s.startswith('.'): continue
        if s.endswith(':'):
            labels[s[:-1]] = len(ins); continue
        ins.append(I(s, ln))
    succ = []
    for i, x in enumerate(ins):
        s = []
        if x.op == 's_endpgm': pass
        elif x.op == 's_branch': s = [labels[x.ops[0]]]
        elif x.op.startswith('s_cbranch'): s = [labels[x.ops[0]], i + 1]
        else: s = [i + 1]
        succ.append([t for t in s if t < len(ins)])
    probs = set()
    for i, p in enumerate(ins):
        if not (p.valu or p.mfma or p.vmem or (p.salu and ('s', 'm0') in p.w)): continue
        stack = [(t, 0) for t in succ[i]]
        seen = {}
        while stack:
            j, d = stack.pop()
            if j in seen and seen[j] <= d: continue
            seen[j] = d
            c = ins[j]
            n = need(p, c)
            if n > d:
                probs.add((p.line, c.line, n, d, p.text, c.text))
            d2 = d + c.states
            if d2 < maxdist:
                for t in succ[j]: stack.append((t, d2))
    return sorted(probs)

if __name__ == '__main__':
    import sys
    for p in check(open(sys.argv[1]).read()):
        print("HAZARD line %d -> %d need %d have %d:\n   %s\n   %s" % p)
```

```python
from common import *
N_MOD, N_LN, N_PACK = 108, 128, 342
NWG = N_MOD + N_LN + N_PACK
NAME = "k1_prep_kernel"
LAUNCH = f"; @launch kernel={NAME} grid=({NWG},1,1) block=(256,1,1) lds=2048"

def gen():
    a = Asm()
    a(kernel_head(NAME))
    a(f"""
    s_load_dwordx2 s[20:21], s[0:1], {ARG['ws']}
    s_mov_b32 s18, 0xffff0000
    s_cmp_ge_u32 s2, {N_MOD}
    s_cbranch_scc1 K1_not_mod
    """)
    C, W, A, U, T = 8, 44, 80, 88, 96
    a(f"""
    s_load_dwordx4 s[4:7], s[0:1], {ARG['c']}
    v_and_b32 v1, 3, v0
    v_lshrrev_b32 v2, 2, v0
    v_lshlrev_b32 v3, 1, v2
    v_mul_u32_u24 v4, 6912, v2
    v_lshl_add_u32 v4, v1, 4, v4
    s_lshl_b32 s10, s2, 6
    s_mov_b32 s14, {576*6912}
    s_mov_b32 s15, 0x20000
    s_mov_b32 s16, {64*6912}
    s_waitcnt lgkmcnt(0)
    s_mov_b32 s12, s6
    s_mov_b32 s13, s7
    """)
    for i in range(9):
        a(f"buffer_load_dwordx4 {vr(W+4*i)}, v4, s[12:15], s10 offen")
        if i < 8: a("s_add_u32 s10, s10, s16")
        a(f"global_load_ushort v{C+4*i}, v3, s[4:5] offset:{128*i}")
    for i in range(8): a(f"v_mov_b32 v{A+i}, 0")
    a(f"""
    v_lshrrev_b32 v5, 4, v0
    v_lshlrev_b32 v5, 7, v5
    v_lshl_add_u32 v5, v1, 5, v5
    s_mov_b32 s11, 0
    s_waitcnt vmcnt(0)
K1_mod_loop:
    s_set_gpr_idx_on s11, gpr_idx(SRC1)
    v_lshlrev_b32 v{T}, 16, v{C}
    """)
    for j in range(4):
        a(f"v_lshlrev_b32 v{U+2*j}, 16, v{W+j}\nv_and_b32 v{U+2*j+1}, s18, v{W+j}")
    a(f"""
    s_set_gpr_idx_off
    v_mul_f32 v{T+2}, 0xbfb8aa3b, v{T}
    v_exp_f32 v{T+2}, v{T+2}
    s_add_u32 s11, s11, 4
    v_add_f32 v{T+2}, 1.0, v{T+2}
    v_rcp_f32 v{T+2}, v{T+2}
    s_cmp_lt_u32 s11, 36
    v_mul_f32 v{T+2}, v{T+2}, v{T}
    v_cvt_pk_bf16_f32 v{T+2}, v{T+2}, v{T+2}
    v_and_b32 v{T+2}, s18, v{T+2}
    """)
    for j in range(4):
        a(f"v_pk_fma_f32 {vr(A+2*j,2)}, {vr(U+2*j,2)}, {vr(T+2,2)}, {vr(A+2*j,2)} op_sel_hi:[1,0,1]")
    a("s_cbranch_scc1 K1_mod_loop")
    for rot in (4, 8):
        for j in range(8):
            a(f"v_add_f32_dpp v{A+j}, v{A+j}, v{A+j} row_ror:{rot} row_mask:0xf bank_mask:0xf")
    a(f"""
    ds_write_b128 v5, {vr(A)}
    ds_write_b128 v5, {vr(A+4)} offset:16
    v_and_b32 v6, 31, v0
    v_bfe_u32 v7, v0, 5, 1
    v_lshlrev_b32 v7, 10, v7
    v_lshl_add_u32 v7, v6, 2, v7
    s_mov_b32 s17, 0
    s_sub_u32 s3, s2, 18
    s_cmp_lt_u32 s3, 18
    s_cselect_b32 s17, 1.0, s17
    s_sub_u32 s3, s2, 72
    s_cmp_lt_u32 s3, 18
    s_cselect_b32 s17, 1.0, s17
    s_lshl_b32 s3, s2, 7
    v_lshl_add_u32 v6, v6, 2, s3
    s_waitcnt lgkmcnt(0)
    s_barrier
    ds_read2_b32 v[8:9], v7 offset0:0 offset1:32
    ds_read2_b32 v[10:11], v7 offset0:64 offset1:96
    ds_read2_b32 v[12:13], v7 offset0:128 offset1:160
    ds_read2_b32 v[14:15], v7 offset0:192 offset1:224
    v_cmp_gt_u32 vcc, 32, v0
    s_waitcnt lgkmcnt(0)
    v_pk_add_f32 v[8:9], v[8:9], v[10:11]
    v_pk_add_f32 v[12:13], v[12:13], v[14:15]
    v_pk_add_f32 v[8:9], v[8:9], v[12:13]
    v_add_f32 v8, v8, v9
    v_mov_b32 v9, v8
    s_nop 1
    v_permlane32_swap_b32 v8, v9
    v_add_f32 v8, v8, v9
    v_cvt_pk_bf16_f32 v8, v8, v8
    v_and_b32 v8, s18, v8
    v_add_f32 v8, s17, v8
    v_cvt_pk_bf16_f32 v8, v8, v8
    v_and_b32 v8, s18, v8
    s_and_saveexec_b64 s[22:23], vcc
    s_cbranch_execz K1_end
    global_store_dword v6, v8, s[20:21]
    s_endpgm
K1_not_mod:
    s_cmp_ge_u32 s2, {N_MOD+N_LN}
    s_cbranch_scc1 K1_pack
    """)
    X, Y = 8, 28
    a(f"""
    s_load_dwordx2 s[4:5], s[0:1], {ARG['x']}
    s_sub_u32 s3, s2, {N_MOD}
    v_lshrrev_b32 v1, 4, v0
    v_lshl_add_u32 v1, s3, 4, v1          ; row
    v_and_b32 v2, 15, v0                  ; c
    v_mul_u32_u24 v3, 1152, v1
    v_lshl_add_u32 v3, v2, 3, v3
    v_mov_b32 v7, 0x3f803f80
    v_mov_b32 v4, 0
    s_waitcnt lgkmcnt(0)
    """)
    for i in range(9):
        a(f"global_load_dwordx2 {vr(X+2*i,2)}, v3, s[4:5] offset:{128*i}")
    a(f"""
    v_lshrrev_b32 v5, 5, v1
    v_mul_u32_u24 v5, 36864, v5
    v_and_b32 v6, 31, v1
    v_lshl_add_u32 v5, v6, 4, v5
    v_lshrrev_b32 v6, 1, v2
    v_lshl_add_u32 v5, v6, 9, v5
    v_and_b32 v6, 1, v2
    v_lshl_add_u32 v5, v6, 3, v5
    v_add_u32 v5, {WS_XN:#x}, v5
    s_movk_i32 s16, 0x1000
    s_waitcnt vmcnt(0)
    """)
    for i in range(18):
        a(f"v_dot2c_f32_bf16 v4, v{X+i}, v7")
    for i in range(18):
        a(f"v_lshlrev_b32 v{Y+2*i}, 16, v{X+i}\nv_and_b32 v{Y+2*i+1}, s18, v{X+i}")
    for rot in (1, 2, 4, 8):
        a(f"v_add_f32_dpp v4, v4, v4 row_ror:{rot} row_mask:0xf bank_mask:0xf\ns_nop 1")
    a(f"v_mul_f32 v4, {-1.0/576!r}, v4\nv_mov_b32 v64, 0\nv_mov_b32 v65, 0")
    for i in range(18):
        a(f"v_pk_add_f32 {vr(Y+2*i,2)}, {vr(Y+2*i,2)}, v[4:5] op_sel_hi:[1,0]")
    for i in range(18):
        a(f"v_pk_fma_f32 v[64:65], {vr(Y+2*i,2)}, {vr(Y+2*i,2)}, v[64:65]")
    a("v_add_f32 v64, v64, v65\ns_nop 1")
    for rot in (1, 2, 4, 8):
        a(f"v_add_f32_dpp v64, v64, v64 row_ror:{rot} row_mask:0xf bank_mask:0xf\ns_nop 1")
    a(f"""
    v_mov_b32 v65, 0x3727c5ac
    v_fmac_f32 v65, {1.0/576!r}, v64
    v_rsq_f32 v64, v65
    s_nop 0
    """)
    for i in range(9):
        a(f"v_pk_mul_f32 {vr(Y+4*i,2)}, {vr(Y+4*i,2)}, v[64:65] op_sel_hi:[1,0]")
        a(f"v_pk_mul_f32 {vr(Y+4*i+2,2)}, {vr(Y+4*i+2,2)}, v[64:65] op_sel_hi:[1,0]")
        a(f"v_cvt_pk_bf16_f32 v{X+2*i}, v{Y+4*i}, v{Y+4*i+1}")
        a(f"v_cvt_pk_bf16_f32 v{X+2*i+1}, v{Y+4*i+2}, v{Y+4*i+3}")
        a(f"global_store_dwordx2 v5, {vr(X+2*i,2)}, s[20:21]")
        if i < 8: a("v_add_u32 v5, s16, v5")
    a("s_endpgm")
    a(f"""
K1_pack:
    s_cmp_ge_u32 s2, {NWG}
    s_cbranch_scc1 K1_end
    s_load_dwordx8 s[4:11], s[0:1], {ARG['wq']}
    v_lshrrev_b32 v1, 6, v0
    v_and_b32 v2, 63, v0
    v_readfirstlane_b32 s3, v1
    s_sub_u32 s12, s2, {N_MOD+N_LN}
    s_lshl_b32 s12, s12, 2
    v_and_b32 v3, 31, v2                 ; m
    v_lshrrev_b32 v4, 5, v2              ; h
    s_add_u32 s12, s12, s3
    s_mul_hi_u32 s13, s12, {(1<<32)//36+1}   ; tile
    s_mul_i32 s14, s13, 36
    s_sub_u32 s14, s12, s14              ; s
    v_and_b32 v5, 0x13, v3
    v_bfe_u32 v6, v3, 2, 1
    v_lshl_add_u32 v5, v6, 3, v5
    v_bfe_u32 v6, v3, 3, 1
    v_lshl_add_u32 v5, v6, 2, v5
    s_waitcnt lgkmcnt(0)
    s_mov_b32 s24, s4
    s_mov_b32 s25, s5
    s_mov_b32 s26, {576*1152}
    s_mov_b32 s27, 0x20000
    s_movk_i32 s28, 1152                 ; stride
    s_lshl_b32 s29, s14, 4
    s_mov_b32 s30, 8                     ; h multiplier
    s_movk_i32 s31, 2304                 ; A
    s_lshl_b32 s15, s13, 6
    s_mov_b32 s16, 32
    s_cmp_lt_u32 s13, 18
    s_cbranch_scc1 K1_pack_go
    s_cmp_ge_u32 s13, 20
    s_cbranch_scc1 K1_pack_wo
    s_cmp_eq_u32 s13, 18
    s_cselect_b32 s24, s6, s8
    s_cselect_b32 s25, s7, s9
    s_movk_i32 s26, {576*36}
    s_mov_b32 s28, 36
    s_movk_i32 s31, 72
    s_mov_b32 s15, 0
    s_mov_b32 s16, 18
    s_branch K1_pack_go
K1_pack_wo:
    s_mov_b32 s24, s10
    s_mov_b32 s25, s11
    s_sub_u32 s15, s15, {20*64}
    s_mul_i32 s29, s14, 18
    s_cmp_lt_u32 s14, 32
    s_cbranch_scc1 K1_pack_go
    s_mul_i32 s29, s14, 144
    s_sub_u32 s29, s29, {144*32-16}
    s_movk_i32 s30, 72
    s_movk_i32 s31, {18*1152}
K1_pack_go:
    v_mov_b32 v7, s29
    v_mad_u32_u24 v7, v4, s30, v7        ; row
    v_mul_u32_u24 v7, s28, v7
    v_lshl_add_u32 v7, v5, 1, v7
    v_cmp_gt_u32 vcc, s16, v5
    v_mov_b32 v8, 0x7fffffff
    s_add_u32 s17, s15, s28
    v_cndmask_b32 v7, v8, v7, vcc
    """)
    for jj in range(4):
        a(f"buffer_load_ushort v{10+2*jj}, v7, s[24:27], s15 offen")
        a(f"buffer_load_ushort v{11+2*jj}, v7, s[24:27], s17 offen")
        if jj < 3: a("s_add_u32 s15, s15, s31\ns_add_u32 s17, s17, s31")
    a(f"""
    s_lshl_b32 s12, s12, 10
    s_add_u32 s12, s12, {WS_WQKV:#x}
    v_lshl_add_u32 v9, v2, 4, s12
    s_waitcnt vmcnt(0)
    v_lshl_or_b32 v20, v11, 16, v10
    v_lshl_or_b32 v21, v13, 16, v12
    v_lshl_or_b32 v22, v15, 16, v14
    v_lshl_or_b32 v23, v17, 16, v16
    global_store_dwordx4 v9, v[20:23], s[20:21]
K1_end:
    s_endpgm
    """)
    return a.text(), kernel_desc(NAME, 100, 32)
```

```python
from common import *
import math
NAME = "k2_qkv_kernel"
NWG = 256
LDS_AB = 36 * 1024
LDS = LDS_AB + 5 * 1024
LAUNCH = f"; @launch kernel={NAME} grid=({NWG},1,1) block=(320,1,1) lds={LDS}"
QSCALE = 18 ** -0.5 * math.log2(math.e)

W, X, ACC, AB, U = 112, 76, 60, 44, 36

def load_w(a, base_s):
    for s in range(36):
        a(f"buffer_load_dwordx4 {vr(W+4*s)}, v1, s[8:11], s{base_s} offen offset:{(s%4)*1024}")
        if s % 4 == 3 and s < 35: a(f"s_add_u32 s{base_s}, s{base_s}, 0x1000")

def mfma_loop(a, swapped=True, nafter=0):
    R = 9
    for s in range(R):
        a(f"ds_read_b128 {vr(X+4*s)}, v1 offset:{s*1024}")
    for s in range(36):
        r = X + 4 * (s % R)
        out = min(R - 1, 35 - s)
        if s % 4 == 0:
            a(f"s_waitcnt vmcnt({max(0, 32 - s) + nafter}) lgkmcnt({out})")
        else:
            a(f"s_waitcnt lgkmcnt({out})")
        c = "0" if s == 0 else vr(ACC, 16)
        if swapped:
            a(f"v_mfma_f32_32x32x16_bf16 {vr(ACC,16)}, {vr(W+4*s)}, {vr(r)}, {c}")
        else:
            a(f"v_mfma_f32_32x32x16_bf16 {vr(ACC,16)}, {vr(r)}, {vr(W+4*s)}, {c}")
        if s + R < 36:
            a(f"ds_read_b128 {vr(r)}, v1 offset:{(s+R)*1024}")

def gen():
    a = Asm()
    a(kernel_head(NAME))
    a(f"""
    s_cmp_ge_u32 s2, {NWG}
    s_cbranch_scc1 K2_end
    s_load_dwordx2 s[8:9], s[0:1], {ARG['ws']}
    v_lshrrev_b32 v2, 6, v0
    v_and_b32 v3, 63, v0
    v_readfirstlane_b32 s3, v2            ; wave
    v_lshlrev_b32 v1, 4, v3               ; lane*16
    s_mov_b32 s10, {WS_SIZE:#x}
    s_mov_b32 s11, 0x20000
    s_mov_b32 s18, 0xffff0000
    s_lshr_b32 s4, s2, 2                  ; rt
    s_and_b32 s5, s2, 3
    s_mul_i32 s5, s5, 5
    s_add_u32 s5, s5, s3                  ; ct
    s_lshl_b32 s6, s3, 10
    s_add_u32 m0, s6, {LDS_AB}
    s_min_u32 s7, s3, 3
    s_mul_i32 s12, s4, 36864
    s_mul_i32 s13, s7, 9216
    s_add_u32 s12, s12, s13
    s_add_u32 s12, s12, {WS_XN:#x}
    s_mul_i32 s14, s5, 36864
    s_add_u32 s14, s14, {WS_WQKV:#x}
    s_waitcnt lgkmcnt(0)
    buffer_load_dwordx4 v1, s[8:11], s6 offen lds
    """)
    for i in range(9):
        a(f"buffer_load_dwordx4 {vr(X+4*i)}, v1, s[8:11], s12 offen offset:{(i%4)*1024}")
        if i % 4 == 3: a("s_add_u32 s12, s12, 0x1000")
    load_w(a, 14)
    a(f"""
    v_lshrrev_b32 v4, 5, v3               ; h
    v_lshlrev_b32 v5, 5, v4               ; h*32 bytes
    s_mul_i32 s15, s7, 576
    s_add_u32 s15, s15, {LDS_AB}
    v_add_u32 v5, s15, v5
    v_add_u32 v6, s13, v1
    s_mov_b32 s16, 0
    s_waitcnt vmcnt(36)
    s_barrier
    ds_read_b128 {vr(AB)}, v5
    ds_read_b128 {vr(AB+4)}, v5 offset:16
    ds_read_b128 {vr(AB+8)}, v5 offset:2304
    ds_read_b128 {vr(AB+12)}, v5 offset:2320
K2_mod_loop:
    s_set_gpr_idx_on s16, gpr_idx(SRC1)
    """)
    for j in range(4):
        a(f"v_lshlrev_b32 v{U+2*j}, 16, v{X+j}\nv_and_b32 v{U+2*j+1}, s18, v{X+j}")
    a(f"""
    s_set_gpr_idx_off
    v_add_u32 v5, 64, v5
    s_add_u32 s16, s16, 4
    s_cmp_lt_u32 s16, 36
    s_waitcnt lgkmcnt(0)
    """)
    for j in range(4):
        a(f"v_pk_fma_f32 {vr(U+2*j,2)}, {vr(U+2*j,2)}, {vr(AB+8+2*j,2)}, {vr(AB+2*j,2)}")
    a(f"""
    ds_read_b128 {vr(AB)}, v5
    ds_read_b128 {vr(AB+4)}, v5 offset:16
    ds_read_b128 {vr(AB+8)}, v5 offset:2304
    ds_read_b128 {vr(AB+12)}, v5 offset:2320
    """)
    for j in range(4):
        a(f"v_cvt_pk_bf16_f32 v{ACC+j}, v{U+2*j}, v{U+2*j+1}")
    a(f"""
    ds_write_b128 v6, {vr(ACC)}
    v_add_u32 v6, 0x400, v6
    s_cbranch_scc1 K2_mod_loop
    s_waitcnt lgkmcnt(0)
    s_barrier
    s_cmp_eq_u32 s5, 19
    s_cbranch_scc1 K2_v
    """)
    mfma_loop(a, True)
    a(f"""
    v_and_b32 v7, 31, v3
    s_cmp_eq_u32 s5, 18
    s_cbranch_scc1 K2_k
    ; ---- q epilogue
    s_lshl_b32 s6, s4, 5
    v_add_u32 v7, s6, v7                  ; row
    v_mul_u32_u24 v7, 1152, v7
    v_lshl_add_u32 v7, v4, 4, v7
    s_lshl_b32 s6, s5, 6
    s_add_u32 s6, s6, {WS_Q:#x}
    s_mov_b32 s20, {QSCALE!r}
    s_nop 3
    """)
    for i in range(16):
        a(f"v_mul_f32 v{ACC+i}, s20, v{ACC+i}")
    for i in range(8):
        a(f"v_cvt_pk_bf16_f32 v{U+i}, v{ACC+2*i}, v{ACC+2*i+1}")
    a(f"""
    buffer_store_dwordx4 {vr(U)}, v7, s[8:11], s6 offen
    buffer_store_dwordx4 {vr(U+4)}, v7, s[8:11], s6 offen offset:32
    s_endpgm
K2_k:
    s_mul_i32 s6, s4, {KV_TILE}
    s_add_u32 s6, s6, {WS_KV:#x}
    v_lshlrev_b32 v7, 2, v3
    v_cmp_gt_u32 vcc, 32, v3
    v_mov_b32 v8, 0x7fffffff
    s_nop 4
    v_cndmask_b32 v7, v8, v7, vcc
    """)
    for i in range(5):
        a(f"v_cvt_pk_bf16_f32 v{U+i}, v{ACC+2*i}, v{ACC+2*i+1}")
    a(f"""
    buffer_store_dwordx4 {vr(U)}, v1, s[8:11], s6 offen
    buffer_store_dword v{U+4}, v7, s[8:11], s6 offen offset:{KV_K2}
    s_endpgm
K2_v:
    """)
    mfma_loop(a, False)
    a(f"""
    v_and_b32 v7, 31, v3                  ; n = d slot
    s_mul_i32 s6, s4, {KV_TILE}
    s_add_u32 s6, s6, {WS_KV:#x}
    v_mul_u32_u24 v9, 19, v4
    v_add_lshl_u32 v9, v9, v7, 4
    v_cmp_gt_u32 vcc, 19, v7
    v_mov_b32 v8, 0x7fffffff
    v_cmp_eq_u32 s[20:21], 18, v7
    v_mov_b32 v10, 0x3f803f80
    v_cndmask_b32 v9, v8, v9, vcc
    s_nop 1
    """)
    for i in range(8):
        a(f"v_cvt_pk_bf16_f32 v{U+i}, v{ACC+2*i}, v{ACC+2*i+1}")
    for i in range(8):
        a(f"v_cndmask_b32 v{U+i}, v{U+i}, v10, s[20:21]")
    a(f"""
    buffer_store_dwordx4 {vr(U)}, v9, s[8:11], s6 offen offset:{KV_V}
    buffer_store_dwordx4 {vr(U+4)}, v9, s[8:11], s6 offen offset:{KV_V+608}
K2_end:
    s_endpgm
    """)
    return a.text(), kernel_desc(NAME, 256, 32)
```

```python
from common import *
NAME = "k3_attn_kernel"
NWG = 256
LDS = KV_BYTES + 8 * 1024
LAUNCH = f"; @launch kernel={NAME} grid=({NWG},1,1) block=(512,1,1) lds={LDS}"
Q1, Q2 = 8, 12
SB = (16, 32)
P, O = 48, 56
KS = (72, 80)
VS = (88, 96)
R, T = 104, 112
WBYTES = 576 * 4608 * 2
WPBYTES = 16 * 972 * 1024

def rdK(t):
    k = KS[t % 2]; o = t * KV_TILE
    return [f"ds_read_b128 {vr(k)}, v1 offset:{o}", f"ds_read_b32 v{k+4}, v2 offset:{o+KV_K2}"]
def rdV(t):
    v = VS[t % 2]; o = t * KV_TILE + KV_V
    return [f"ds_read_b128 {vr(v)}, v3 offset:{o}", f"ds_read_b128 {vr(v+4)}, v3 offset:{o+608}"]
def M1(t): return f"v_mfma_f32_32x32x16_bf16 {vr(SB[t%2],16)}, {vr(KS[t%2])}, {vr(Q1)}, 0"
def M2(t): return f"v_mfma_f32_32x32x8_bf16 {vr(SB[t%2],16)}, {vr(KS[t%2]+4,2)}, {vr(Q2,2)}, {vr(SB[t%2],16)}"
def PV(t, b): return f"v_mfma_f32_32x32x16_bf16 {vr(O,16)}, {vr(VS[t%2]+4*b)}, {vr(P+4*b)}, {vr(O,16)}"

def step(t, extra=()):
    s = SB[t % 2]
    e = [f"v_exp_f32 v{s+i}, v{s+i}" for i in range(16)]
    c = [f"v_cvt_pk_bf16_f32 v{P+i}, v{s+2*i}, v{s+2*i+1}" for i in range(8)]
    L = ["s_waitcnt lgkmcnt(0)", M1(t + 1)] + e[0:4] + [PV(t - 1, 1)] + list(extra) + rdK(t + 2) + rdV(t + 1)
    L += e[4:8] + c[0:2] + [M2(t + 1)] + c[2:4] + e[8:12] + [PV(t, 0)] + e[12:16] + c[4:8]
    return L

def prep_setup(a):
    a(f"""
    s_mul_hi_u32 s33, s32, {(1<<32)//486+1}     ; j = q/486
    s_mul_i32 s34, s33, 486
    s_sub_u32 s34, s32, s34                     ; bq
    s_lshl_b32 s37, s32, 11
    s_cmp_ge_u32 s34, 324
    s_cbranch_scc1 K3_pd_%d
    s_mul_hi_u32 s35, s34, {(1<<32)//36+1}      ; P
    s_mul_i32 s36, s35, 36
    s_sub_u32 s34, s34, s36                     ; rem
    s_bitcmp1_b32 s34, 0
    s_cselect_b32 s16, s26, s24
    s_cselect_b32 s17, s27, s25
    s_lshr_b32 s34, s34, 1                      ; s
    s_mul_i32 s34, s34, {32*9216}
    s_mul_i32 s33, s33, 576
    s_add_u32 s34, s34, s33
    s_lshl_b32 s35, s35, 6
    s_add_u32 s34, s34, s35
    s_movk_i32 s36, 9216
    s_branch K3_pe_%d
K3_pd_%d:
    s_sub_u32 s34, s34, 324
    s_mul_hi_u32 s35, s34, {(1<<32)//9+1}       ; P'
    s_mul_i32 s36, s35, 9
    s_sub_u32 s34, s34, s36                     ; s'
    s_mov_b32 s16, s28
    s_mov_b32 s17, s29
    s_mul_i32 s33, s33, 9
    s_add_u32 s34, s34, s33
    s_mul_i32 s34, s34, {32*1152}
    s_lshl_b32 s35, s35, 6
    s_add_u32 s34, s34, s35
    s_movk_i32 s36, 1152
K3_pe_%d:
    s_lshl_b32 s35, s36, 2
    s_add_u32 s35, s35, s34
    v_mad_u32_u24 v4, v120, s36, v121
    """.replace('%d', str(prep_setup.n)))
    prep_setup.n += 1
prep_setup.n = 0
PREP_LOADS = [f"buffer_load_dwordx4 {vr(R)}, v4, s[16:19], s34 offen", f"buffer_load_dwordx4 {vr(R+4)}, v4, s[16:19], s35 offen"]

def gen():
    a = Asm()
    a(kernel_head(NAME))
    a(f"""
    s_cmp_ge_u32 s2, {NWG}
    s_cbranch_scc1 K3_end
    s_load_dwordx2 s[8:9], s[0:1], {ARG['ws']}
    s_load_dwordx4 s[24:27], s[0:1], {ARG['wg']}
    s_load_dwordx2 s[28:29], s[0:1], {ARG['wd']}
    v_lshrrev_b32 v2, 6, v0
    v_and_b32 v0, 63, v0                  ; lane
    v_readfirstlane_b32 s3, v2            ; wave
    v_lshlrev_b32 v7, 4, v0               ; lane*16
    s_mov_b32 s10, {WS_SIZE:#x}
    s_mov_b32 s11, 0x20000
    s_mov_b32 s14, {KV_BYTES}
    s_mov_b32 s15, 0x20000
    s_mov_b32 s18, {WBYTES}
    s_mov_b32 s19, 0x20000
    s_mov_b32 s22, {WPBYTES}
    s_mov_b32 s23, 0x20000
    s_lshl_b32 s4, s2, 3
    s_add_u32 s4, s4, s3
    s_lshl_b32 s5, s3, 10
    v_lshrrev_b32 v122, 5, v0             ; h
    v_and_b32 v123, 31, v0                ; m / head
    v_mul_u32_u24 v5, 36, v123
    v_lshl_add_u32 v6, v122, 4, v5        ; q offset
    v_lshl_add_u32 v5, v122, 30, v5
    s_mul_i32 s6, s4, 1152
    s_add_u32 s6, s6, {WS_Q:#x}
    s_waitcnt lgkmcnt(0)
    s_add_u32 s12, s8, {WS_KV:#x}
    s_addc_u32 s13, s9, 0
    s_add_u32 s20, s8, {WS_WP:#x}
    s_addc_u32 s21, s9, 0
    buffer_load_dwordx4 {vr(Q1)}, v6, s[8:11], s6 offen
    buffer_load_dword v{Q2}, v5, s[8:11], s6 offen offset:32
    s_cmp_ge_u32 s3, 4
    s_cbranch_scc1 K3_skip18
    s_add_u32 m0, s5, {18*8192}
    s_nop 0
    buffer_load_dwordx4 v7, s[12:15], m0 offen lds
K3_skip18:
    s_mov_b32 m0, s5
    s_nop 0
    """)
    for r in range(18):
        a("buffer_load_dwordx4 v7, s[12:15], m0 offen lds")
        if r < 17: a("s_add_u32 m0, m0, 0x2000\ns_nop 0")
    a(f"""
    v_lshrrev_b32 v120, 4, v0
    v_lshlrev_b32 v120, 3, v120
    v_bfe_u32 v121, v0, 2, 2
    v_add_u32 v120, v120, v121
    v_and_b32 v121, 3, v0
    v_lshlrev_b32 v121, 4, v121
    s_add_u32 s7, s5, {KV_BYTES}
    v_add_u32 v5, s7, v7
    v_lshrrev_b32 v6, 2, v0
    v_lshlrev_b32 v6, 6, v6
    v_add3_u32 v6, v6, v121, s7
    s_mov_b32 s32, s4
    """)
    prep_setup(a)
    for l in PREP_LOADS: a(l)
    a(f"""
    v_mov_b32 v{KS[0]+5}, 0x3f803f80
    v_mov_b32 v{KS[1]+5}, 0x3f803f80
    v_mul_u32_u24 v124, 19, v122
    v_add_lshl_u32 v124, v124, v123, 4
    v_add_u32 v125, 0x30000, v124
    v_cmp_gt_u32 vcc, 19, v123
    s_mov_b32 s31, 0
    s_mov_b32 s40, 1
    v_cndmask_b32 v124, v125, v124, vcc
    s_waitcnt vmcnt(14)
    s_barrier
K3_maxpass:
    v_mov_b32 v1, v7
    v_lshlrev_b32 v2, 2, v123
    v_mov_b32 v{Q2+1}, 0
    v_mov_b32 v126, 0xff800000
K3_maxloop:
    """)
    for l in rdK(0): a(l)
    a(f"""
    v_add_u32 v1, {KV_TILE}, v1
    v_add_u32 v2, {KV_TILE}, v2
    s_sub_u32 s40, s40, 1
    s_cmp_lg_u32 s40, 0
    s_waitcnt lgkmcnt(0)
    {M1(0)}
    {M2(0)}
    s_nop 11
    """)
    for i in range(8):
        a(f"v_max3_f32 v126, v{SB[0]+2*i}, v{SB[0]+2*i+1}, v126")
    a(f"""
    s_cbranch_scc1 K3_maxloop
    v_mov_b32 v127, v126
    v_mov_b32 v1, v7
    v_lshlrev_b32 v2, 2, v123
    v_permlane32_swap_b32 v126, v127
    v_mov_b32 v3, v124
    v_max_f32 v126, v126, v127
    """)
    for l in rdK(0) + rdK(1) + rdV(0): a(l)
    a(f"""
    v_sub_f32 v126, 0, v126               ; -m
    v_cvt_pk_bf16_f32 v127, v126, v126
    v_and_b32 v127, 0xffff0000, v127      ; hi
    v_sub_f32 v126, v126, v127            ; r1
    v_cvt_pk_bf16_f32 v125, v127, v126
    v_and_b32 v127, 0xffff0000, v125      ; mid
    v_sub_f32 v126, v126, v127            ; r2
    v_cvt_pk_bf16_f32 v126, v126, 0       ; (lo, 0)
    v_cmp_gt_u32 vcc, 32, v0
    """)
    for i in range(16): a(f"v_mov_b32 v{O+i}, 0")
    a(f"v_cndmask_b32 v{Q2+1}, v126, v125, vcc")
    for i in range(4): a(f"v_mov_b32 v{P+4+i}, 0\nv_mov_b32 v{VS[1]+4+i}, 0")
    a(f"""
    s_mov_b32 s30, 0
    s_waitcnt lgkmcnt(0)
    {M1(0)}
    {M2(0)}
    s_nop 9
.p2align 3
K3_loop:
    """)
    for t in range(16):
        extra = []
        if t == 4:
            extra = ["s_waitcnt vmcnt(0)", f"ds_write_b128 v5, {vr(R)}"]
        if t == 5:
            extra = [f"ds_read_b64_tr_b16 {vr(T,2)}, v6", f"ds_read_b64_tr_b16 {vr(T+4,2)}, v6 offset:8"]
        if t == 6:
            extra = [f"ds_write_b128 v5, {vr(R+4)}"]
        if t == 7:
            extra = [f"ds_read_b64_tr_b16 {vr(T+2,2)}, v6", f"ds_read_b64_tr_b16 {vr(T+6,2)}, v6 offset:8"]
        if t == 8:
            extra = [f"buffer_store_dwordx4 {vr(T)}, v7, s[20:23], s37 offen sc1",
                     f"buffer_store_dwordx4 {vr(T+4)}, v7, s[20:23], s37 offen offset:1024 sc1",
                     "s_add_u32 s32, s32, 2048"]
        for l in step(t, extra): a(l)
        if t == 8:
            prep_setup(a)
            for l in PREP_LOADS: a(l)
    a(f"""
    v_add_u32 v1, {16*KV_TILE}, v1
    v_add_u32 v2, {16*KV_TILE}, v2
    v_add_u32 v3, {16*KV_TILE}, v3
    s_or_b32 s33, s30, s31
    s_cmp_lg_u32 s33, 0
    s_cbranch_scc1 K3_nobar
    s_barrier
K3_nobar:
    s_add_u32 s30, s30, 1
    s_cmp_lt_u32 s30, 4
    s_cbranch_scc1 K3_loop
    {PV(15, 1)}
    s_lshr_b32 s5, s4, 5
    s_mul_i32 s5, s5, 36864
    s_and_b32 s6, s4, 31
    s_lshl_b32 s6, s6, 4
    s_add_u32 s5, s5, s6
    s_add_u32 s5, s5, {WS_O:#x}
    v_lshlrev_b32 v16, 10, v123
    v_lshl_add_u32 v16, v122, 9, v16
    v_lshrrev_b32 v17, 2, v123
    v_lshlrev_b32 v17, 9, v17
    v_and_b32 v18, 3, v123
    v_lshl_add_u32 v17, v18, 2, v17
    v_lshl_add_u32 v17, v122, 30, v17
    v_add_u32 v17, 0x8000, v17
    v_mov_b32 v18, v{O+10}
    v_mov_b32 v19, v{O+10}
    v_mul_f32 v20, 0, v{O}
    """)
    for i in range(1, 10): a(f"v_fmac_f32 v20, 0, v{O+i}")
    a(f"""
    v_permlane32_swap_b32 v18, v19
    v_add_f32 v20, v20, v18
    v_rcp_f32 v18, v18
    v_cmp_nlt_f32 vcc, v20, v128
    s_cmp_lg_u32 s31, 0
    s_cbranch_scc1 K3_fin
    s_cbranch_vccz K3_fin
    s_mov_b32 s31, 1
    s_mov_b32 s40, 64
    s_branch K3_maxpass
K3_fin:
    """)
    for i in range(10): a(f"v_mul_f32 v{O+i}, v18, v{O+i}")
    for i in range(5): a(f"v_cvt_pk_bf16_f32 v{24+i}, v{O+2*i}, v{O+2*i+1}")
    a(f"""
    buffer_store_dwordx4 v[24:27], v16, s[8:11], s5 offen
    buffer_store_dword v28, v17, s[8:11], s5 offen
K3_end:
    s_endpgm
    """)
    t = a.text().replace("    v_mov_b32 v%d, 0x3f803f80\n" % (KS[0]+5), "    v_mov_b32 v%d, 0x3f803f80\n    v_mov_b32 v128, 0x71800000\n" % (KS[0]+5), 1)
    return t, kernel_desc(NAME, 132, 48)
```

```python
from common import *
from k2 import W, X, ACC, AB, U, load_w, mfma_loop
NAME = "k4_wo_kernel"
NWG = 256
LDS = 40 * 1024
LAUNCH = f"; @launch kernel={NAME} grid=({NWG},1,1) block=(320,1,1) lds={LDS}"
XR = 28
def gen():
    a = Asm()
    a(kernel_head(NAME))
    a(f"""
    s_cmp_ge_u32 s2, {NWG}
    s_cbranch_scc1 K4_end
    s_load_dwordx2 s[8:9], s[0:1], {ARG['ws']}
    s_load_dwordx2 s[20:21], s[0:1], {ARG['x']}
    v_lshrrev_b32 v2, 6, v0
    v_and_b32 v3, 63, v0
    v_readfirstlane_b32 s3, v2            ; wave
    v_lshlrev_b32 v1, 4, v3               ; lane*16
    s_mov_b32 s10, {WS_SIZE:#x}
    s_mov_b32 s11, 0x20000
    s_mov_b32 s18, 0xffff0000
    s_lshr_b32 s4, s2, 2                  ; rt
    s_and_b32 s5, s2, 3
    s_mul_i32 s5, s5, 5
    s_add_u32 s5, s5, s3
    s_min_u32 s7, s5, 17
    s_lshl_b32 s6, s3, 13                 ; wave*8KB
    s_mov_b32 m0, s6
    s_mul_i32 s12, s4, 36864
    s_add_u32 s12, s12, s6
    s_add_u32 s12, s12, {WS_O:#x}
    s_mul_i32 s14, s7, 36864
    s_add_u32 s14, s14, {WS_WO:#x}
    v_lshrrev_b32 v4, 5, v3               ; h
    v_and_b32 v7, 31, v3                  ; n
    s_lshl_b32 s15, s4, 5
    v_add_u32 v8, s15, v7                 ; row
    v_mul_u32_u24 v9, 1152, v8
    v_lshl_add_u32 v9, v4, 4, v9
    s_lshl_b32 s15, s7, 6
    v_add_u32 v9, s15, v9                 ; x offset
    v_lshlrev_b32 v10, 5, v4
    s_lshl_b32 s16, s7, 7
    s_add_u32 s16, s16, {WS_MOD + 2*2304}
    s_waitcnt lgkmcnt(0)
    """)
    for i in range(8):
        a(f"buffer_load_dwordx4 v1, s[8:11], s12 offen offset:{(i%4)*1024} lds")
        if i == 3: a("s_add_u32 s12, s12, 0x1000\ns_add_u32 m0, s6, 0x1000\ns_nop 0")
    load_w(a, 14)
    a(f"""
    global_load_dwordx4 {vr(XR)}, v9, s[20:21]
    global_load_dwordx4 {vr(XR+4)}, v9, s[20:21] offset:32
    buffer_load_dwordx4 {vr(AB)}, v10, s[8:11], s16 offen
    buffer_load_dwordx4 {vr(AB+4)}, v10, s[8:11], s16 offen offset:16
    buffer_load_dwordx4 {vr(AB+8)}, v10, s[8:11], s16 offen offset:64
    buffer_load_dwordx4 {vr(AB+12)}, v10, s[8:11], s16 offen offset:80
    s_waitcnt vmcnt(42)
    s_barrier
    s_cmp_ge_u32 s5, 18
    s_cbranch_scc1 K4_end
    """)
    mfma_loop(a, True, nafter=6)
    a(f"""
    v_lshrrev_b32 v11, 4, v7
    v_mul_u32_u24 v11, {18*1024}, v11
    v_lshl_add_u32 v11, v4, 8, v11
    v_and_b32 v12, 15, v7
    v_lshl_add_u32 v11, v12, 4, v11
    s_mul_i32 s6, s4, {36*1024}
    s_lshl_b32 s15, s5, 10
    s_add_u32 s6, s6, s15
    s_add_u32 s6, s6, {WS_X1:#x}
    v_mul_u32_u24 v12, 288, v8
    v_lshl_add_u32 v12, v4, 3, v12
    s_lshl_b32 s15, s5, 4
    s_add_u32 s15, s15, {WS_ST:#x}
    s_waitcnt vmcnt(0)
    """)
    XU = X
    for j in range(8):
        a(f"v_lshlrev_b32 v{XU+2*j}, 16, v{XR+j}\nv_and_b32 v{XU+2*j+1}, s18, v{XR+j}")
    for j in range(8):
        a(f"v_pk_fma_f32 {vr(ACC+2*j,2)}, {vr(ACC+2*j,2)}, {vr(AB+2*j,2)}, {vr(XU+2*j,2)}")
    for j in range(8):
        a(f"v_cvt_pk_bf16_f32 v{U+j}, v{ACC+2*j}, v{ACC+2*j+1}")
    a(f"""
    buffer_store_dwordx4 {vr(U)}, v11, s[8:11], s6 offen
    buffer_store_dwordx4 {vr(U+4)}, v11, s[8:11], s6 offen offset:512
    """)
    for j in range(8):
        a(f"v_lshlrev_b32 v{XU+2*j}, 16, v{U+j}\nv_and_b32 v{XU+2*j+1}, s18, v{U+j}")
    a(f"v_pk_add_f32 v[14:15], {vr(XU,2)}, {vr(XU+2,2)}")
    for j in range(2, 8):
        a(f"v_pk_add_f32 v[14:15], v[14:15], {vr(XU+2*j,2)}")
    a(f"""
    v_add_f32 v14, v14, v15
    v_mul_f32 v16, {-1.0/16!r}, v14
    v_mov_b32 v18, 0
    v_mov_b32 v19, 0
    """)
    for j in range(8):
        a(f"v_pk_add_f32 {vr(XU+2*j,2)}, {vr(XU+2*j,2)}, v[16:17] op_sel_hi:[1,0]")
    for j in range(8):
        a(f"v_pk_fma_f32 v[18:19], {vr(XU+2*j,2)}, {vr(XU+2*j,2)}, v[18:19]")
    a(f"""
    v_add_f32 v15, v18, v19
    buffer_store_dwordx2 v[14:15], v12, s[8:11], s15 offen
K4_end:
    s_endpgm
    """)
    return a.text(), kernel_desc(NAME, 256, 32)
```

```python
from common import *
NAME = "k5_ffn_kernel"
NWG = 256
SS = 36864
LDS_AB = 4 * SS
LDS = LDS_AB + 5 * 1024
LAUNCH = f"; @launch kernel={NAME} grid=({NWG},1,1) block=(256,1,1) lds={LDS}"
X = 112
ACC = (48, 80)
HB = 8
FR = 80
NR = 12
PF = 8
BASE = (4, 5, 6, 7)
TMP = 8
STREAM = 972 * 1024

def mfma(acc, a_, b_, first):
    return f"v_mfma_f32_16x16x32_bf16 {vr(acc)}, {a_}, {b_}, {'0' if first else vr(acc)}"

def interleave(mf, fill, maxper=2):
    n = len(mf)
    out = []
    gaps = [[] for _ in range(n)]
    cnt = [len(mf[(i + 1) % n][1]) if i + 1 < n else 0 for i in range(n)]
    for i in range(n): cnt[i] += len(mf[i][2])
    g = 0
    for (lo, item) in fill:
        g = max(g, lo)
        while g < n - 1 and cnt[g] >= maxper: g += 1
        gaps[g].append(item); cnt[g] += 1
    for i in range(n):
        out += mf[i][1] + [mf[i][0]] + mf[i][2] + gaps[i]
    return out

def rd(t, basefn, per):
    r = FR + (t % NR) * 4
    b, off = basefn(t)
    return f"ds_read_b128 {ar(r)}, v{b} offset:{off}"

def dma_items(pos_imm, dyn=False):
    it = []
    for k in range(9):
        g = k // 4
        if dyn: it.append(f"s_mov_b32 m0, s{27+g}")
        else: it.append(f"s_add_u32 m0, s20, {pos_imm + g*4096}")
        it.append(f"buffer_load_dwordx4 v1, s[12:15], s{24+g} offen offset:{(k%4)*1024} lds")
    return it
ADV = [f"s_add_u32 s{24+g}, s{24+g}, {SS}" for g in range(3)]

def epi1(acc):
    it = []
    for rt in range(2):
        for e in range(2):
            g = acc + ((0 * 2 + e) * 2 + rt) * 4; u = acc + ((1 * 2 + e) * 2 + rt) * 4
            for i in range(4): it.append(f"v_max_f32 v{g+i}, 0, v{g+i}")
            for i in range(4): it.append(f"v_mul_f32 v{g+i}, v{g+i}, v{u+i}")
            for i in range(2): it.append(f"v_cvt_pk_bf16_f32 v{TMP+rt*4+e*2+i}, v{g+2*i}, v{g+2*i+1}")
    for q in range(4):
        it.append(["s_set_gpr_idx_on s30, gpr_idx(DST)", f"v_accvgpr_write_b32 a{2*q}, v{TMP+2*q}", f"v_accvgpr_write_b32 a{2*q+1}, v{TMP+2*q+1}", "s_set_gpr_idx_off"])
    it.append("s_add_u32 s30, s30, 8")
    return it

def flat(L):
    o = []
    for x in L:
        if isinstance(x, list): o += x
        else: o.append(x)
    return o

def spread(items, lo, hi):
    n = len(items)
    return [(lo + (hi - lo) * i // max(n, 1), it) for i, it in enumerate(items)]

def merge(*ls):
    return sorted(sum(ls, []), key=lambda x: x[0])

def chunk(half):
    acc = ACC[half]
    def basefn(t):
        t %= 144
        t2 = (half * 72 + t) % 144
        return BASE[t2 // 36], (t2 % 36) * 1024
    out = []
    for sub in range(2):
        pos = 2 * half + sub
        mf = []
        for ks in range(9):
            s = sub * 9 + ks
            for f in range(4):
                t = s * 4 + f
                for rt in range(2):
                    pre = []; post = []
                    if rt == 0 and f % 2 == 0: pre = [f"s_waitcnt lgkmcnt({PF-2})"]
                    if rt == 0: post = [rd(t + PF, basefn, 72)]
                    mf.append((mfma(acc + (f * 2 + rt) * 4, ar(FR + (t % NR) * 4), vr(X + (2 * s + rt) * 4), s == 0), pre, post))
        d = dma_items(((pos - 1) % 4) * SS)
        fill = spread(d, 1, 66) + [(67, x) for x in ADV]
        if sub == 0:
            fill = merge(fill, spread(epi1(ACC[1 - half]), 6, 70))
        fill = fix_m0(fill)
        out += flat(interleave(mf, fill))
        out += ["s_waitcnt vmcnt(9)", "s_barrier"]
    return out

def fix_m0(fill):
    res = []; pend = []; inpair = False
    for lo, it in fill:
        if isinstance(it, list) and inpair:
            pend.append((lo, it)); continue
        res.append((lo, it))
        if isinstance(it, str) and ' m0, ' in it: inpair = True
        if isinstance(it, str) and it.endswith(' lds'):
            inpair = False
            res += pend; pend = []
    return res

def epi2(acc):
    it = []
    for rt in range(2):
        for e in range(2):
            c = acc + (e * 2 + rt) * 4
            for i in range(2): it.append(f"v_cvt_pk_bf16_f32 v{TMP+rt*4+e*2+i}, v{c+2*i}, v{c+2*i+1}")
        it.append(f"buffer_store_dwordx4 {vr(TMP+rt*4)}, v1, s[16:19], s{32+rt} offen sc1")
    it += ["s_add_u32 s32, s32, 0x400", "s_add_u32 s33, s33, 0x400"]
    return it

def phase2_body():
    A2 = (48, 64)
    def basefn(t):
        return (2, t * 1024) if t < 36 else (3, (t - 36) * 1024)
    mf = []
    for dp in range(2):
        for s in range(9):
            for e in range(2):
                t = dp * 18 + s * 2 + e
                for rt in range(2):
                    pre = []; post = []
                    if rt == 0 and e == 0: pre = [f"s_waitcnt lgkmcnt({PF-2})"]
                    if rt == 0: post = [rd(t + PF, basefn, 36)]
                    mf.append((mfma(A2[dp] + (e * 2 + rt) * 4, ar(FR + (t % NR) * 4), ar(HB + (2 * s + rt) * 4), s == 0), pre, post))
    d = dma_items(0, dyn=True)
    fill = merge(spread(d, 1, 66), spread(epi2(A2[1]), 6, 30), spread(epi2(A2[0]), 42, 60))
    tail = ADV + [
        "s_add_u32 s27, s21, s20", "s_add_u32 s28, s27, 0x1000", "s_add_u32 s29, s27, 0x2000",
        "s_mov_b32 s21, s22", f"s_add_u32 s22, s22, {SS}", f"s_cmp_ge_u32 s22, {4*SS}", "s_cselect_b32 s22, 0, s22",
        "v_mov_b32 v2, v3", "v_add_u32 v3, s22, v1", "s_sub_u32 s31, s31, 1", "s_cmp_lg_u32 s31, 0"]
    body = flat(interleave(mf, fill))
    return body + tail

def gen():
    a = Asm()
    a(kernel_head(NAME))
    ST = 48
    a(f"""
    s_cmp_ge_u32 s2, {NWG}
    s_cbranch_scc1 K5_end
    s_load_dwordx2 s[8:9], s[0:1], {ARG['ws']}
    v_lshrrev_b32 v2, 6, v0
    v_and_b32 v0, 63, v0
    v_readfirstlane_b32 s3, v2            ; wave
    v_lshlrev_b32 v1, 4, v0
    s_mov_b32 s10, {WS_SIZE:#x}
    s_mov_b32 s11, 0x20000
    s_mov_b32 s14, {STREAM}
    s_mov_b32 s15, 0x20000
    s_mov_b32 s18, {XBYTES}
    s_mov_b32 s19, 0x20000
    s_mov_b32 s23, 0xffff0000
    s_and_b32 s4, s2, 7
    s_lshl_b32 s4, s4, 1
    s_bfe_u32 s5, s2, 0x10003
    s_add_u32 s4, s4, s5                  ; split j
    s_lshr_b32 s5, s2, 4                  ; M block i
    s_lshl_b32 s5, s5, 2
    s_add_u32 s5, s5, s3                  ; rt32 index = 4i + w
    s_mul_i32 s20, s3, 9216               ; wave's DMA share offset
    v_and_b32 v8, 15, v0                  ; n16
    v_lshrrev_b32 v9, 4, v0               ; g
    v_mul_u32_u24 v10, 288, v8
    v_mad_u32_u24 v10, v9, 72, v10        ; stats offset   (72 is not inline) 
    s_mul_i32 s6, s5, {32*288}
    s_add_u32 s6, s6, {WS_ST:#x}
    s_add_u32 s7, s6, {16*288}
    s_mul_i32 s34, s4, {STREAM}
    s_add_u32 s34, s34, {WS_WP:#x}
    s_mul_i32 s35, s4, {XBYTES}
    s_add_u32 s35, s35, {WS_PART:#x}
    s_lshl_b32 s36, s3, 10
    s_add_u32 m0, s36, {LDS_AB}
    s_add_u32 s36, s36, {WS_MOD + 3*2304}
    s_mul_i32 s37, s5, 36864
    s_waitcnt lgkmcnt(0)
    s_add_u32 s12, s8, s34
    s_addc_u32 s13, s9, 0
    s_add_u32 s16, s8, s35
    s_addc_u32 s17, s9, 0
    """.replace("v_mad_u32_u24 v10, v9, 72, v10        ; stats offset   (72 is not inline) ", "v_mul_u32_u24 v11, 72, v9\n    v_add_u32 v10, v10, v11"))
    for rt in range(2):
        for k in range(4):
            a(f"buffer_load_dwordx4 {vr(ST+18*rt+4*k)}, v10, s[8:11], s{6+rt} offen offset:{16*k}")
        a(f"buffer_load_dwordx2 {vr(ST+18*rt+16,2)}, v10, s[8:11], s{6+rt} offen offset:64")
    a(f"""
    buffer_load_dwordx4 v1, s[8:11], s36 offen lds
    s_mov_b32 m0, {LDS_AB + 4096}
    s_movk_i32 s36, {WS_MOD + 3*2304 + 4096}
    buffer_load_dwordx4 v1, s[8:11], s36 offen lds
    s_add_u32 s36, s37, {WS_X1:#x}
    """)
    for f in range(36):
        rt, s = divmod(f, 18)
        a(f"buffer_load_dwordx4 {vr(X+(2*s+rt)*4)}, v1, s[8:11], s36 offen offset:{(f%4)*1024}")
        if f % 4 == 3 and f < 35: a("s_add_u32 s36, s36, 0x1000")
    a("s_mov_b32 s24, s20\ns_add_u32 s25, s20, 0x1000\ns_add_u32 s26, s20, 0x2000")
    a(f"""
    s_mov_b32 s21, {2*SS}
    s_mov_b32 s31, 3
K5_pre_dma:
    s_add_u32 s27, s21, s20
    s_add_u32 s28, s27, 0x1000
    s_add_u32 s29, s27, 0x2000
    """)
    for g in range(3):
        a(f"s_mov_b32 m0, s{27+g}\ns_nop 0")
        for k in range(4 if g < 2 else 1):
            a(f"buffer_load_dwordx4 v1, s[12:15], s{24+g} offen offset:{k*1024} lds")
    for l in ADV: a(l)
    a(f"""
    s_add_u32 s21, s21, {SS}
    s_cmp_ge_u32 s21, {4*SS}
    s_cselect_b32 s21, 0, s21
    s_sub_u32 s31, s31, 1
    s_cmp_lg_u32 s31, 0
    s_cbranch_scc1 K5_pre_dma
    v_mov_b32 v4, v1
    v_add_u32 v5, {SS}, v1
    v_add_u32 v6, {2*SS}, v1
    v_add_u32 v7, {3*SS}, v1
    v_lshlrev_b32 v12, 5, v9
    v_add_u32 v12, {LDS_AB}, v12          ; ab lds addr
    s_waitcnt vmcnt(63)
    """)
    for rt in range(2):
        b = ST + 18 * rt
        a(f"v_pk_add_f32 v[20:21], {vr(b,2)}, {vr(b+2,2)}")
        for i in range(2, 9): a(f"v_pk_add_f32 v[20:21], v[20:21], {vr(b+2*i,2)}")
        a(f"""
        v_mov_b32 v22, v20
        s_nop 1
        v_permlane32_swap_b32 v20, v22
        v_add_f32 v20, v20, v22
        v_mov_b32 v22, v20
        s_nop 1
        v_permlane16_swap_b32 v20, v22
        v_add_f32 v20, v20, v22
        v_mul_f32 v20, {-1.0/576!r}, v20      ; -mean
        v_mov_b32 v23, 0
        """)
        for i in range(9):
            a(f"v_fma_f32 v22, v{b+2*i}, v13, v20\nv_fmac_f32 v23, v22, v22") if False else None
            a(f"v_mov_b32 v22, v20\nv_fmac_f32 v22, 0x3d800000, v{b+2*i}\nv_fmac_f32 v23, v22, v22")
        a(f"""
        v_fmac_f32 v21, 0x41800000, v23
        v_mov_b32 v22, v21
        s_nop 1
        v_permlane32_swap_b32 v21, v22
        v_add_f32 v21, v21, v22
        v_mov_b32 v22, v21
        s_nop 1
        v_permlane16_swap_b32 v21, v22
        v_add_f32 v21, v21, v22
        v_mov_b32 v22, 0x3727c5ac
        v_fmac_f32 v22, {1.0/576!r}, v21
        v_rsq_f32 v{14+2*rt}, v22
        s_nop 0
        v_mul_f32 v{15+2*rt}, v20, v{14+2*rt}
        """)
    AB, U = 48, 64
    a(f"""
    s_mov_b32 s30, 0
    s_waitcnt vmcnt(27)
    s_barrier
    ds_read_b128 {vr(AB)}, v12
    ds_read_b128 {vr(AB+4)}, v12 offset:16
    ds_read_b128 {vr(AB+8)}, v12 offset:2304
    ds_read_b128 {vr(AB+12)}, v12 offset:2320
K5_norm:
    s_set_gpr_idx_on s30, gpr_idx(SRC1)
    """)
    for j in range(8):
        a(f"v_lshlrev_b32 v{U+2*j}, 16, v{X+j}\nv_and_b32 v{U+2*j+1}, s23, v{X+j}")
    a("s_set_gpr_idx_off\nv_add_u32 v12, 0x80, v12")
    for j in range(8):
        r = 14 + 2 * (j // 4)
        a(f"v_pk_fma_f32 {vr(U+2*j,2)}, {vr(U+2*j,2)}, {vr(r,2)}, {vr(r,2)} op_sel:[0,0,1] op_sel_hi:[1,0,1]")
    a("s_waitcnt lgkmcnt(0)")
    for j in range(8):
        jj = j % 4
        a(f"v_pk_fma_f32 {vr(U+2*j,2)}, {vr(U+2*j,2)}, {vr(AB+8+2*jj,2)}, {vr(AB+2*jj,2)}")
    a(f"""
    ds_read_b128 {vr(AB)}, v12
    ds_read_b128 {vr(AB+4)}, v12 offset:16
    ds_read_b128 {vr(AB+8)}, v12 offset:2304
    ds_read_b128 {vr(AB+12)}, v12 offset:2320
    s_set_gpr_idx_on s30, gpr_idx(DST)
    """)
    for j in range(8):
        a(f"v_cvt_pk_bf16_f32 v{X+j}, v{U+2*j}, v{U+2*j+1}")
    a(f"""
    s_set_gpr_idx_off
    s_add_u32 s30, s30, 8
    s_cmp_lt_u32 s30, 144
    s_cbranch_scc1 K5_norm
    s_mov_b32 s30, 0
    s_waitcnt vmcnt(9) lgkmcnt(0)
    s_barrier
    """)
    for t in range(PF):
        a(f"ds_read_b128 {ar(FR+4*t)}, v6 offset:{t*1024}")
    a("s_branch K5_p1_B\n.p2align 3\nK5_p1_A:")
    for l in chunk(0): a(l)
    a("K5_p1_B:")
    for l in chunk(1): a(l)
    a(f"""
    s_cmp_lt_u32 s30, 72
    s_cbranch_scc1 K5_p1_A
    s_nop 4
    """)
    for l in flat(epi1(ACC[1])): a(l)
    a(f"""
    v_mov_b32 v2, v4
    v_mov_b32 v3, v5
    s_mov_b32 s21, 0
    s_mov_b32 s22, {SS}
    s_add_u32 s27, s20, {3*SS}
    s_add_u32 s28, s27, 0x1000
    s_add_u32 s29, s27, 0x2000
    s_mov_b32 s31, 9
    s_mov_b32 s32, 0x7fff0000
    s_mov_b32 s33, 0x7fff0000
    s_mov_b32 s38, s37
    s_add_u32 s39, s37, {18*1024}
.p2align 3
K5_p2:
    """)
    body = phase2_body()
    out = []
    seen = 0
    for l in body:
        out.append(l)
        if l == "s_add_u32 s33, s33, 0x400":
            seen += 1
            if seen == 1:
                out += ["s_min_u32 s32, s32, s38", "s_min_u32 s33, s33, s39", "s_mov_b32 s38, -1", "s_mov_b32 s39, -1"]
    for l in out: a(l)
    a(f"""
    s_waitcnt vmcnt(13)
    s_barrier
    s_cbranch_scc1 K5_p2
    """)
    for l in epi2(64)[:-2]: a(l)
    a("""
K5_end:
    s_endpgm
    """)
    return a.text(), kernel_desc(NAME, 256 + 128, 48, accum=256)
```

```python
from common import *
NAME = "k6_comb_kernel"
NWG = 576
LAUNCH = f"; @launch kernel={NAME} grid=({NWG},1,1) block=(256,1,1) lds=0"
P, X1, GB, A, U = 32, 28, 20, 12, 4
def gen(nsplit=16):
    a = Asm()
    a(kernel_head(NAME))
    a(f"""
    s_cmp_ge_u32 s2, {NWG}
    s_cbranch_scc1 K6_end
    s_load_dwordx2 s[8:9], s[0:1], {ARG['ws']}
    s_load_dwordx2 s[20:21], s[0:1], {ARG['out']}
    s_mov_b32 s10, {WS_SIZE:#x}
    s_mov_b32 s11, 0x20000
    s_mov_b32 s18, 0xffff0000
    v_lshlrev_b32 v1, 4, v0
    s_lshl_b32 s4, s2, 12
    s_add_u32 s5, s4, {WS_PART:#x}
    s_add_u32 s6, s4, {WS_X1:#x}
    s_mov_b32 s7, {XBYTES}
    v_lshrrev_b32 v2, 6, v0
    v_lshl_add_u32 v2, s2, 2, v2
    s_mov_b32 s12, {(1<<32)//18+1}
    v_mul_hi_u32 v3, v2, s12              ; rt16
    v_mul_u32_u24 v96, 18, v3
    v_sub_u32 v2, v2, v96                 ; P
    v_bfe_u32 v96, v0, 4, 2               ; g
    v_lshl_add_u32 v2, v2, 2, v96
    v_lshlrev_b32 v97, 5, v2
    s_waitcnt lgkmcnt(0)
    """)
    for j in range(nsplit):
        a(f"buffer_load_dwordx4 {vr(P+4*j)}, v1, s[8:11], s5 offen")
        if j < nsplit - 1: a("s_add_u32 s5, s5, s7")
    a(f"""
    buffer_load_dwordx4 {vr(X1)}, v1, s[8:11], s6 offen
    s_movk_i32 s6, {WS_MOD + 5*2304}
    buffer_load_dwordx4 {vr(GB)}, v97, s[8:11], s6 offen
    buffer_load_dwordx4 {vr(GB+4)}, v97, s[8:11], s6 offen offset:16
    v_and_b32 v96, 15, v0
    v_lshl_add_u32 v3, v3, 4, v96         ; row
    v_mul_u32_u24 v3, 1152, v3
    v_lshl_add_u32 v3, v2, 4, v3
    """)
    for i in range(8): a(f"v_mov_b32 v{A+i}, 0")
    a(f"""
    s_mov_b32 s16, 0
    s_waitcnt vmcnt(0)
K6_loop:
    s_set_gpr_idx_on s16, gpr_idx(SRC1)
    """)
    for j in range(4):
        a(f"v_lshlrev_b32 v{U+2*j}, 16, v{P+j}\nv_and_b32 v{U+2*j+1}, s18, v{P+j}")
    a(f"""
    s_set_gpr_idx_off
    s_add_u32 s16, s16, 4
    s_cmp_lt_u32 s16, {4*nsplit}
    """)
    for j in range(4):
        a(f"v_pk_add_f32 {vr(A+2*j,2)}, {vr(A+2*j,2)}, {vr(U+2*j,2)}")
    a("s_cbranch_scc1 K6_loop")
    for j in range(4):
        a(f"v_lshlrev_b32 v{U+2*j}, 16, v{X1+j}\nv_and_b32 v{U+2*j+1}, s18, v{X1+j}")
    for j in range(4):
        a(f"v_pk_fma_f32 {vr(A+2*j,2)}, {vr(A+2*j,2)}, {vr(GB+2*j,2)}, {vr(U+2*j,2)}")
    for j in range(4):
        a(f"v_cvt_pk_bf16_f32 v{U+j}, v{A+2*j}, v{A+2*j+1}")
    a(f"""
    global_store_dwordx4 v3, {vr(U)}, s[20:21]
K6_end:
    s_endpgm
    """)
    return a.text(), kernel_desc(NAME, 98, 32)
```

```python
import sys, importlib
import common, k1, k2, k3, k4, k5, k6, hazard
HEAD = open('adaLN_cond__grouped_kv_mqa__glu_gated_reglu__prompt.s.ref').read().split('; Override launch')[0]
def build(mods):
    txt = HEAD
    for m in mods: txt += m.LAUNCH + "\n"
    txt += '.amdgcn_target "amdgcn-amd-amdhsa--gfx950"\n.text\n'
    descs = ""
    seen = set()
    for m in mods:
        if m.NAME in seen: continue
        seen.add(m.NAME)
        t, d = m.gen()
        for p in hazard.check(t):
            print("HAZARD in %s line %d -> %d need %d have %d:\n   %s\n   %s" % ((m.NAME,) + p), file=sys.stderr)
        txt += t; descs += d
    txt += '.section .rodata,"a"\n' + descs
    return txt
if __name__ == "__main__":
    out = sys.argv[1] if len(sys.argv) > 1 else 'adaLN_cond__grouped_kv_mqa__glu_gated_reglu__prompt.s'
    open(out, 'w').write(build([k1, k2, k3, k4, k5, k6]))
```

```python
S, D, H, DH, F = 2048, 576, 32, 18, 4608
WS_MOD  = 0x0
WS_KV   = 0x10000
WS_WQKV = 0x40000
WS_WO   = WS_WQKV + 20 * 36 * 1024
WS_ST   = 0x200000
WS_XN   = 0x300000
WS_Q    = 0x600000
WS_O    = 0x900000
WS_X1   = 0xC00000
WS_WP   = 0x1000000
WS_PART = 0x2000000
WS_SIZE = 0x10000000
XBYTES = S * D * 2
KV_TILE = 2368
KV_V = 1024
KV_K2 = 2240
KV_BYTES = 64 * KV_TILE
ARG = dict(x=0, wq=8, wk=16, wv=24, wo=32, bx=40, wg=48, wu=56, wd=64, c=72, wmod=80, out=88, dbg=96, ws=104)

WS_PROF = 0x8000000
PROF = False
class Asm:
    def __init__(self, kid=0, sv=None):
        self.lines = []
        self.kid = kid; self.sv = sv
    def prof_begin(self):
        if not PROF: return
        self(f"""
        s_memrealtime s[96:97]
        s_load_dwordx2 s[98:99], s[0:1], {ARG['ws']}
        v_lshrrev_b32 v{self.sv}, 6, v0
        s_mov_b32 s100, s2
        v_readfirstlane_b32 s101, v{self.sv}
        v_mov_b32 v{self.sv}, 0
        s_waitcnt lgkmcnt(0)
        v_writelane_b32 v{self.sv}, s96, 0
        s_memrealtime s[96:97]
        s_waitcnt lgkmcnt(0)
        v_writelane_b32 v{self.sv}, s96, 12
        """)
    def stamp(self, i):
        if not PROF: return
        self(f"""
        s_memrealtime s[96:97]
        s_waitcnt lgkmcnt(0)
        v_writelane_b32 v{self.sv}, s96, {i}
        """)
    def cstamp(self, i):
        if not PROF: return
        self(f"""
        s_memtime s[96:97]
        s_waitcnt lgkmcnt(0)
        v_writelane_b32 v{self.sv}, s96, {i}
        """)
    def end(self):
        if PROF:
            self(f"""
            s_waitcnt vmcnt(0)
            s_memrealtime s[96:97]
            s_lshl_b32 s100, s100, 4
            s_add_u32 s100, s100, s101
            s_lshl_b32 s100, s100, 6
            s_add_u32 s100, s100, {WS_PROF + self.kid * 0x100000}
            s_mov_b64 exec, 0xffff
            v_mbcnt_lo_u32_b32 v0, -1, 0
            v_lshl_add_u32 v0, v0, 2, s100
            s_waitcnt lgkmcnt(0)
            v_writelane_b32 v{self.sv}, s96, 15
            global_store_dword v0, v{self.sv}, s[98:99]
            """)
        self("s_endpgm")
    def __call__(self, s):
        for l in s.strip('\n').split('\n'):
            l = l.strip()
            if not l: continue
            if l.endswith(':') or l.startswith('.'):
                self.lines.append(l)
            else:
                self.lines.append('    ' + l)
    def text(self):
        return '\n'.join(self.lines) + '\n'

def kernel_head(name):
    return f""".globl {name}
.p2align 8
.type {name},@function
{name}:
"""

def kernel_desc(name, vgpr, sgpr, accum=None):
    if PROF: sgpr = 102
    if accum is None:
        accum = (vgpr + 3) // 4 * 4
    return f""".p2align 6
.amdhsa_kernel {name}
  .amdhsa_next_free_vgpr {vgpr}
  .amdhsa_next_free_sgpr {sgpr}
  .amdhsa_accum_offset {accum}
  .amdhsa_group_segment_fixed_size 0
  .amdhsa_kernarg_size 112
  .amdhsa_user_sgpr_count 2
  .amdhsa_user_sgpr_kernarg_segment_ptr 1
  .amdhsa_system_sgpr_workgroup_id_x 1
.end_amdhsa_kernel
"""

def vr(b, n=4): return f"v[{b}:{b+n-1}]"
def ar(b, n=4): return f"a[{b}:{b+n-1}]"
def sr(b, n=2): return f"s[{b}:{b+n-1}]"
def srd(a, d, base, nbytes):
    if d != base:
        a(f"s_mov_b32 s{d}, s{base}\ns_mov_b32 s{d+1}, s{base+1}")
    a(f"s_mov_b32 s{d+2}, {nbytes:#x}\ns_mov_b32 s{d+3}, 0x20000")
```

```python
from common import *
N_MOD, N_LN, N_PACK, N_WARM = 112, 128, 342, 16
NWG = N_MOD + N_LN + N_PACK + N_WARM
NAME = "k1_prep_kernel"
LAUNCH = f"; @launch kernel={NAME} grid=({NWG},1,1) block=(256,1,1) lds=2048"

PROF_VGPR = 100
def gen():
    a = Asm()
    a(kernel_head(NAME))
    a(f"""
    s_load_dwordx2 s[20:21], s[0:1], {ARG['ws']}
    s_mov_b32 s18, 0xffff0000
    s_cmp_ge_u32 s2, {N_MOD}
    s_cbranch_scc1 K1_not_mod
    """)
    C, W, A, U, T = 8, 44, 80, 88, 96
    a(f"""
    s_cmp_ge_u32 s2, 108
    s_cbranch_scc1 K1_end
    s_load_dwordx4 s[4:7], s[0:1], {ARG['c']}
    v_and_b32 v1, 3, v0
    v_lshrrev_b32 v2, 2, v0
    v_lshlrev_b32 v3, 1, v2
    v_mul_u32_u24 v4, 6912, v2
    v_lshl_add_u32 v4, v1, 4, v4
    s_lshl_b32 s10, s2, 6
    s_mov_b32 s14, {576*6912}
    s_mov_b32 s15, 0x20000
    s_mov_b32 s16, {64*6912}
    s_waitcnt lgkmcnt(0)
    s_mov_b32 s12, s6
    s_mov_b32 s13, s7
    """)
    for i in range(9):
        a(f"buffer_load_dwordx4 {vr(W+4*i)}, v4, s[12:15], s10 offen")
        if i < 8: a("s_add_u32 s10, s10, s16")
        a(f"global_load_ushort v{C+4*i}, v3, s[4:5] offset:{128*i}")
    for i in range(8): a(f"v_mov_b32 v{A+i}, 0")
    a(f"""
    v_lshrrev_b32 v5, 4, v0
    v_lshlrev_b32 v5, 7, v5
    v_lshl_add_u32 v5, v1, 5, v5
    s_mov_b32 s11, 0
    s_waitcnt vmcnt(0)
    ; STAMP 1
K1_mod_loop:
    s_set_gpr_idx_on s11, gpr_idx(SRC1)
    v_lshlrev_b32 v{T}, 16, v{C}
    """)
    for j in range(4):
        a(f"v_lshlrev_b32 v{U+2*j}, 16, v{W+j}\nv_and_b32 v{U+2*j+1}, s18, v{W+j}")
    a(f"""
    s_set_gpr_idx_off
    v_mul_f32 v{T+2}, 0xbfb8aa3b, v{T}
    v_exp_f32 v{T+2}, v{T+2}
    s_add_u32 s11, s11, 4
    v_add_f32 v{T+2}, 1.0, v{T+2}
    v_rcp_f32 v{T+2}, v{T+2}
    s_cmp_lt_u32 s11, 36
    v_mul_f32 v{T+2}, v{T+2}, v{T}
    v_cvt_pk_bf16_f32 v{T+2}, v{T+2}, v{T+2}
    v_and_b32 v{T+2}, s18, v{T+2}
    """)
    for j in range(4):
        a(f"v_pk_fma_f32 {vr(A+2*j,2)}, {vr(U+2*j,2)}, {vr(T+2,2)}, {vr(A+2*j,2)} op_sel_hi:[1,0,1]")
    a("s_cbranch_scc1 K1_mod_loop")
    for rot in (4, 8):
        for j in range(8):
            a(f"v_add_f32_dpp v{A+j}, v{A+j}, v{A+j} row_ror:{rot} row_mask:0xf bank_mask:0xf")
    a(f"""
    ds_write_b128 v5, {vr(A)}
    ds_write_b128 v5, {vr(A+4)} offset:16
    v_and_b32 v6, 31, v0
    v_bfe_u32 v7, v0, 5, 1
    v_lshlrev_b32 v7, 10, v7
    v_lshl_add_u32 v7, v6, 2, v7
    s_mov_b32 s17, 0
    s_sub_u32 s3, s2, 18
    s_cmp_lt_u32 s3, 18
    s_cselect_b32 s17, 1.0, s17
    s_sub_u32 s3, s2, 72
    s_cmp_lt_u32 s3, 18
    s_cselect_b32 s17, 1.0, s17
    s_lshl_b32 s3, s2, 7
    v_lshl_add_u32 v6, v6, 2, s3
    s_waitcnt lgkmcnt(0)
    s_barrier
    ds_read2_b32 v[8:9], v7 offset0:0 offset1:32
    ds_read2_b32 v[10:11], v7 offset0:64 offset1:96
    ds_read2_b32 v[12:13], v7 offset0:128 offset1:160
    ds_read2_b32 v[14:15], v7 offset0:192 offset1:224
    v_cmp_gt_u32 vcc, 32, v0
    s_waitcnt lgkmcnt(0)
    v_pk_add_f32 v[8:9], v[8:9], v[10:11]
    v_pk_add_f32 v[12:13], v[12:13], v[14:15]
    v_pk_add_f32 v[8:9], v[8:9], v[12:13]
    v_add_f32 v8, v8, v9
    v_mov_b32 v9, v8
    s_nop 1
    v_permlane32_swap_b32 v8, v9
    v_add_f32 v8, v8, v9
    v_cvt_pk_bf16_f32 v8, v8, v8
    v_and_b32 v8, s18, v8
    v_add_f32 v8, s17, v8
    v_cvt_pk_bf16_f32 v8, v8, v8
    v_and_b32 v8, s18, v8
    s_and_saveexec_b64 s[22:23], vcc
    s_cbranch_execz K1_end
    global_store_dword v6, v8, s[20:21]
    s_endpgm
K1_not_mod:
    s_cmp_ge_u32 s2, {N_MOD+N_LN}
    s_cbranch_scc1 K1_pack
    """)
    X, Y = 8, 28
    a(f"""
    s_load_dwordx2 s[4:5], s[0:1], {ARG['x']}
    s_sub_u32 s3, s2, {N_MOD}
    s_and_b32 s6, s3, 7
    s_lshl_b32 s6, s6, 4
    s_lshr_b32 s3, s3, 3
    s_add_u32 s3, s3, s6
    v_lshrrev_b32 v1, 4, v0
    v_lshl_add_u32 v1, s3, 4, v1          ; row
    v_and_b32 v2, 15, v0                  ; c
    v_mul_u32_u24 v3, 1152, v1
    v_lshl_add_u32 v3, v2, 3, v3
    v_mov_b32 v7, 0x3f803f80
    v_mov_b32 v4, 0
    s_waitcnt lgkmcnt(0)
    """)
    for i in range(9):
        a(f"global_load_dwordx2 {vr(X+2*i,2)}, v3, s[4:5] offset:{128*i}")
    a(f"""
    v_lshrrev_b32 v5, 5, v1
    v_mul_u32_u24 v5, 36864, v5
    v_and_b32 v6, 31, v1
    v_lshl_add_u32 v5, v6, 4, v5
    v_lshrrev_b32 v6, 1, v2
    v_lshl_add_u32 v5, v6, 9, v5
    v_and_b32 v6, 1, v2
    v_lshl_add_u32 v5, v6, 3, v5
    v_add_u32 v5, {WS_XN:#x}, v5
    s_movk_i32 s16, 0x1000
    s_waitcnt vmcnt(0)
    ; STAMP 1
    """)
    for i in range(18):
        a(f"v_dot2c_f32_bf16 v4, v{X+i}, v7")
    for i in range(18):
        a(f"v_lshlrev_b32 v{Y+2*i}, 16, v{X+i}\nv_and_b32 v{Y+2*i+1}, s18, v{X+i}")
    for rot in (1, 2, 4, 8):
        a(f"v_add_f32_dpp v4, v4, v4 row_ror:{rot} row_mask:0xf bank_mask:0xf\ns_nop 1")
    a(f"v_mul_f32 v4, {-1.0/576!r}, v4\nv_mov_b32 v64, 0\nv_mov_b32 v65, 0")
    for i in range(18):
        a(f"v_pk_add_f32 {vr(Y+2*i,2)}, {vr(Y+2*i,2)}, v[4:5] op_sel_hi:[1,0]")
    for i in range(18):
        a(f"v_pk_fma_f32 v[64:65], {vr(Y+2*i,2)}, {vr(Y+2*i,2)}, v[64:65]")
    a("v_add_f32 v64, v64, v65\ns_nop 1")
    for rot in (1, 2, 4, 8):
        a(f"v_add_f32_dpp v64, v64, v64 row_ror:{rot} row_mask:0xf bank_mask:0xf\ns_nop 1")
    a(f"""
    v_mov_b32 v65, 0x3727c5ac
    v_fmac_f32 v65, {1.0/576!r}, v64
    v_rsq_f32 v64, v65
    s_nop 0
    """)
    for i in range(9):
        a(f"v_pk_mul_f32 {vr(Y+4*i,2)}, {vr(Y+4*i,2)}, v[64:65] op_sel_hi:[1,0]")
        a(f"v_pk_mul_f32 {vr(Y+4*i+2,2)}, {vr(Y+4*i+2,2)}, v[64:65] op_sel_hi:[1,0]")
        a(f"v_cvt_pk_bf16_f32 v{X+2*i}, v{Y+4*i}, v{Y+4*i+1}")
        a(f"v_cvt_pk_bf16_f32 v{X+2*i+1}, v{Y+4*i+2}, v{Y+4*i+3}")
        a(f"global_store_dwordx2 v5, {vr(X+2*i,2)}, s[20:21]")
        if i < 8: a("v_add_u32 v5, s16, v5")
    a("s_endpgm")
    a(f"""
K1_pack:
    s_cmp_ge_u32 s2, {N_MOD+N_LN+N_PACK}
    s_cbranch_scc1 K1_warm
    s_load_dwordx8 s[4:11], s[0:1], {ARG['wq']}
    v_lshrrev_b32 v1, 6, v0
    v_and_b32 v2, 63, v0
    v_readfirstlane_b32 s3, v1
    s_sub_u32 s12, s2, {N_MOD+N_LN}
    s_lshl_b32 s12, s12, 2
    v_and_b32 v3, 31, v2                 ; m
    v_lshrrev_b32 v4, 5, v2              ; h
    s_add_u32 s12, s12, s3
    s_mul_hi_u32 s13, s12, {(1<<32)//36+1}   ; tile
    s_mul_i32 s14, s13, 36
    s_sub_u32 s14, s12, s14              ; s
    v_and_b32 v5, 0x13, v3
    v_bfe_u32 v6, v3, 2, 1
    v_lshl_add_u32 v5, v6, 3, v5
    v_bfe_u32 v6, v3, 3, 1
    v_lshl_add_u32 v5, v6, 2, v5
    s_waitcnt lgkmcnt(0)
    s_mov_b32 s24, s4
    s_mov_b32 s25, s5
    s_mov_b32 s26, {576*1152}
    s_mov_b32 s27, 0x20000
    s_movk_i32 s28, 1152                 ; stride
    s_lshl_b32 s29, s14, 4
    s_mov_b32 s30, 8                     ; h multiplier
    s_movk_i32 s31, 2304                 ; A
    s_lshl_b32 s15, s13, 6
    s_mov_b32 s16, 32
    s_cmp_lt_u32 s13, 18
    s_cbranch_scc1 K1_pack_go
    s_cmp_ge_u32 s13, 20
    s_cbranch_scc1 K1_pack_wo
    s_cmp_eq_u32 s13, 18
    s_cselect_b32 s24, s6, s8
    s_cselect_b32 s25, s7, s9
    s_movk_i32 s26, {576*36}
    s_mov_b32 s28, 36
    s_movk_i32 s31, 72
    s_mov_b32 s15, 0
    s_mov_b32 s16, 18
    s_branch K1_pack_go
K1_pack_wo:
    s_mov_b32 s24, s10
    s_mov_b32 s25, s11
    s_sub_u32 s15, s15, {20*64}
    s_mul_i32 s29, s14, 18
    s_cmp_lt_u32 s14, 32
    s_cbranch_scc1 K1_pack_go
    s_mul_i32 s29, s14, 144
    s_sub_u32 s29, s29, {144*32-16}
    s_movk_i32 s30, 72
    s_movk_i32 s31, {18*1152}
K1_pack_go:
    v_mov_b32 v7, s29
    v_mad_u32_u24 v7, v4, s30, v7        ; row
    v_mul_u32_u24 v7, s28, v7
    v_lshl_add_u32 v7, v5, 1, v7
    v_cmp_gt_u32 vcc, s16, v5
    v_mov_b32 v8, 0x7fffffff
    s_add_u32 s17, s15, s28
    v_cndmask_b32 v7, v8, v7, vcc
    """)
    for jj in range(4):
        a(f"buffer_load_ushort v{10+2*jj}, v7, s[24:27], s15 offen")
        a(f"buffer_load_ushort v{11+2*jj}, v7, s[24:27], s17 offen")
        if jj < 3: a("s_add_u32 s15, s15, s31\ns_add_u32 s17, s17, s31")
    a(f"""
    s_lshl_b32 s12, s12, 10
    s_add_u32 s12, s12, {WS_WQKV:#x}
    v_lshl_add_u32 v9, v2, 4, s12
    s_waitcnt vmcnt(0)
    ; STAMP 1
    v_lshl_or_b32 v20, v11, 16, v10
    v_lshl_or_b32 v21, v13, 16, v12
    v_lshl_or_b32 v22, v15, 16, v14
    v_lshl_or_b32 v23, v17, 16, v16
    global_store_dwordx4 v9, v[20:23], s[20:21]
    s_endpgm
K1_warm:
    s_cmp_ge_u32 s2, {NWG}
    s_cbranch_scc1 K1_end
    s_load_dwordx4 s[4:7], s[0:1], {ARG['wg']}
    s_load_dwordx2 s[8:9], s[0:1], {ARG['wd']}
    s_load_dwordx2 s[24:25], s[0:1], {ARG['out']}
    v_lshlrev_b32 v1, 18, v0
    s_mov_b32 s22, 0x4400000
    s_mov_b32 s23, 0x20000
    s_mov_b32 s10, {576*4608*2}
    s_mov_b32 s11, 0x20000
    s_mov_b32 s14, {576*4608*2}
    s_mov_b32 s15, 0x20000
    s_mov_b32 s18, {576*4608*2}
    s_mov_b32 s19, 0x20000
    s_mov_b32 s26, {XBYTES}
    s_mov_b32 s27, 0x20000
    s_mov_b32 s3, 0x4000000
    s_getpc_b64 s[28:29]
K1_pc:
    s_add_u32 s28, s28, k2_qkv_kernel-K1_pc
    s_addc_u32 s29, s29, 0
    v_lshlrev_b32 v2, 7, v0
    v_min_u32 v2, CODE_END-k2_qkv_kernel-4, v2
    s_waitcnt lgkmcnt(0)
    s_mov_b32 s12, s4
    s_mov_b32 s13, s5
    s_mov_b32 s16, s6
    s_mov_b32 s17, s7
    buffer_load_dword v4, v1, s[8:11], 0 offen
    buffer_load_dword v5, v1, s[12:15], 0 offen
    buffer_load_dword v6, v1, s[16:19], 0 offen
    buffer_load_dword v7, v1, s[20:23], 0 offen
    buffer_load_dword v8, v1, s[20:23], s3 offen
    buffer_load_dword v9, v1, s[24:27], 0 offen
    global_load_dword v10, v2, s[28:29]
    s_waitcnt vmcnt(0)
K1_end:
    s_endpgm
    """)
    return a.text(), kernel_desc(NAME, 101, 32)
```

```python
from common import *
import math
NAME = "k2_qkv_kernel"
NWG = 256
LDS_AB = 36 * 1024
LDS = LDS_AB + 3 * 2048
LAUNCH = f"; @launch kernel={NAME} grid=({NWG},1,1) block=(512,1,1) lds={LDS}"
QSCALE = 18 ** -0.5 * math.log2(math.e)
PROF_VGPR = 20

W, X, ACC, AB, U = 112, 76, 60, 44, 36

def wload(s, base_s):
    L = [f"buffer_load_dwordx4 {vr(W+4*s)}, v1, s[8:11], s{base_s} offen offset:{(s%4)*1024}"]
    if s % 4 == 3 and s < 35: L.append(f"s_add_u32 s{base_s}, s{base_s}, 0x1000")
    return L

def mfma_loop(a, base_s, D, swapped=True, midbar=False):
    R = 9
    def first_reads(lo, hi):
        for s in range(lo, min(lo + R, hi)):
            a(f"ds_read_b128 {vr(X+4*(s%R))}, v1 offset:{s*1024}")
    segs = [(0, 18), (18, 36)] if midbar else [(0, 36)]
    issued = D
    for (lo, hi) in segs:
        if midbar: a("s_barrier")
        first_reads(lo, hi)
        for s in range(lo, hi):
            r = X + 4 * (s % R)
            out = min(R - 1, hi - 1 - s)
            a(f"s_waitcnt vmcnt({issued - 1 - s}) lgkmcnt({out})")
            c = "0" if s == 0 else vr(ACC, 16)
            if swapped:
                a(f"v_mfma_f32_32x32x16_bf16 {vr(ACC,16)}, {vr(W+4*s)}, {vr(r)}, {c}")
            else:
                a(f"v_mfma_f32_32x32x16_bf16 {vr(ACC,16)}, {vr(r)}, {vr(W+4*s)}, {c}")
            if s + R < hi:
                a(f"ds_read_b128 {vr(r)}, v1 offset:{(s+R)*1024}")
            if issued < 36:
                for l in wload(issued, base_s): a(l)
                issued += 1

DEPTH = 20
def gen():
    a = Asm()
    a(kernel_head(NAME))
    a(f"""
    s_cmp_ge_u32 s2, {NWG}
    s_cbranch_scc1 K2_end
    s_load_dwordx2 s[8:9], s[0:1], {ARG['ws']}
    v_lshrrev_b32 v2, 6, v0
    v_and_b32 v3, 63, v0
    v_readfirstlane_b32 s3, v2            ; wave
    v_lshlrev_b32 v1, 4, v3               ; lane*16
    s_mov_b32 s10, {WS_SIZE:#x}
    s_mov_b32 s11, 0x20000
    s_and_b32 s4, s2, 7
    s_lshl_b32 s4, s4, 3
    s_lshr_b32 s5, s2, 5
    s_add_u32 s4, s4, s5                  ; rt
    v_lshrrev_b32 v4, 5, v3               ; h
    s_cmp_ge_u32 s3, 3
    s_cbranch_scc1 K2_gemm
    s_mov_b32 s18, 0xffff0000
    s_lshl_b32 s6, s3, 11
    s_add_u32 s6, s6, {LDS_AB}
    s_mov_b32 m0, s6
    s_mul_i32 s7, s3, 384
    v_add_u32 v5, {1152 - 24*16}, v1
    v_cmp_gt_u32 vcc, 24, v3
    s_mul_i32 s13, s3, 6144
    s_mul_i32 s12, s4, 36864
    v_cndmask_b32 v5, v5, v1, vcc
    s_add_u32 s12, s12, s13
    s_add_u32 s12, s12, {WS_XN:#x}
    s_add_u32 s14, s7, {2304 - 1024}
    s_waitcnt lgkmcnt(0)
    buffer_load_dwordx4 v5, s[8:11], s7 offen lds
    buffer_load_dwordx4 v5, s[8:11], s14 offen offset:1024 lds
    """)
    XM = 112
    for i in range(12):
        off = (i % 6) * 1024
        if i == 4 or i == 10: a("s_add_u32 s12, s12, 0x1000")
        if i == 6: a(f"s_add_u32 s12, s12, {18*1024 - 0x1000}")
        a(f"buffer_load_dwordx4 {vr(XM+4*i)}, v1, s[8:11], s12 offen offset:{off % 4096}")
    a(f"""
    s_barrier
    v_lshl_add_u32 v5, v4, 5, s6
    v_add_u32 v6, s13, v1
    s_mov_b32 s16, 0
    s_mov_b32 s17, 24
    ; STAMP 1
    s_waitcnt vmcnt(6)
    ; STAMP 2
    ds_read_b128 {vr(AB)}, v5
    ds_read_b128 {vr(AB+4)}, v5 offset:16
    ds_read_b128 {vr(AB+8)}, v5 offset:1024
    ds_read_b128 {vr(AB+12)}, v5 offset:1040
K2_mod_loop:
    s_set_gpr_idx_on s16, gpr_idx(SRC1)
    """)
    for j in range(4):
        a(f"v_lshlrev_b32 v{U+2*j}, 16, v{XM+j}\nv_and_b32 v{U+2*j+1}, s18, v{XM+j}")
    a(f"""
    s_set_gpr_idx_off
    v_add_u32 v5, 64, v5
    s_add_u32 s16, s16, 4
    s_cmp_lt_u32 s16, s17
    s_waitcnt lgkmcnt(0)
    """)
    for j in range(4):
        a(f"v_pk_fma_f32 {vr(U+2*j,2)}, {vr(U+2*j,2)}, {vr(AB+8+2*j,2)}, {vr(AB+2*j,2)}")
    a(f"""
    ds_read_b128 {vr(AB)}, v5
    ds_read_b128 {vr(AB+4)}, v5 offset:16
    ds_read_b128 {vr(AB+8)}, v5 offset:1024
    ds_read_b128 {vr(AB+12)}, v5 offset:1040
    """)
    for j in range(4):
        a(f"v_cvt_pk_bf16_f32 v{ACC+j}, v{U+2*j}, v{U+2*j+1}")
    a(f"""
    ds_write_b128 v6, {vr(ACC)}
    v_add_u32 v6, 0x400, v6
    s_cbranch_scc1 K2_mod_loop
    s_waitcnt vmcnt(0) lgkmcnt(0)
    s_barrier
    ; STAMP 3
    v_add_u32 v6, {12*1024}, v6
    s_mov_b32 s17, 48
    s_cmp_lt_u32 s16, 48
    s_cbranch_scc1 K2_mod_loop
    s_endpgm
K2_gemm:
    s_bfe_u32 s5, s2, 0x20003
    s_mul_i32 s5, s5, 5
    s_add_u32 s5, s5, s3
    s_sub_u32 s5, s5, 3                   ; ct
    s_mul_i32 s14, s5, 36864
    s_add_u32 s14, s14, {WS_WQKV:#x}
    s_waitcnt lgkmcnt(0)
    s_barrier
    """)
    for s in range(DEPTH):
        for l in wload(s, 14): a(l)
    a(f"""
    ; STAMP 1
    s_cmp_eq_u32 s5, 19
    s_cbranch_scc1 K2_v
    """)
    mfma_loop(a, 14, DEPTH, True, True)
    a(f"""
    ; STAMP 4
    v_and_b32 v7, 31, v3
    s_cmp_eq_u32 s5, 18
    s_cbranch_scc1 K2_k
    ; ---- q epilogue
    s_lshl_b32 s6, s4, 5
    v_add_u32 v7, s6, v7                  ; row
    v_mul_u32_u24 v7, 1152, v7
    v_lshl_add_u32 v7, v4, 4, v7
    s_lshl_b32 s6, s5, 6
    s_add_u32 s6, s6, {WS_Q:#x}
    s_mov_b32 s20, {QSCALE!r}
    s_nop 3
    """)
    for i in range(16):
        a(f"v_mul_f32 v{ACC+i}, s20, v{ACC+i}")
    for i in range(8):
        a(f"v_cvt_pk_bf16_f32 v{U+i}, v{ACC+2*i}, v{ACC+2*i+1}")
    a(f"""
    buffer_store_dwordx4 {vr(U)}, v7, s[8:11], s6 offen
    buffer_store_dwordx4 {vr(U+4)}, v7, s[8:11], s6 offen offset:32
    s_endpgm
K2_k:
    s_mul_i32 s6, s4, {KV_TILE}
    s_add_u32 s6, s6, {WS_KV:#x}
    v_lshlrev_b32 v7, 2, v3
    v_cmp_gt_u32 vcc, 32, v3
    v_mov_b32 v8, 0x7fffffff
    s_nop 4
    v_cndmask_b32 v7, v8, v7, vcc
    """)
    for i in range(5):
        a(f"v_cvt_pk_bf16_f32 v{U+i}, v{ACC+2*i}, v{ACC+2*i+1}")
    a(f"""
    buffer_store_dwordx4 {vr(U)}, v1, s[8:11], s6 offen
    buffer_store_dword v{U+4}, v7, s[8:11], s6 offen offset:{KV_K2}
    s_endpgm
K2_v:
    """)
    mfma_loop(a, 14, DEPTH, False, True)
    a(f"""
    v_and_b32 v7, 31, v3                  ; n = d slot
    s_mul_i32 s6, s4, {KV_TILE}
    s_add_u32 s6, s6, {WS_KV:#x}
    v_mul_u32_u24 v9, 19, v4
    v_add_lshl_u32 v9, v9, v7, 4
    v_cmp_gt_u32 vcc, 19, v7
    v_mov_b32 v8, 0x7fffffff
    v_cmp_eq_u32 s[20:21], 18, v7
    v_mov_b32 v10, 0x3f803f80
    v_cndmask_b32 v9, v8, v9, vcc
    s_nop 1
    """)
    for i in range(8):
        a(f"v_cvt_pk_bf16_f32 v{U+i}, v{ACC+2*i}, v{ACC+2*i+1}")
    for i in range(8):
        a(f"v_cndmask_b32 v{U+i}, v{U+i}, v10, s[20:21]")
    a(f"""
    buffer_store_dwordx4 {vr(U)}, v9, s[8:11], s6 offen offset:{KV_V}
    buffer_store_dwordx4 {vr(U+4)}, v9, s[8:11], s6 offen offset:{KV_V+608}
K2_end:
    s_endpgm
    """)
    return a.text(), kernel_desc(NAME, 256, 32)
```

```python
from common import *
NAME = "k3_attn_kernel"
NWG = 256
LDS = KV_BYTES + 8 * 1024
LAUNCH = f"; @launch kernel={NAME} grid=({NWG},1,1) block=(512,1,1) lds={LDS}"
Q1, Q2 = 8, 12
SB = (16, 32)
P, O = 48, 56
KS = (72, 80)
VS = (88, 96)
R, T = 104, 112
RB = 132
WBYTES = 576 * 4608 * 2
WPBYTES = 16 * 972 * 1024

def rdK(t):
    k = KS[t % 2]; o = t * KV_TILE
    return [f"ds_read_b128 {vr(k)}, v1 offset:{o}", f"ds_read_b32 v{k+4}, v2 offset:{o+KV_K2}"]
def rdV(t):
    v = VS[t % 2]; o = t * KV_TILE + KV_V
    return [f"ds_read_b128 {vr(v)}, v3 offset:{o}", f"ds_read_b128 {vr(v+4)}, v3 offset:{o+608}"]
def M1(t): return f"v_mfma_f32_32x32x16_bf16 {vr(SB[t%2],16)}, {vr(KS[t%2])}, {vr(Q1)}, 0"
def M2(t): return f"v_mfma_f32_32x32x8_bf16 {vr(SB[t%2],16)}, {vr(KS[t%2]+4,2)}, {vr(Q2,2)}, {vr(SB[t%2],16)}"
def PV(t, b): return f"v_mfma_f32_32x32x16_bf16 {vr(O,16)}, {vr(VS[t%2]+4*b)}, {vr(P+4*b)}, {vr(O,16)}"

def step(t, extra=()):
    s = SB[t % 2]
    e = [f"v_exp_f32 v{s+i}, v{s+i}" for i in range(16)]
    c = [f"v_cvt_pk_bf16_f32 v{P+i}, v{s+2*i}, v{s+2*i+1}" for i in range(8)]
    L = ["s_waitcnt lgkmcnt(0)", M1(t + 1)] + e[0:4] + [PV(t - 1, 1)] + list(extra) + rdK(t + 2) + rdV(t + 1)
    L += e[4:8] + c[0:2] + [M2(t + 1)] + c[2:4] + e[8:12] + [PV(t, 0)] + e[12:16] + c[4:8]
    return L

class _N: n = 0
prep_setup = _N
STREAM = 972 * 1024
def magic(d): return (1 << 32) // d + 1
def prep_init(a):
    a(f"""
    s_lshl_b32 s33, s4, 2                       ; T0
    v_bfe_u32 v104, v0, 2, 2
    v_lshrrev_b32 v105, 4, v0
    s_cmp_ge_u32 s33, 5184
    s_cbranch_scc1 K3_pi_down
    s_cmp_ge_u32 s33, 2592
    s_cselect_b32 s16, s26, s24
    s_cselect_b32 s17, s27, s25
    s_cselect_b32 s35, 2592, 0
    s_cselect_b32 s37, 2048, 0
    s_sub_u32 s33, s33, s35
    s_mul_hi_u32 s34, s33, {magic(144)}         ; s
    s_mul_i32 s35, s34, 144
    s_sub_u32 s33, s33, s35                     ; Pg0
    s_lshl_b32 s35, s34, 12
    s_add_u32 s37, s37, s35                     ; + s*4096
    s_mul_i32 s34, s34, {32*9216}
    s_lshl_b32 s35, s33, 6
    s_add_u32 s34, s34, s35
    s_mov_b32 s36, {4*9216}
    v_and_b32 v4, 15, v0
    v_lshlrev_b32 v4, 4, v4
    v_mul_u32_u24 v106, 9216, v105
    v_add_u32 v4, v4, v106
    v_add_u32 v105, s33, v105                   ; Pg
    s_mov_b32 s35, {magic(9)}
    v_mul_hi_u32 v106, v105, s35                ; j
    v_mul_u32_u24 v107, 9, v106
    v_sub_u32 v105, v105, v107                  ; P
    s_mov_b32 s35, {STREAM}
    v_mul_lo_u32 v106, v106, s35
    v_mul_u32_u24 v105, {72*1024}, v105
    s_branch K3_pi_end
K3_pi_down:
    s_sub_u32 s33, s33, 5184
    s_mov_b32 s16, s28
    s_mov_b32 s17, s29
    s_mov_b32 s34, 0
    s_mov_b32 s37, {648*1024}
    s_movk_i32 s36, {4*1152}
    s_mov_b32 s35, {magic(18)}
    v_add_u32 v104, s33, v104                   ; T (source)
    v_mul_hi_u32 v106, v104, s35                ; kb
    v_mul_u32_u24 v107, 18, v106
    v_sub_u32 v104, v104, v107                  ; P'
    v_lshl_add_u32 v106, v106, 5, v105
    v_mul_u32_u24 v106, 1152, v106
    v_lshl_add_u32 v106, v104, 6, v106
    v_and_b32 v4, 3, v0
    v_lshl_add_u32 v4, v4, 4, v106
    v_add_u32 v105, s33, v105                   ; T (dest)
    v_mul_hi_u32 v106, v105, s35                ; kb
    v_mul_u32_u24 v107, 18, v106
    v_sub_u32 v105, v105, v107                  ; P'
    s_mov_b32 s35, {magic(9)}
    v_mul_hi_u32 v107, v106, s35                ; j
    v_mul_u32_u24 v104, 9, v107
    v_sub_u32 v104, v106, v104                  ; s'
    s_mov_b32 s35, {STREAM}
    v_mul_lo_u32 v106, v107, s35
    v_lshl_add_u32 v106, v104, 11, v106
    v_mul_u32_u24 v105, {18*1024}, v105
K3_pi_end:
    v_and_b32 v120, 15, v0
    v_lshlrev_b32 v120, 4, v120
    v_add3_u32 v120, v120, v105, v106
    """)
PREP_LOADS = [f"buffer_load_dwordx4 {vr(R)}, v4, s[16:19], s34 offen", "s_add_u32 s34, s34, s36",
              f"buffer_load_dwordx4 {vr(R+4)}, v4, s[16:19], s34 offen", "s_add_u32 s34, s34, s36"]

PROF_VGPR = 130
def gen():
    a = Asm()
    a(kernel_head(NAME))
    a(f"""
    s_cmp_ge_u32 s2, {NWG}
    s_cbranch_scc1 K3_end
    s_load_dwordx2 s[8:9], s[0:1], {ARG['ws']}
    s_load_dwordx4 s[24:27], s[0:1], {ARG['wg']}
    s_load_dwordx2 s[28:29], s[0:1], {ARG['wd']}
    v_lshrrev_b32 v2, 6, v0
    v_and_b32 v0, 63, v0                  ; lane
    v_readfirstlane_b32 s3, v2            ; wave
    v_lshlrev_b32 v7, 4, v0               ; lane*16
    s_mov_b32 s10, {WS_SIZE:#x}
    s_mov_b32 s11, 0x20000
    s_mov_b32 s14, {KV_BYTES}
    s_mov_b32 s15, 0x20000
    s_mov_b32 s18, {WBYTES}
    s_mov_b32 s19, 0x20000
    s_mov_b32 s22, {WPBYTES}
    s_mov_b32 s23, 0x20000
    s_and_b32 s4, s2, 7
    s_lshl_b32 s4, s4, 8
    s_and_b32 s5, s2, 0xf8
    s_add_u32 s4, s4, s5
    s_add_u32 s4, s4, s3
    s_lshl_b32 s5, s3, 10
    v_lshrrev_b32 v122, 5, v0             ; h
    v_and_b32 v123, 31, v0                ; m / head
    v_mul_u32_u24 v5, 36, v123
    v_lshl_add_u32 v6, v122, 4, v5        ; q offset
    v_lshl_add_u32 v5, v122, 30, v5
    s_mul_i32 s6, s4, 1152
    s_add_u32 s6, s6, {WS_Q:#x}
    s_waitcnt lgkmcnt(0)
    s_add_u32 s12, s8, {WS_KV:#x}
    s_addc_u32 s13, s9, 0
    s_add_u32 s20, s8, {WS_WP:#x}
    s_addc_u32 s21, s9, 0
    buffer_load_dwordx4 {vr(Q1)}, v6, s[8:11], s6 offen
    buffer_load_dword v{Q2}, v5, s[8:11], s6 offen offset:32
    s_mov_b32 m0, s5
    s_nop 0
    """)
    for r in range(3):
        a("buffer_load_dwordx4 v7, s[12:15], m0 offen lds")
        a("s_add_u32 m0, m0, 0x2000\ns_nop 0")
    prep_init(a)
    a(f"""
    s_add_u32 s7, s5, {KV_BYTES}
    v_add_u32 v5, s7, v7
    ; tr read addr: lane (G,i): row i/4 (256B rows), 64B tile G, 8B chunk 2*(i%4)+e
    v_bfe_u32 v6, v0, 2, 2
    v_lshlrev_b32 v6, 8, v6
    v_lshrrev_b32 v121, 4, v0
    v_lshl_add_u32 v6, v121, 6, v6
    v_and_b32 v121, 3, v0
    v_lshl_add_u32 v6, v121, 4, v6
    v_add_u32 v6, s7, v6
    s_add_u32 s41, s5, {18*8192}
    s_cmp_ge_u32 s3, 4
    s_cselect_b32 s41, 0x30000, s41
    v_mov_b32 v{KS[0]+5}, 0x3f803f80
    v_mov_b32 v{KS[1]+5}, 0x3f803f80
    v_mul_u32_u24 v124, 19, v122
    v_add_lshl_u32 v124, v124, v123, 4
    v_add_u32 v125, 0x30000, v124
    v_cmp_gt_u32 vcc, 19, v123
    s_mov_b32 s31, 0
    s_mov_b32 s40, 1
    v_cndmask_b32 v124, v125, v124, vcc
    ; STAMP 1
    s_waitcnt vmcnt(0)
    s_barrier
    ; STAMP 2
K3_maxpass:
    v_mov_b32 v1, v7
    v_lshlrev_b32 v2, 2, v123
    v_mov_b32 v{Q2+1}, 0
    v_mov_b32 v126, 0xff800000
K3_maxloop:
    """)
    for l in rdK(0): a(l)
    a(f"""
    v_add_u32 v1, {KV_TILE}, v1
    v_add_u32 v2, {KV_TILE}, v2
    s_sub_u32 s40, s40, 1
    s_cmp_lg_u32 s40, 0
    s_waitcnt lgkmcnt(0)
    {M1(0)}
    {M2(0)}
    s_nop 11
    """)
    for i in range(8):
        a(f"v_max3_f32 v126, v{SB[0]+2*i}, v{SB[0]+2*i+1}, v126")
    a(f"""
    s_cbranch_scc1 K3_maxloop
    v_mov_b32 v127, v126
    v_mov_b32 v1, v7
    v_lshlrev_b32 v2, 2, v123
    v_permlane32_swap_b32 v126, v127
    v_mov_b32 v3, v124
    v_max_f32 v126, v126, v127
    """)
    for l in rdK(0) + rdK(1) + rdV(0): a(l)
    a(f"""
    v_sub_f32 v126, 0, v126               ; -m
    v_cvt_pk_bf16_f32 v127, v126, v126
    v_and_b32 v127, 0xffff0000, v127      ; hi
    v_sub_f32 v126, v126, v127            ; r1
    v_cvt_pk_bf16_f32 v125, v127, v126
    v_and_b32 v127, 0xffff0000, v125      ; mid
    v_sub_f32 v126, v126, v127            ; r2
    v_cvt_pk_bf16_f32 v126, v126, 0       ; (lo, 0)
    v_cmp_gt_u32 vcc, 32, v0
    """)
    for i in range(16): a(f"v_mov_b32 v{O+i}, 0")
    a(f"v_cndmask_b32 v{Q2+1}, v126, v125, vcc")
    for i in range(4): a(f"v_mov_b32 v{P+4+i}, 0\nv_mov_b32 v{VS[1]+4+i}, 0")
    a(f"""
    s_lshl_b32 s30, s31, 2
    s_max_u32 s30, s30, 3
    s_cmp_lg_u32 s31, 0
    s_waitcnt lgkmcnt(0)
    {M1(0)}
    {M2(0)}
    s_nop 8
    ; STAMP 3
    ; CSTAMP 13
    s_cbranch_scc1 K3_loop
    """)
    def iteration(first):
        nr = 3
        for t in range(16):
            extra = []
            if first and t < 12:
                for _ in range(2 if t % 3 == 0 else 1):
                    if nr == 18: extra += ["s_mov_b32 m0, s41", "s_nop 0"]
                    extra += ["buffer_load_dwordx4 v7, s[12:15], m0 offen lds"]
                    if nr < 17: extra += ["s_add_u32 m0, m0, 0x2000", "s_nop 0"]
                    nr += 1
                if t == 7:
                    extra += ["; STAMP 7", f"s_waitcnt vmcnt({nr - 6 + 2})", "; STAMP 8", "s_barrier", "; STAMP 9"]
            if t == 14:
                extra = (["; STAMP 10", "s_waitcnt vmcnt(0)", "; STAMP 11"] if first else ["s_waitcnt vmcnt(0)"]) + [f"ds_write_b128 v5, {vr(R)}",
                         f"ds_read_b64_tr_b16 {vr(T,2)}, v6", f"ds_read_b64_tr_b16 {vr(T+4,2)}, v6 offset:8",
                         f"ds_write_b128 v5, {vr(R+4)}",
                         f"ds_read_b64_tr_b16 {vr(T+2,2)}, v6", f"ds_read_b64_tr_b16 {vr(T+6,2)}, v6 offset:8"]
            if t == 15:
                extra = [f"buffer_store_dwordx4 {vr(T)}, v120, s[20:23], s37 offen sc1",
                         f"buffer_store_dwordx4 {vr(T+4)}, v120, s[20:23], s37 offen offset:1024 sc1",
                         "s_add_u32 s37, s37, 256"]
            for l in step(t, extra): a(l)
            if t == 1:
                for l in PREP_LOADS: a(l)
        assert (not first) or nr == 19
        a(f"""
        v_add_u32 v1, {16*KV_TILE}, v1
        v_add_u32 v2, {16*KV_TILE}, v2
        v_add_u32 v3, {16*KV_TILE}, v3
        """)
    iteration(True)
    a("""
    ; STAMP 4
    s_barrier
    ; STAMP 5
.p2align 3
K3_loop:
    """)
    iteration(False)
    a(f"""
    s_sub_u32 s30, s30, 1
    s_cmp_lg_u32 s30, 0
    s_cbranch_scc1 K3_loop
    {PV(15, 1)}
    ; STAMP 6
    ; CSTAMP 14
    s_lshr_b32 s5, s4, 5
    s_mul_i32 s5, s5, 36864
    s_and_b32 s6, s4, 31
    s_lshl_b32 s6, s6, 4
    s_add_u32 s5, s5, s6
    s_add_u32 s5, s5, {WS_O:#x}
    v_lshlrev_b32 v16, 10, v123
    v_lshl_add_u32 v16, v122, 9, v16
    v_lshrrev_b32 v17, 2, v123
    v_lshlrev_b32 v17, 9, v17
    v_and_b32 v18, 3, v123
    v_lshl_add_u32 v17, v18, 2, v17
    v_lshl_add_u32 v17, v122, 30, v17
    v_add_u32 v17, 0x8000, v17
    v_mov_b32 v18, v{O+10}
    v_mov_b32 v19, v{O+10}
    v_mul_f32 v20, 0, v{O}
    """)
    for i in range(1, 10): a(f"v_fmac_f32 v20, 0, v{O+i}")
    a(f"""
    v_permlane32_swap_b32 v18, v19
    v_add_f32 v20, v20, v18
    v_rcp_f32 v18, v18
    v_cmp_nlt_f32 vcc, v20, v128
    s_cmp_lg_u32 s31, 0
    s_cbranch_scc1 K3_fin
    s_cbranch_vccz K3_fin
    s_mov_b32 s31, 1
    s_mov_b32 s40, 64
    s_mov_b32 s37, 0x7fff0000
    s_branch K3_maxpass
K3_fin:
    """)
    for i in range(10): a(f"v_mul_f32 v{O+i}, v18, v{O+i}")
    for i in range(5): a(f"v_cvt_pk_bf16_f32 v{24+i}, v{O+2*i}, v{O+2*i+1}")
    a(f"""
    buffer_store_dwordx4 v[24:27], v16, s[8:11], s5 offen
    buffer_store_dword v28, v17, s[8:11], s5 offen
K3_end:
    s_endpgm
    """)
    t = a.text().replace("    v_mov_b32 v%d, 0x3f803f80\n" % (KS[0]+5), "    v_mov_b32 v%d, 0x3f803f80\n    v_mov_b32 v128, 0x71800000\n" % (KS[0]+5), 1)
    return t, kernel_desc(NAME, 132, 48)
```

```python
from common import *
from k2 import W, X, ACC, AB, U, wload, mfma_loop
DEPTH = 14
NAME = "k4_wo_kernel"
NWG = 256
LDS = 40 * 1024
LAUNCH = f"; @launch kernel={NAME} grid=({NWG},1,1) block=(320,1,1) lds={LDS}"
XR = 28
PROF_VGPR = 20
def gen():
    a = Asm()
    a(kernel_head(NAME))
    a(f"""
    s_cmp_ge_u32 s2, {NWG}
    s_cbranch_scc1 K4_end
    s_load_dwordx2 s[8:9], s[0:1], {ARG['ws']}
    s_load_dwordx2 s[20:21], s[0:1], {ARG['x']}
    v_lshrrev_b32 v2, 6, v0
    v_and_b32 v3, 63, v0
    v_readfirstlane_b32 s3, v2            ; wave
    v_lshlrev_b32 v1, 4, v3               ; lane*16
    s_mov_b32 s10, {WS_SIZE:#x}
    s_mov_b32 s11, 0x20000
    s_mov_b32 s18, 0xffff0000
    s_and_b32 s4, s2, 7
    s_lshl_b32 s4, s4, 3
    s_lshr_b32 s5, s2, 5
    s_add_u32 s4, s4, s5                  ; rt
    s_bfe_u32 s5, s2, 0x20003
    s_mul_i32 s5, s5, 5
    s_add_u32 s5, s5, s3
    s_min_u32 s7, s5, 17
    s_lshl_b32 s6, s3, 13                 ; wave*8KB
    s_mov_b32 m0, s6
    s_mul_i32 s12, s4, 36864
    s_add_u32 s12, s12, s6
    s_add_u32 s12, s12, {WS_O:#x}
    s_mul_i32 s14, s7, 36864
    s_add_u32 s14, s14, {WS_WO:#x}
    v_lshrrev_b32 v4, 5, v3               ; h
    v_and_b32 v7, 31, v3                  ; n
    s_lshl_b32 s15, s4, 5
    v_add_u32 v8, s15, v7                 ; row
    v_mul_u32_u24 v9, 1152, v8
    v_lshl_add_u32 v9, v4, 4, v9
    s_lshl_b32 s15, s7, 6
    v_add_u32 v9, s15, v9                 ; x offset
    v_lshlrev_b32 v10, 5, v4
    s_lshl_b32 s16, s7, 7
    s_add_u32 s16, s16, {WS_MOD + 2*2304}
    s_waitcnt lgkmcnt(0)
    """)
    for i in range(8):
        a(f"buffer_load_dwordx4 v1, s[8:11], s12 offen offset:{(i%4)*1024} lds")
        if i == 3: a("s_add_u32 s12, s12, 0x1000\ns_add_u32 m0, s6, 0x1000\ns_nop 0")
    a(f"""
    global_load_dwordx4 {vr(XR)}, v9, s[20:21]
    global_load_dwordx4 {vr(XR+4)}, v9, s[20:21] offset:32
    buffer_load_dwordx4 {vr(AB)}, v10, s[8:11], s16 offen
    buffer_load_dwordx4 {vr(AB+4)}, v10, s[8:11], s16 offen offset:16
    buffer_load_dwordx4 {vr(AB+8)}, v10, s[8:11], s16 offen offset:64
    buffer_load_dwordx4 {vr(AB+12)}, v10, s[8:11], s16 offen offset:80
    """)
    for s in range(DEPTH):
        for l in wload(s, 14): a(l)
    a(f"""
    ; STAMP 1
    s_waitcnt vmcnt({6+DEPTH})
    s_barrier
    ; STAMP 2
    s_cmp_ge_u32 s5, 18
    s_cbranch_scc1 K4_end
    """)
    mfma_loop(a, 14, DEPTH, True)
    a(f"""
    ; STAMP 4
    v_lshrrev_b32 v11, 4, v7
    v_mul_u32_u24 v11, {18*1024}, v11
    v_lshl_add_u32 v11, v4, 8, v11
    v_and_b32 v12, 15, v7
    v_lshl_add_u32 v11, v12, 4, v11
    s_mul_i32 s6, s4, {36*1024}
    s_lshl_b32 s15, s5, 10
    s_add_u32 s6, s6, s15
    s_add_u32 s6, s6, {WS_X1:#x}
    v_lshlrev_b32 v12, 3, v12
    v_lshl_add_u32 v12, v4, 7, v12
    v_lshrrev_b32 v13, 4, v7
    v_mul_u32_u24 v13, 4608, v13
    v_add_u32 v12, v12, v13
    s_mul_i32 s15, s4, 9216
    s_lshl_b32 s16, s5, 8
    s_add_u32 s15, s15, s16
    s_add_u32 s15, s15, {WS_ST:#x}
    s_waitcnt vmcnt(0)
    """)
    XU = X
    for j in range(8):
        a(f"v_lshlrev_b32 v{XU+2*j}, 16, v{XR+j}\nv_and_b32 v{XU+2*j+1}, s18, v{XR+j}")
    for j in range(8):
        a(f"v_pk_fma_f32 {vr(ACC+2*j,2)}, {vr(ACC+2*j,2)}, {vr(AB+2*j,2)}, {vr(XU+2*j,2)}")
    for j in range(8):
        a(f"v_cvt_pk_bf16_f32 v{U+j}, v{ACC+2*j}, v{ACC+2*j+1}")
    a(f"""
    buffer_store_dwordx4 {vr(U)}, v11, s[8:11], s6 offen
    buffer_store_dwordx4 {vr(U+4)}, v11, s[8:11], s6 offen offset:512
    """)
    for j in range(8):
        a(f"v_lshlrev_b32 v{XU+2*j}, 16, v{U+j}\nv_and_b32 v{XU+2*j+1}, s18, v{U+j}")
    a(f"v_pk_add_f32 v[14:15], {vr(XU,2)}, {vr(XU+2,2)}")
    for j in range(2, 8):
        a(f"v_pk_add_f32 v[14:15], v[14:15], {vr(XU+2*j,2)}")
    a(f"""
    v_add_f32 v14, v14, v15
    v_mul_f32 v16, {-1.0/16!r}, v14
    v_mov_b32 v18, 0
    v_mov_b32 v19, 0
    """)
    for j in range(8):
        a(f"v_pk_add_f32 {vr(XU+2*j,2)}, {vr(XU+2*j,2)}, v[16:17] op_sel_hi:[1,0]")
    for j in range(8):
        a(f"v_pk_fma_f32 v[18:19], {vr(XU+2*j,2)}, {vr(XU+2*j,2)}, v[18:19]")
    a(f"""
    v_add_f32 v15, v18, v19
    buffer_store_dwordx2 v[14:15], v12, s[8:11], s15 offen
K4_end:
    s_endpgm
    """)
    return a.text(), kernel_desc(NAME, 256, 32)
```

```python
from common import *
NAME = "k5_ffn_kernel"
NWG = 256
SS = 36864
LDS_AB = 4 * SS
LDS = LDS_AB + 5 * 1024
LAUNCH = f"; @launch kernel={NAME} grid=({NWG},1,1) block=(256,1,1) lds={LDS}"
X = 112
ACC = (48, 80)
HB = 8
FR = 80
NR = 12
PF = 8
BASE = (4, 5, 6, 7)
TMP = 8
STREAM = 972 * 1024

def mfma(acc, a_, b_, first):
    return f"v_mfma_f32_16x16x32_bf16 {vr(acc)}, {a_}, {b_}, {'0' if first else vr(acc)}"

def interleave(mf, fill, maxper=2):
    n = len(mf)
    out = []
    gaps = [[] for _ in range(n)]
    cnt = [len(mf[(i + 1) % n][1]) if i + 1 < n else 0 for i in range(n)]
    for i in range(n): cnt[i] += len(mf[i][2])
    g = 0
    for (lo, item) in fill:
        g = max(g, lo)
        while g < n - 1 and cnt[g] >= maxper: g += 1
        gaps[g].append(item); cnt[g] += 1
    for i in range(n):
        out += mf[i][1] + [mf[i][0]] + mf[i][2] + gaps[i]
    return out

def rd(t, basefn, per):
    r = FR + (t % NR) * 4
    b, off = basefn(t)
    return f"ds_read_b128 {ar(r)}, v{b} offset:{off}"

def dma_items(pos_imm, dyn=False):
    it = []
    for k in range(9):
        g = k // 4
        if dyn: it.append(f"s_mov_b32 m0, s{27+g}")
        else: it.append(f"s_add_u32 m0, s20, {pos_imm + g*4096}")
        it.append(f"buffer_load_dwordx4 v1, s[12:15], s{24+g} offen offset:{(k%4)*1024} lds")
    return it
ADV = [f"s_add_u32 s{24+g}, s{24+g}, {SS}" for g in range(3)]

def epi1(acc):
    it = []
    for rt in range(2):
        for e in range(2):
            g = acc + ((0 * 2 + e) * 2 + rt) * 4; u = acc + ((1 * 2 + e) * 2 + rt) * 4
            for i in range(4): it.append(f"v_max_f32 v{g+i}, 0, v{g+i}")
            for i in range(4): it.append(f"v_mul_f32 v{g+i}, v{g+i}, v{u+i}")
            for i in range(2): it.append(f"v_cvt_pk_bf16_f32 v{TMP+rt*4+e*2+i}, v{g+2*i}, v{g+2*i+1}")
    for q in range(4):
        it.append(["s_set_gpr_idx_on s30, gpr_idx(DST)", f"v_accvgpr_write_b32 a{2*q}, v{TMP+2*q}", f"v_accvgpr_write_b32 a{2*q+1}, v{TMP+2*q+1}", "s_set_gpr_idx_off"])
    it.append("s_add_u32 s30, s30, 8")
    return it

def flat(L):
    o = []
    for x in L:
        if isinstance(x, list): o += x
        else: o.append(x)
    return o

def spread(items, lo, hi):
    n = len(items)
    return [(lo + (hi - lo) * i // max(n, 1), it) for i, it in enumerate(items)]

def merge(*ls):
    return sorted(sum(ls, []), key=lambda x: x[0])

def chunk(half):
    acc = ACC[half]
    def basefn(t):
        t %= 144
        t2 = (half * 72 + t) % 144
        return BASE[t2 // 36], (t2 % 36) * 1024
    out = []
    for sub in range(2):
        pos = 2 * half + sub
        mf = []
        for ks in range(9):
            s = sub * 9 + ks
            for f in range(4):
                t = s * 4 + f
                for rt in range(2):
                    pre = []; post = []
                    if rt == 0 and f % 2 == 0: pre = [f"s_waitcnt lgkmcnt({PF-2})"]
                    if rt == 0: post = [rd(t + PF, basefn, 72)]
                    mf.append((mfma(acc + (f * 2 + rt) * 4, ar(FR + (t % NR) * 4), vr(X + (2 * s + rt) * 4), s == 0), pre, post))
        d = dma_items(((pos + 1) % 4) * SS)
        fill = spread(d, 1, 66) + [(67, x) for x in ADV]
        if sub == 0:
            fill = merge(fill, spread(epi1(ACC[1 - half]), 6, 70))
        fill = fix_m0(fill)
        out += flat(interleave(mf, fill))
        out += ["s_mov_b32 s20, s40", "s_waitcnt vmcnt(9)", "s_barrier"]
    return out

def fix_m0(fill):
    res = []; pend = []; inpair = False
    for lo, it in fill:
        if isinstance(it, list) and inpair:
            pend.append((lo, it)); continue
        res.append((lo, it))
        if isinstance(it, str) and ' m0, ' in it: inpair = True
        if isinstance(it, str) and it.endswith(' lds'):
            inpair = False
            res += pend; pend = []
    return res

def epi2(acc):
    it = []
    for rt in range(2):
        for e in range(2):
            c = acc + (e * 2 + rt) * 4
            for i in range(2): it.append(f"v_cvt_pk_bf16_f32 v{TMP+rt*4+e*2+i}, v{c+2*i}, v{c+2*i+1}")
        it.append(f"buffer_store_dwordx4 {vr(TMP+rt*4)}, v1, s[16:19], s{32+rt} offen sc1")
    it += ["s_add_u32 s32, s32, 0x400", "s_add_u32 s33, s33, 0x400"]
    return it

def phase2_body():
    A2 = (48, 64)
    def basefn(t):
        return (2, t * 1024) if t < 36 else (3, (t - 36) * 1024)
    mf = []
    for dp in range(2):
        for s in range(9):
            for e in range(2):
                t = dp * 18 + s * 2 + e
                for rt in range(2):
                    pre = []; post = []
                    if rt == 0 and e == 0: pre = [f"s_waitcnt lgkmcnt({PF-2})"]
                    if rt == 0: post = [rd(t + PF, basefn, 36)]
                    mf.append((mfma(A2[dp] + (e * 2 + rt) * 4, ar(FR + (t % NR) * 4), ar(HB + (2 * s + rt) * 4), s == 0), pre, post))
    d = dma_items(0, dyn=True)
    fill = merge(spread(d, 1, 66), spread(epi2(A2[1]), 6, 30), spread(epi2(A2[0]), 42, 60))
    tail = ADV + [
        "s_add_u32 s27, s21, s20", "s_add_u32 s28, s27, 0x1000", "s_add_u32 s29, s27, 0x2000",
        "s_mov_b32 s21, s22", f"s_add_u32 s22, s22, {SS}", f"s_cmp_ge_u32 s22, {4*SS}", "s_cselect_b32 s22, 0, s22",
        "v_mov_b32 v2, v3", "v_add_u32 v3, s22, v1", "s_sub_u32 s31, s31, 1", "s_cmp_lg_u32 s31, 0"]
    body = flat(interleave(mf, fill))
    return body + tail

PROF_VGPR = 47
MAPS = {
 "2x16": """s_and_b32 s4, s2, 7
    s_lshl_b32 s4, s4, 1
    s_bfe_u32 s5, s2, 0x10003
    s_add_u32 s4, s4, s5
    s_lshr_b32 s5, s2, 4""",
 "4x8": """s_and_b32 s4, s2, 3
    s_lshl_b32 s4, s4, 2
    s_bfe_u32 s5, s2, 0x20003
    s_add_u32 s4, s4, s5
    s_bfe_u32 s5, s2, 0x10002
    s_lshl_b32 s5, s5, 3
    s_lshr_b32 s6, s2, 5
    s_add_u32 s5, s5, s6""",
 "8x4": """s_and_b32 s4, s2, 1
    s_lshl_b32 s4, s4, 3
    s_bfe_u32 s5, s2, 0x30003
    s_add_u32 s4, s4, s5
    s_bfe_u32 s5, s2, 0x20001
    s_lshl_b32 s5, s5, 2
    s_lshr_b32 s6, s2, 6
    s_add_u32 s5, s5, s6""",
}
import os
MAP = MAPS[os.environ.get("K5MAP", "8x4")]
def gen():
    a = Asm()
    a(kernel_head(NAME))
    ST = 48
    a(f"""
    s_cmp_ge_u32 s2, {NWG}
    s_cbranch_scc1 K5_end
    s_load_dwordx2 s[8:9], s[0:1], {ARG['ws']}
    v_lshrrev_b32 v2, 6, v0
    v_and_b32 v0, 63, v0
    v_readfirstlane_b32 s3, v2            ; wave
    v_lshlrev_b32 v1, 4, v0
    s_mov_b32 s10, {WS_SIZE:#x}
    s_mov_b32 s11, 0x20000
    s_mov_b32 s14, {STREAM}
    s_mov_b32 s15, 0x20000
    s_mov_b32 s18, {XBYTES}
    s_mov_b32 s19, 0x20000
    s_mov_b32 s23, 0xffff0000
    {MAP}
    s_lshl_b32 s5, s5, 2
    s_add_u32 s5, s5, s3
    s_mul_i32 s20, s3, 9216
    v_lshrrev_b32 v9, 4, v0               ; g
    v_lshlrev_b32 v10, 3, v0
    s_mul_i32 s6, s5, {32*288}
    s_add_u32 s6, s6, {WS_ST:#x}
    s_add_u32 s7, s6, {16*288}
    s_mul_i32 s34, s4, {STREAM}
    s_add_u32 s34, s34, {WS_WP:#x}
    s_mul_i32 s35, s4, {XBYTES}
    s_add_u32 s35, s35, {WS_PART:#x}
    s_lshl_b32 s36, s3, 10
    s_add_u32 m0, s36, {LDS_AB}
    s_add_u32 s36, s36, {WS_MOD + 3*2304}
    s_mul_i32 s37, s5, 36864
    s_waitcnt lgkmcnt(0)
    s_add_u32 s12, s8, s34
    s_addc_u32 s13, s9, 0
    s_add_u32 s16, s8, s35
    s_addc_u32 s17, s9, 0
    """)
    for rt in range(2):
        for k in range(9):
            if k == 8: a(f"s_add_u32 s{6+rt}, s{6+rt}, 0x1000")
            a(f"buffer_load_dwordx2 {vr(ST+18*rt+2*k,2)}, v10, s[8:11], s{6+rt} offen offset:{512*(k%8)}")
    a(f"""
    buffer_load_dwordx4 v1, s[8:11], s36 offen lds
    s_mov_b32 m0, {LDS_AB + 4096}
    s_movk_i32 s36, {WS_MOD + 3*2304 + 4096}
    buffer_load_dwordx4 v1, s[8:11], s36 offen lds
    s_add_u32 s36, s37, {WS_X1:#x}
    """)
    a(f"s_add_u32 s38, s36, {18*1024}")
    def xloads(lo, hi):
        for s_ in range(lo, hi):
            for rt in range(2):
                a(f"buffer_load_dwordx4 {vr(X+(2*s_+rt)*4)}, v1, s[8:11], s{36 if rt == 0 else 38} offen offset:{(s_%4)*1024}")
            if s_ % 4 == 3: a("s_add_u32 s36, s36, 0x1000\ns_add_u32 s38, s38, 0x1000")
    xloads(0, 12)
    a(f"""
    v_add_u32 v4, {2*SS}, v1
    v_add_u32 v5, {3*SS}, v1
    v_mov_b32 v6, v1
    v_add_u32 v7, {SS}, v1
    v_lshlrev_b32 v12, 5, v9
    v_add_u32 v12, {LDS_AB}, v12          ; ab lds addr
    ; prologue DMA cursor: wave w streams KBs w, w+4, ... (lds offset == stream offset)
    s_lshl_b32 s21, s3, 10
    ; STAMP 1
    s_waitcnt vmcnt(24)
    ; STAMP 2
    s_barrier
    """)
    for rt in range(2):
        b = ST + 18 * rt
        a(f"v_pk_add_f32 v[20:21], {vr(b,2)}, {vr(b+2,2)}")
        for i in range(2, 9): a(f"v_pk_add_f32 v[20:21], v[20:21], {vr(b+2*i,2)}")
        a(f"""
        v_mov_b32 v22, v20
        s_nop 1
        v_permlane32_swap_b32 v20, v22
        v_add_f32 v20, v20, v22
        v_mov_b32 v22, v20
        s_nop 1
        v_permlane16_swap_b32 v20, v22
        v_add_f32 v20, v20, v22
        v_mul_f32 v20, {-1.0/576!r}, v20      ; -mean
        v_mov_b32 v23, 0
        """)
        for i in range(9):
            a(f"v_fma_f32 v22, v{b+2*i}, v13, v20\nv_fmac_f32 v23, v22, v22") if False else None
            a(f"v_mov_b32 v22, v20\nv_fmac_f32 v22, 0x3d800000, v{b+2*i}\nv_fmac_f32 v23, v22, v22")
        a(f"""
        v_fmac_f32 v21, 0x41800000, v23
        v_mov_b32 v22, v21
        s_nop 1
        v_permlane32_swap_b32 v21, v22
        v_add_f32 v21, v21, v22
        v_mov_b32 v22, v21
        s_nop 1
        v_permlane16_swap_b32 v21, v22
        v_add_f32 v21, v21, v22
        v_mov_b32 v22, 0x3727c5ac
        v_fmac_f32 v22, {1.0/576!r}, v21
        v_rsq_f32 v{14+2*rt}, v22
        s_nop 0
        v_mul_f32 v{15+2*rt}, v20, v{14+2*rt}
        """)
    AB, U = 48, 64
    a(f"""
    s_mov_b32 s30, 0
    s_mov_b32 s31, 48
    ; STAMP 3
    ds_read_b128 {vr(AB)}, v12
    ds_read_b128 {vr(AB+4)}, v12 offset:16
    ds_read_b128 {vr(AB+8)}, v12 offset:2304
    ds_read_b128 {vr(AB+12)}, v12 offset:2320
    s_waitcnt vmcnt(12)
    """)
    def norm_body(label, ndma):
        def pdma():
            a("s_mov_b32 m0, s21\ns_add_u32 s21, s21, 0x1000\nbuffer_load_dwordx4 v1, s[12:15], m0 offen lds")
        a(f"{label}:\ns_set_gpr_idx_on s30, gpr_idx(SRC1)")
        for j in range(8):
            a(f"v_lshlrev_b32 v{U+2*j}, 16, v{X+j}\nv_and_b32 v{U+2*j+1}, s23, v{X+j}")
        a("s_set_gpr_idx_off\nv_add_u32 v12, 0x80, v12")
        if ndma > 0: pdma()
        for j in range(8):
            r = 14 + 2 * (j // 4)
            a(f"v_pk_fma_f32 {vr(U+2*j,2)}, {vr(U+2*j,2)}, {vr(r,2)}, {vr(r,2)} op_sel:[0,0,1] op_sel_hi:[1,0,1]")
        if ndma > 2: pdma()
        a("s_waitcnt lgkmcnt(0)")
        for j in range(8):
            jj = j % 4
            a(f"v_pk_fma_f32 {vr(U+2*j,2)}, {vr(U+2*j,2)}, {vr(AB+8+2*jj,2)}, {vr(AB+2*jj,2)}")
        if ndma > 1: pdma()
        a(f"""
        ds_read_b128 {vr(AB)}, v12
        ds_read_b128 {vr(AB+4)}, v12 offset:16
        ds_read_b128 {vr(AB+8)}, v12 offset:2304
        ds_read_b128 {vr(AB+12)}, v12 offset:2320
        s_set_gpr_idx_on s30, gpr_idx(DST)
        """)
        for j in range(8):
            a(f"v_cvt_pk_bf16_f32 v{X+j}, v{U+2*j}, v{U+2*j+1}")
        a(f"""
        s_set_gpr_idx_off
        s_add_u32 s30, s30, 8
        s_cmp_lt_u32 s30, s31
        s_cbranch_scc1 {label}
        """)
    xloads(12, 18)
    norm_body("K5_normA", 0)
    a("s_movk_i32 s31, 96\ns_waitcnt vmcnt(12)")
    norm_body("K5_normB", 3)
    a(f"""
    s_movk_i32 s31, 144
    s_waitcnt vmcnt(18)
    s_cmp_lt_u32 s30, 144
    s_cbranch_scc1 K5_normB
    s_mov_b32 s30, 0
    s_mov_b32 s40, s20
    s_add_u32 s24, s20, {3*SS}
    s_add_u32 s25, s24, 0x1000
    s_add_u32 s26, s24, 0x2000
    s_mov_b32 s20, {0x28000 - 3*SS}
    ; STAMP 5
    s_waitcnt lgkmcnt(0)
    s_barrier
    ; STAMP 6
    ; CSTAMP 13
    """)
    for t in range(PF):
        a(f"ds_read_b128 {ar(FR+4*t)}, v6 offset:{t*1024}")
    a("s_branch K5_p1_B\n.p2align 3\nK5_p1_A:")
    for l in chunk(0): a(l)
    a("K5_p1_B:")
    for l in chunk(1): a(l)
    a(f"""
    s_cmp_lt_u32 s30, 72
    s_cbranch_scc1 K5_p1_A
    ; STAMP 7
    s_nop 4
    """)
    for l in flat(epi1(ACC[1])): a(l)
    a(f"""
    v_mov_b32 v2, v4
    v_mov_b32 v3, v5
    s_mov_b32 s21, {2*SS}
    s_mov_b32 s22, {3*SS}
    s_add_u32 s27, s20, {SS}
    s_add_u32 s28, s27, 0x1000
    s_add_u32 s29, s27, 0x2000
    s_mov_b32 s31, 9
    s_mov_b32 s32, 0x7fff0000
    s_mov_b32 s33, 0x7fff0000
    s_mov_b32 s38, s37
    s_add_u32 s39, s37, {18*1024}
.p2align 3
K5_p2:
    """)
    body = phase2_body()
    out = []
    seen = 0
    for l in body:
        out.append(l)
        if l == "s_add_u32 s33, s33, 0x400":
            seen += 1
            if seen == 1:
                out += ["s_min_u32 s32, s32, s38", "s_min_u32 s33, s33, s39", "s_mov_b32 s38, -1", "s_mov_b32 s39, -1"]
    for l in out: a(l)
    a(f"""
    s_waitcnt vmcnt(13)
    s_barrier
    s_cbranch_scc1 K5_p2
    ; STAMP 8
    ; CSTAMP 14
    """)
    for l in epi2(64)[:-2]: a(l)
    a("""
K5_end:
    s_endpgm
    """)
    return a.text(), kernel_desc(NAME, 256 + 128, 48, accum=256)
```

```python
from common import *
NAME = "k6_comb_kernel"
NWG = 576
LAUNCH = f"; @launch kernel={NAME} grid=({NWG},1,1) block=(256,1,1) lds=0"
P, X1, GB, A, U = 32, 28, 20, 12, 4
PROF_VGPR = 98
def gen(nsplit=NSLAB):
    a = Asm()
    a(kernel_head(NAME))
    a(f"""
    s_cmp_ge_u32 s2, {NWG}
    s_cbranch_scc1 K6_end
    s_load_dwordx2 s[8:9], s[0:1], {ARG['ws']}
    s_load_dwordx2 s[20:21], s[0:1], {ARG['out']}
    s_mov_b32 s10, {WS_SIZE:#x}
    s_mov_b32 s11, 0x20000
    s_mov_b32 s18, 0xffff0000
    v_lshlrev_b32 v1, 4, v0
    s_lshl_b32 s4, s2, 12
    s_add_u32 s5, s4, {WS_PART:#x}
    s_add_u32 s6, s4, {WS_X1:#x}
    s_mov_b32 s7, {XBYTES}
    v_lshrrev_b32 v2, 6, v0
    v_lshl_add_u32 v2, s2, 2, v2
    s_mov_b32 s12, {(1<<32)//18+1}
    v_mul_hi_u32 v3, v2, s12              ; rt16
    v_mul_u32_u24 v96, 18, v3
    v_sub_u32 v2, v2, v96                 ; P
    v_bfe_u32 v96, v0, 4, 2               ; g
    v_lshl_add_u32 v2, v2, 2, v96
    v_lshlrev_b32 v97, 5, v2
    s_waitcnt lgkmcnt(0)
    """)
    for j in range(nsplit):
        a(f"buffer_load_dwordx4 {vr(P+4*j)}, v1, s[8:11], s5 offen")
        if j < nsplit - 1: a("s_add_u32 s5, s5, s7")
        if j in (0, 3, 7): a(f"; STAMP {9+(j>0)+(j>3)}")
    a(f"""
    buffer_load_dwordx4 {vr(X1)}, v1, s[8:11], s6 offen
    s_movk_i32 s6, {WS_MOD + 5*2304}
    buffer_load_dwordx4 {vr(GB)}, v97, s[8:11], s6 offen
    buffer_load_dwordx4 {vr(GB+4)}, v97, s[8:11], s6 offen offset:16
    v_and_b32 v96, 15, v0
    v_lshl_add_u32 v3, v3, 4, v96         ; row
    v_mul_u32_u24 v3, 1152, v3
    v_lshl_add_u32 v3, v2, 4, v3
    """)
    for i in range(8): a(f"v_mov_b32 v{A+i}, 0")
    a(f"""
    s_mov_b32 s16, 0
    ; STAMP 1
    s_waitcnt vmcnt(0)
    ; STAMP 2
K6_loop:
    s_set_gpr_idx_on s16, gpr_idx(SRC1)
    """)
    for j in range(4):
        a(f"v_lshlrev_b32 v{U+2*j}, 16, v{P+j}\nv_and_b32 v{U+2*j+1}, s18, v{P+j}")
    a(f"""
    s_set_gpr_idx_off
    s_add_u32 s16, s16, 4
    s_cmp_lt_u32 s16, {4*nsplit}
    """)
    for j in range(4):
        a(f"v_pk_add_f32 {vr(A+2*j,2)}, {vr(A+2*j,2)}, {vr(U+2*j,2)}")
    a("s_cbranch_scc1 K6_loop")
    for j in range(4):
        a(f"v_lshlrev_b32 v{U+2*j}, 16, v{X1+j}\nv_and_b32 v{U+2*j+1}, s18, v{X1+j}")
    for j in range(4):
        a(f"v_pk_fma_f32 {vr(A+2*j,2)}, {vr(A+2*j,2)}, {vr(GB+2*j,2)}, {vr(U+2*j,2)}")
    for j in range(4):
        a(f"v_cvt_pk_bf16_f32 v{U+j}, v{A+2*j}, v{A+2*j+1}")
    a(f"""
    global_store_dwordx4 v3, {vr(U)}, s[20:21]
K6_end:
    s_endpgm
    """)
    return a.text(), kernel_desc(NAME, 99, 32)
```

```python
import sys, importlib, re
import common, k1, k2, k3, k4, k5, k6, hazard
HEAD = open('adaLN_cond__grouped_kv_mqa__glu_gated_reglu__prompt.s.ref').read().split('; Override launch')[0]
def instrument(t, m, kid):
    sv = m.PROF_VGPR
    def gen_(fn, *args):
        a = common.Asm(kid, sv); getattr(a, fn)(*args); return a.text()
    t = t.replace("    s_endpgm\n", gen_('end'))
    t = re.sub(r"    ; STAMP (\d+)\n", lambda mm: gen_('stamp', int(mm.group(1))), t)
    t = re.sub(r"    ; CSTAMP (\d+)\n", lambda mm: gen_('cstamp', int(mm.group(1))), t)
    t = t.replace(f"{m.NAME}:\n", f"{m.NAME}:\n" + gen_('prof_begin'), 1)
    return t
def build(mods, prof=False):
    common.PROF = prof
    k3.prep_setup.n = 0
    txt = HEAD
    for m in mods: txt += m.LAUNCH + "\n"
    txt += '.amdgcn_target "amdgcn-amd-amdhsa--gfx950"\n.text\n'
    descs = ""
    seen = set()
    for kid, m in enumerate(mods):
        if m.NAME in seen: continue
        seen.add(m.NAME)
        t, d = m.gen()
        if prof: t = instrument(t, m, kid)
        else: t = re.sub(r"    ; C?STAMP (\d+)\n", "", t)
        for p in hazard.check(t):
            print("HAZARD in %s line %d -> %d need %d have %d:\n   %s\n   %s" % ((m.NAME,) + p), file=sys.stderr)
        txt += t; descs += d
    txt += 'CODE_END:\n    s_endpgm\n.section .rodata,"a"\n' + descs
    return txt
MODS = [k1, k2, k3, k5]
if __name__ == "__main__":
    open('adaLN_cond__grouped_kv_mqa__glu_gated_reglu__prompt.s', 'w').write(build(MODS))
    open('prof.s', 'w').write(build(MODS, prof=True))
```

```python
S, D, H, DH, F = 2048, 576, 32, 18, 4608
WS_MOD  = 0x0
WS_KV   = 0x10000
WS_WQKV = 0x40000
WS_WO   = WS_WQKV + 20 * 36 * 1024
WS_ST   = 0x280000
WS_XN   = 0x300000
WS_Q    = 0x600000
WS_O    = 0x900000
WS_X1   = 0xC00000
WS_WP   = 0x1000000
WS_PART = 0x2000000
WS_HX   = 0x3000000
WS_FLAG = 0x200000
FLAG_BYTES = 0x20000
NSLAB = 4
WS_SIZE = 0x10000000
XBYTES = S * D * 2
KV_TILE = 2368
KV_V = 1024
KV_K2 = 2240
KV_BYTES = 64 * KV_TILE
ARG = dict(x=0, wq=8, wk=16, wv=24, wo=32, bx=40, wg=48, wu=56, wd=64, c=72, wmod=80, out=88, dbg=96, ws=104)

WS_PROF = 0x8000000
PROF = False
class Asm:
    def __init__(self, kid=0, sv=None):
        self.lines = []
        self.kid = kid; self.sv = sv
    def prof_begin(self):
        if not PROF: return
        self(f"""
        s_memrealtime s[96:97]
        s_load_dwordx2 s[98:99], s[0:1], {ARG['ws']}
        v_lshrrev_b32 v{self.sv}, 6, v0
        s_mov_b32 s100, s2
        v_readfirstlane_b32 s101, v{self.sv}
        v_mov_b32 v{self.sv}, 0
        s_waitcnt lgkmcnt(0)
        v_writelane_b32 v{self.sv}, s96, 0
        s_memrealtime s[96:97]
        s_waitcnt lgkmcnt(0)
        v_writelane_b32 v{self.sv}, s96, 12
        """)
    def stamp(self, i):
        if not PROF: return
        self(f"""
        s_memrealtime s[96:97]
        s_waitcnt lgkmcnt(0)
        v_writelane_b32 v{self.sv}, s96, {i}
        """)
    def cstamp(self, i):
        if not PROF: return
        self(f"""
        s_memtime s[96:97]
        s_waitcnt lgkmcnt(0)
        v_writelane_b32 v{self.sv}, s96, {i}
        """)
    def end(self):
        if PROF:
            self(f"""
            s_waitcnt vmcnt(0)
            s_memrealtime s[96:97]
            s_lshl_b32 s100, s100, 4
            s_add_u32 s100, s100, s101
            s_lshl_b32 s100, s100, 6
            s_add_u32 s100, s100, {WS_PROF + self.kid * 0x100000}
            s_mov_b64 exec, 0xffff
            v_mbcnt_lo_u32_b32 v0, -1, 0
            v_lshl_add_u32 v0, v0, 2, s100
            s_waitcnt lgkmcnt(0)
            v_writelane_b32 v{self.sv}, s96, 15
            global_store_dword v0, v{self.sv}, s[98:99]
            """)
        self("s_endpgm")
    def __call__(self, s):
        for l in s.strip('\n').split('\n'):
            l = l.strip()
            if not l: continue
            if l.endswith(':') or l.startswith('.'):
                self.lines.append(l)
            else:
                self.lines.append('    ' + l)
    def text(self):
        return '\n'.join(self.lines) + '\n'

def kernel_head(name):
    return f""".globl {name}
.p2align 8
.type {name},@function
{name}:
"""

def kernel_desc(name, vgpr, sgpr, accum=None):
    if PROF: sgpr = 102
    if accum is None:
        accum = (vgpr + 3) // 4 * 4
    return f""".p2align 6
.amdhsa_kernel {name}
  .amdhsa_next_free_vgpr {vgpr}
  .amdhsa_next_free_sgpr {sgpr}
  .amdhsa_accum_offset {accum}
  .amdhsa_group_segment_fixed_size 0
  .amdhsa_kernarg_size 112
  .amdhsa_user_sgpr_count 2
  .amdhsa_user_sgpr_kernarg_segment_ptr 1
  .amdhsa_system_sgpr_workgroup_id_x 1
.end_amdhsa_kernel
"""

def vr(b, n=4): return f"v[{b}:{b+n-1}]"
def ar(b, n=4): return f"a[{b}:{b+n-1}]"
def sr(b, n=2): return f"s[{b}:{b+n-1}]"
def srd(a, d, base, nbytes):
    if d != base:
        a(f"s_mov_b32 s{d}, s{base}\ns_mov_b32 s{d+1}, s{base+1}")
    a(f"s_mov_b32 s{d+2}, {nbytes:#x}\ns_mov_b32 s{d+3}, 0x20000")
```

```python
from common import *
N_MOD, N_LN, N_PACK, N_WARM = 112, 128, 342, 16
NWG = N_MOD + N_LN + N_PACK + N_WARM
NAME = "k1_prep_kernel"
LAUNCH = f"; @launch kernel={NAME} grid=({NWG},1,1) block=(256,1,1) lds=2048"

PROF_VGPR = 100
def gen():
    a = Asm()
    a(kernel_head(NAME))
    a(f"""
    s_load_dwordx2 s[20:21], s[0:1], {ARG['ws']}
    s_mov_b32 s18, 0xffff0000
    s_cmp_ge_u32 s2, {N_MOD}
    s_cbranch_scc1 K1_not_mod
    """)
    C, W, A, U, T = 8, 44, 80, 88, 96
    a(f"""
    s_cmp_ge_u32 s2, 108
    s_cbranch_scc1 K1_zero
    s_load_dwordx4 s[4:7], s[0:1], {ARG['c']}
    v_and_b32 v1, 3, v0
    v_lshrrev_b32 v2, 2, v0
    v_lshlrev_b32 v3, 1, v2
    v_mul_u32_u24 v4, 6912, v2
    v_lshl_add_u32 v4, v1, 4, v4
    s_lshl_b32 s10, s2, 6
    s_mov_b32 s14, {576*6912}
    s_mov_b32 s15, 0x20000
    s_mov_b32 s16, {64*6912}
    s_waitcnt lgkmcnt(0)
    s_mov_b32 s12, s6
    s_mov_b32 s13, s7
    """)
    for i in range(9):
        a(f"buffer_load_dwordx4 {vr(W+4*i)}, v4, s[12:15], s10 offen")
        if i < 8: a("s_add_u32 s10, s10, s16")
        a(f"global_load_ushort v{C+4*i}, v3, s[4:5] offset:{128*i}")
    for i in range(8): a(f"v_mov_b32 v{A+i}, 0")
    a(f"""
    v_lshrrev_b32 v5, 4, v0
    v_lshlrev_b32 v5, 7, v5
    v_lshl_add_u32 v5, v1, 5, v5
    s_mov_b32 s11, 0
    s_waitcnt vmcnt(0)
    ; STAMP 1
K1_mod_loop:
    s_set_gpr_idx_on s11, gpr_idx(SRC1)
    v_lshlrev_b32 v{T}, 16, v{C}
    """)
    for j in range(4):
        a(f"v_lshlrev_b32 v{U+2*j}, 16, v{W+j}\nv_and_b32 v{U+2*j+1}, s18, v{W+j}")
    a(f"""
    s_set_gpr_idx_off
    v_mul_f32 v{T+2}, 0xbfb8aa3b, v{T}
    v_exp_f32 v{T+2}, v{T+2}
    s_add_u32 s11, s11, 4
    v_add_f32 v{T+2}, 1.0, v{T+2}
    v_rcp_f32 v{T+2}, v{T+2}
    s_cmp_lt_u32 s11, 36
    v_mul_f32 v{T+2}, v{T+2}, v{T}
    v_cvt_pk_bf16_f32 v{T+2}, v{T+2}, v{T+2}
    v_and_b32 v{T+2}, s18, v{T+2}
    """)
    for j in range(4):
        a(f"v_pk_fma_f32 {vr(A+2*j,2)}, {vr(U+2*j,2)}, {vr(T+2,2)}, {vr(A+2*j,2)} op_sel_hi:[1,0,1]")
    a("s_cbranch_scc1 K1_mod_loop")
    for rot in (4, 8):
        for j in range(8):
            a(f"v_add_f32_dpp v{A+j}, v{A+j}, v{A+j} row_ror:{rot} row_mask:0xf bank_mask:0xf")
    a(f"""
    ds_write_b128 v5, {vr(A)}
    ds_write_b128 v5, {vr(A+4)} offset:16
    v_and_b32 v6, 31, v0
    v_bfe_u32 v7, v0, 5, 1
    v_lshlrev_b32 v7, 10, v7
    v_lshl_add_u32 v7, v6, 2, v7
    s_mov_b32 s17, 0
    s_sub_u32 s3, s2, 18
    s_cmp_lt_u32 s3, 18
    s_cselect_b32 s17, 1.0, s17
    s_sub_u32 s3, s2, 72
    s_cmp_lt_u32 s3, 18
    s_cselect_b32 s17, 1.0, s17
    s_lshl_b32 s3, s2, 7
    v_lshl_add_u32 v6, v6, 2, s3
    s_waitcnt lgkmcnt(0)
    s_barrier
    ds_read2_b32 v[8:9], v7 offset0:0 offset1:32
    ds_read2_b32 v[10:11], v7 offset0:64 offset1:96
    ds_read2_b32 v[12:13], v7 offset0:128 offset1:160
    ds_read2_b32 v[14:15], v7 offset0:192 offset1:224
    v_cmp_gt_u32 vcc, 32, v0
    s_waitcnt lgkmcnt(0)
    v_pk_add_f32 v[8:9], v[8:9], v[10:11]
    v_pk_add_f32 v[12:13], v[12:13], v[14:15]
    v_pk_add_f32 v[8:9], v[8:9], v[12:13]
    v_add_f32 v8, v8, v9
    v_mov_b32 v9, v8
    s_nop 1
    v_permlane32_swap_b32 v8, v9
    v_add_f32 v8, v8, v9
    v_cvt_pk_bf16_f32 v8, v8, v8
    v_and_b32 v8, s18, v8
    v_add_f32 v8, s17, v8
    v_cvt_pk_bf16_f32 v8, v8, v8
    v_and_b32 v8, s18, v8
    s_and_saveexec_b64 s[22:23], vcc
    s_cbranch_execz K1_end
    global_store_dword v6, v8, s[20:21]
    s_endpgm
K1_not_mod:
    s_cmp_ge_u32 s2, {N_MOD+N_LN}
    s_cbranch_scc1 K1_pack
    """)
    X, Y = 8, 28
    a(f"""
    s_load_dwordx2 s[4:5], s[0:1], {ARG['x']}
    s_sub_u32 s3, s2, {N_MOD}
    s_and_b32 s6, s3, 7
    s_lshl_b32 s6, s6, 4
    s_lshr_b32 s3, s3, 3
    s_add_u32 s3, s3, s6
    v_lshrrev_b32 v1, 4, v0
    v_lshl_add_u32 v1, s3, 4, v1          ; row
    v_and_b32 v2, 15, v0                  ; c
    v_mul_u32_u24 v3, 1152, v1
    v_lshl_add_u32 v3, v2, 3, v3
    v_mov_b32 v7, 0x3f803f80
    v_mov_b32 v4, 0
    s_waitcnt lgkmcnt(0)
    """)
    for i in range(9):
        a(f"global_load_dwordx2 {vr(X+2*i,2)}, v3, s[4:5] offset:{128*i}")
    a(f"""
    v_lshrrev_b32 v5, 5, v1
    v_mul_u32_u24 v5, 36864, v5
    v_and_b32 v6, 31, v1
    v_lshl_add_u32 v5, v6, 4, v5
    v_lshrrev_b32 v6, 1, v2
    v_lshl_add_u32 v5, v6, 9, v5
    v_and_b32 v6, 1, v2
    v_lshl_add_u32 v5, v6, 3, v5
    v_add_u32 v5, {WS_XN:#x}, v5
    s_movk_i32 s16, 0x1000
    s_waitcnt vmcnt(0)
    ; STAMP 1
    """)
    for i in range(18):
        a(f"v_dot2c_f32_bf16 v4, v{X+i}, v7")
    for i in range(18):
        a(f"v_lshlrev_b32 v{Y+2*i}, 16, v{X+i}\nv_and_b32 v{Y+2*i+1}, s18, v{X+i}")
    for rot in (1, 2, 4, 8):
        a(f"v_add_f32_dpp v4, v4, v4 row_ror:{rot} row_mask:0xf bank_mask:0xf\ns_nop 1")
    a(f"v_mul_f32 v4, {-1.0/576!r}, v4\nv_mov_b32 v64, 0\nv_mov_b32 v65, 0")
    for i in range(18):
        a(f"v_pk_add_f32 {vr(Y+2*i,2)}, {vr(Y+2*i,2)}, v[4:5] op_sel_hi:[1,0]")
    for i in range(18):
        a(f"v_pk_fma_f32 v[64:65], {vr(Y+2*i,2)}, {vr(Y+2*i,2)}, v[64:65]")
    a("v_add_f32 v64, v64, v65\ns_nop 1")
    for rot in (1, 2, 4, 8):
        a(f"v_add_f32_dpp v64, v64, v64 row_ror:{rot} row_mask:0xf bank_mask:0xf\ns_nop 1")
    a(f"""
    v_mov_b32 v65, 0x3727c5ac
    v_fmac_f32 v65, {1.0/576!r}, v64
    v_rsq_f32 v64, v65
    s_nop 0
    """)
    for i in range(9):
        a(f"v_pk_mul_f32 {vr(Y+4*i,2)}, {vr(Y+4*i,2)}, v[64:65] op_sel_hi:[1,0]")
        a(f"v_pk_mul_f32 {vr(Y+4*i+2,2)}, {vr(Y+4*i+2,2)}, v[64:65] op_sel_hi:[1,0]")
        a(f"v_cvt_pk_bf16_f32 v{X+2*i}, v{Y+4*i}, v{Y+4*i+1}")
        a(f"v_cvt_pk_bf16_f32 v{X+2*i+1}, v{Y+4*i+2}, v{Y+4*i+3}")
        a(f"global_store_dwordx2 v5, {vr(X+2*i,2)}, s[20:21]")
        if i < 8: a("v_add_u32 v5, s16, v5")
    a("s_endpgm")
    a(f"""
K1_pack:
    s_cmp_ge_u32 s2, {N_MOD+N_LN+N_PACK}
    s_cbranch_scc1 K1_warm
    s_load_dwordx8 s[4:11], s[0:1], {ARG['wq']}
    v_lshrrev_b32 v1, 6, v0
    v_and_b32 v2, 63, v0
    v_readfirstlane_b32 s3, v1
    s_sub_u32 s12, s2, {N_MOD+N_LN}
    s_lshl_b32 s12, s12, 2
    v_and_b32 v3, 31, v2                 ; m
    v_lshrrev_b32 v4, 5, v2              ; h
    s_add_u32 s12, s12, s3
    s_mul_hi_u32 s13, s12, {(1<<32)//36+1}   ; tile
    s_mul_i32 s14, s13, 36
    s_sub_u32 s14, s12, s14              ; s
    v_and_b32 v5, 0x13, v3
    v_bfe_u32 v6, v3, 2, 1
    v_lshl_add_u32 v5, v6, 3, v5
    v_bfe_u32 v6, v3, 3, 1
    v_lshl_add_u32 v5, v6, 2, v5
    s_waitcnt lgkmcnt(0)
    s_mov_b32 s24, s4
    s_mov_b32 s25, s5
    s_mov_b32 s26, {576*1152}
    s_mov_b32 s27, 0x20000
    s_movk_i32 s28, 1152                 ; stride
    s_lshl_b32 s29, s14, 4
    s_mov_b32 s30, 8                     ; h multiplier
    s_movk_i32 s31, 2304                 ; A
    s_lshl_b32 s15, s13, 6
    s_mov_b32 s16, 32
    s_cmp_lt_u32 s13, 18
    s_cbranch_scc1 K1_pack_go
    s_cmp_ge_u32 s13, 20
    s_cbranch_scc1 K1_pack_wo
    s_cmp_eq_u32 s13, 18
    s_cselect_b32 s24, s6, s8
    s_cselect_b32 s25, s7, s9
    s_movk_i32 s26, {576*36}
    s_mov_b32 s28, 36
    s_movk_i32 s31, 72
    s_mov_b32 s15, 0
    s_mov_b32 s16, 18
    s_branch K1_pack_go
K1_pack_wo:
    s_mov_b32 s24, s10
    s_mov_b32 s25, s11
    s_sub_u32 s15, s15, {20*64}
    s_mul_i32 s29, s14, 18
    s_cmp_lt_u32 s14, 32
    s_cbranch_scc1 K1_pack_go
    s_mul_i32 s29, s14, 144
    s_sub_u32 s29, s29, {144*32-16}
    s_movk_i32 s30, 72
    s_movk_i32 s31, {18*1152}
K1_pack_go:
    v_mov_b32 v7, s29
    v_mad_u32_u24 v7, v4, s30, v7        ; row
    v_mul_u32_u24 v7, s28, v7
    v_lshl_add_u32 v7, v5, 1, v7
    v_cmp_gt_u32 vcc, s16, v5
    v_mov_b32 v8, 0x7fffffff
    s_add_u32 s17, s15, s28
    v_cndmask_b32 v7, v8, v7, vcc
    """)
    for jj in range(4):
        a(f"buffer_load_ushort v{10+2*jj}, v7, s[24:27], s15 offen")
        a(f"buffer_load_ushort v{11+2*jj}, v7, s[24:27], s17 offen")
        if jj < 3: a("s_add_u32 s15, s15, s31\ns_add_u32 s17, s17, s31")
    a(f"""
    s_lshl_b32 s12, s12, 10
    s_add_u32 s12, s12, {WS_WQKV:#x}
    v_lshl_add_u32 v9, v2, 4, s12
    s_waitcnt vmcnt(0)
    ; STAMP 1
    v_lshl_or_b32 v20, v11, 16, v10
    v_lshl_or_b32 v21, v13, 16, v12
    v_lshl_or_b32 v22, v15, 16, v14
    v_lshl_or_b32 v23, v17, 16, v16
    global_store_dwordx4 v9, v[20:23], s[20:21]
    s_endpgm
K1_zero:
    s_sub_u32 s3, s2, 108
    s_lshl_b32 s3, s3, 15
    s_add_u32 s3, s3, {WS_FLAG:#x}
    v_lshl_add_u32 v1, v0, 4, s3
    v_mov_b32 v4, 0
    v_mov_b32 v5, 0
    v_mov_b32 v6, 0
    v_mov_b32 v7, 0
    s_mov_b32 s4, 8
    s_waitcnt lgkmcnt(0)
K1_zloop:
    global_store_dwordx4 v1, v[4:7], s[20:21]
    v_add_u32 v1, 0x1000, v1
    s_sub_u32 s4, s4, 1
    s_cmp_lg_u32 s4, 0
    s_cbranch_scc1 K1_zloop
    s_endpgm
K1_warm:
    s_cmp_ge_u32 s2, {NWG}
    s_cbranch_scc1 K1_end
    s_load_dwordx4 s[4:7], s[0:1], {ARG['wg']}
    s_load_dwordx2 s[8:9], s[0:1], {ARG['wd']}
    s_load_dwordx2 s[24:25], s[0:1], {ARG['out']}
    v_lshlrev_b32 v1, 18, v0
    s_mov_b32 s22, 0x4500000
    s_mov_b32 s23, 0x20000
    s_mov_b32 s10, {576*4608*2}
    s_mov_b32 s11, 0x20000
    s_mov_b32 s14, {576*4608*2}
    s_mov_b32 s15, 0x20000
    s_mov_b32 s18, {576*4608*2}
    s_mov_b32 s19, 0x20000
    s_mov_b32 s26, {XBYTES}
    s_mov_b32 s27, 0x20000
    s_mov_b32 s3, 0x4000000
    s_getpc_b64 s[28:29]
K1_pc:
    s_add_u32 s28, s28, k2_qkv_kernel-K1_pc
    s_addc_u32 s29, s29, 0
    v_lshlrev_b32 v2, 7, v0
    v_min_u32 v2, CODE_END-k2_qkv_kernel-4, v2
    s_waitcnt lgkmcnt(0)
    s_mov_b32 s12, s4
    s_mov_b32 s13, s5
    s_mov_b32 s16, s6
    s_mov_b32 s17, s7
    buffer_load_dword v4, v1, s[8:11], 0 offen
    buffer_load_dword v5, v1, s[12:15], 0 offen
    buffer_load_dword v6, v1, s[16:19], 0 offen
    buffer_load_dword v7, v1, s[20:23], 0 offen
    buffer_load_dword v8, v1, s[20:23], s3 offen
    buffer_load_dword v9, v1, s[24:27], 0 offen
    global_load_dword v10, v2, s[28:29]
    s_waitcnt vmcnt(0)
K1_end:
    s_endpgm
    """)
    return a.text(), kernel_desc(NAME, 101, 32)
```

```python
from common import *
NAME = "k3_attn_kernel"
NWG = 256
LDS = KV_BYTES + 8 * 1024
LAUNCH = f"; @launch kernel={NAME} grid=({NWG},1,1) block=(512,1,1) lds={LDS}"
Q1, Q2 = 8, 12
SB = (16, 32)
P, O = 48, 56
KS = (72, 80)
VS = (88, 96)
R, T = 104, 112
RB = 132
WBYTES = 576 * 4608 * 2
WPBYTES = 16 * 972 * 1024

def rdK(t):
    k = KS[t % 2]; o = t * KV_TILE
    return [f"ds_read_b128 {vr(k)}, v1 offset:{o}", f"ds_read_b32 v{k+4}, v2 offset:{o+KV_K2}"]
def rdV(t):
    v = VS[t % 2]; o = t * KV_TILE + KV_V
    return [f"ds_read_b128 {vr(v)}, v3 offset:{o}", f"ds_read_b128 {vr(v+4)}, v3 offset:{o+608}"]
def M1(t): return f"v_mfma_f32_32x32x16_bf16 {vr(SB[t%2],16)}, {vr(KS[t%2])}, {vr(Q1)}, 0"
def M2(t): return f"v_mfma_f32_32x32x8_bf16 {vr(SB[t%2],16)}, {vr(KS[t%2]+4,2)}, {vr(Q2,2)}, {vr(SB[t%2],16)}"
def PV(t, b): return f"v_mfma_f32_32x32x16_bf16 {vr(O,16)}, {vr(VS[t%2]+4*b)}, {vr(P+4*b)}, {vr(O,16)}"

def step(t, extra=()):
    s = SB[t % 2]
    e = [f"v_exp_f32 v{s+i}, v{s+i}" for i in range(16)]
    c = [f"v_cvt_pk_bf16_f32 v{P+i}, v{s+2*i}, v{s+2*i+1}" for i in range(8)]
    L = ["s_waitcnt lgkmcnt(0)", M1(t + 1)] + e[0:4] + [PV(t - 1, 1)] + list(extra) + rdK(t + 2) + rdV(t + 1)
    L += e[4:8] + c[0:2] + [M2(t + 1)] + c[2:4] + e[8:12] + [PV(t, 0)] + e[12:16] + c[4:8]
    return L

class _N: n = 0
prep_setup = _N
STREAM = 972 * 1024
def magic(d): return (1 << 32) // d + 1
def prep_init(a):
    a(f"""
    s_lshl_b32 s33, s4, 2                       ; T0
    v_bfe_u32 v104, v0, 2, 2
    v_lshrrev_b32 v105, 4, v0
    s_cmp_ge_u32 s33, 5184
    s_cbranch_scc1 K3_pi_down
    s_cmp_ge_u32 s33, 2592
    s_cselect_b32 s16, s26, s24
    s_cselect_b32 s17, s27, s25
    s_cselect_b32 s35, 2592, 0
    s_cselect_b32 s37, 2048, 0
    s_sub_u32 s33, s33, s35
    s_mul_hi_u32 s34, s33, {magic(144)}         ; s
    s_mul_i32 s35, s34, 144
    s_sub_u32 s33, s33, s35                     ; Pg0
    s_lshl_b32 s35, s34, 12
    s_add_u32 s37, s37, s35                     ; + s*4096
    s_mul_i32 s34, s34, {32*9216}
    s_lshl_b32 s35, s33, 6
    s_add_u32 s34, s34, s35
    s_mov_b32 s36, {4*9216}
    v_and_b32 v4, 15, v0
    v_lshlrev_b32 v4, 4, v4
    v_mul_u32_u24 v106, 9216, v105
    v_add_u32 v4, v4, v106
    v_add_u32 v105, s33, v105                   ; Pg
    s_mov_b32 s35, {magic(9)}
    v_mul_hi_u32 v106, v105, s35                ; j
    v_mul_u32_u24 v107, 9, v106
    v_sub_u32 v105, v105, v107                  ; P
    s_mov_b32 s35, {STREAM}
    v_mul_lo_u32 v106, v106, s35
    v_mul_u32_u24 v105, {72*1024}, v105
    s_branch K3_pi_end
K3_pi_down:
    s_sub_u32 s33, s33, 5184
    s_mov_b32 s16, s28
    s_mov_b32 s17, s29
    s_mov_b32 s34, 0
    s_mov_b32 s37, {648*1024}
    s_movk_i32 s36, {4*1152}
    s_mov_b32 s35, {magic(18)}
    v_add_u32 v104, s33, v104                   ; T (source)
    v_mul_hi_u32 v106, v104, s35                ; kb
    v_mul_u32_u24 v107, 18, v106
    v_sub_u32 v104, v104, v107                  ; P'
    v_lshl_add_u32 v106, v106, 5, v105
    v_mul_u32_u24 v106, 1152, v106
    v_lshl_add_u32 v106, v104, 6, v106
    v_and_b32 v4, 3, v0
    v_lshl_add_u32 v4, v4, 4, v106
    v_add_u32 v105, s33, v105                   ; T (dest)
    v_mul_hi_u32 v106, v105, s35                ; kb
    v_mul_u32_u24 v107, 18, v106
    v_sub_u32 v105, v105, v107                  ; P'
    s_mov_b32 s35, {magic(9)}
    v_mul_hi_u32 v107, v106, s35                ; j
    v_mul_u32_u24 v104, 9, v107
    v_sub_u32 v104, v106, v104                  ; c
    v_cmp_le_u32 vcc, 9, v105
    v_subrev_u32 v108, 9, v105
    v_mov_b32 v109, 0
    v_cndmask_b32 v105, v105, v108, vcc         ; b9
    v_cndmask_b32 v109, v109, 2, vcc            ; 2*qq
    s_mov_b32 s35, {STREAM}
    v_and_b32 v120, 15, v0
    v_lshlrev_b32 v120, 4, v120
    """)
    for e, dst in ((1, 129), (0, 120)):
        a(f"""
    v_lshl_add_u32 v110, v105, 1, {e}
    v_cmp_le_u32 vcc, 9, v110
    v_subrev_u32 v111, 10, v110
    v_min_u32 v111, 8, v111
    v_addc_co_u32 v112, s[44:45], 0, v109, vcc  ; q
    v_cndmask_b32 v110, v110, v111, vcc         ; t
    v_sub_u32 v113, v107, v112
    v_and_b32 v113, 3, v113                     ; p = (j - q) & 3
    v_mul_u32_u24 v114, 3, v104
    v_add3_u32 v114, v114, v113, 8              ; 9 + 3c + p - 1
    v_cmp_eq_u32 vcc, 0, v113
    v_and_b32 v115, 0xfc, v107
    v_add_u32 v115, v115, v112                  ; stream = 4J + q
    v_cndmask_b32 v114, v114, v104, vcc         ; kpos
    v_mul_u32_u24 v114, 9, v114
    v_add_lshl_u32 v114, v114, v110, 10
    v_mul_lo_u32 v115, v115, s35
    v_add3_u32 v{dst}, v120, v114, v115
    """)
    a(f"""
    s_branch K3_pi_done
K3_pi_end:
    v_and_b32 v120, 15, v0
    v_lshlrev_b32 v120, 4, v120
    v_add3_u32 v120, v120, v105, v106
    v_add_u32 v129, 0x400, v120
K3_pi_done:
    """)
PREP_LOADS = [f"buffer_load_dwordx4 {vr(R)}, v4, s[16:19], s34 offen", "s_add_u32 s34, s34, s36",
              f"buffer_load_dwordx4 {vr(R+4)}, v4, s[16:19], s34 offen", "s_add_u32 s34, s34, s36"]

PROF_VGPR = 130
def gen():
    a = Asm()
    a(kernel_head(NAME))
    a(f"""
    s_cmp_ge_u32 s2, {NWG}
    s_cbranch_scc1 K3_end
    s_load_dwordx2 s[8:9], s[0:1], {ARG['ws']}
    s_load_dwordx4 s[24:27], s[0:1], {ARG['wg']}
    s_load_dwordx2 s[28:29], s[0:1], {ARG['wd']}
    v_lshrrev_b32 v2, 6, v0
    v_and_b32 v0, 63, v0                  ; lane
    v_readfirstlane_b32 s3, v2            ; wave
    v_lshlrev_b32 v7, 4, v0               ; lane*16
    s_mov_b32 s10, {WS_SIZE:#x}
    s_mov_b32 s11, 0x20000
    s_mov_b32 s14, {KV_BYTES}
    s_mov_b32 s15, 0x20000
    s_mov_b32 s18, {WBYTES}
    s_mov_b32 s19, 0x20000
    s_mov_b32 s22, {WPBYTES}
    s_mov_b32 s23, 0x20000
    s_and_b32 s4, s2, 7
    s_lshl_b32 s4, s4, 8
    s_and_b32 s5, s2, 0xf8
    s_add_u32 s4, s4, s5
    s_add_u32 s4, s4, s3
    s_lshl_b32 s5, s3, 10
    v_lshrrev_b32 v122, 5, v0             ; h
    v_and_b32 v123, 31, v0                ; m / head
    v_mul_u32_u24 v5, 36, v123
    v_lshl_add_u32 v6, v122, 4, v5        ; q offset
    v_lshl_add_u32 v5, v122, 30, v5
    s_mul_i32 s6, s4, 1152
    s_add_u32 s6, s6, {WS_Q:#x}
    s_waitcnt lgkmcnt(0)
    s_add_u32 s12, s8, {WS_KV:#x}
    s_addc_u32 s13, s9, 0
    s_add_u32 s20, s8, {WS_WP:#x}
    s_addc_u32 s21, s9, 0
    buffer_load_dwordx4 {vr(Q1)}, v6, s[8:11], s6 offen
    buffer_load_dword v{Q2}, v5, s[8:11], s6 offen offset:32
    s_mov_b32 m0, s5
    s_nop 0
    """)
    for r in range(3):
        a("buffer_load_dwordx4 v7, s[12:15], m0 offen lds")
        a("s_add_u32 m0, m0, 0x2000\ns_nop 0")
    prep_init(a)
    a(f"""
    s_add_u32 s7, s5, {KV_BYTES}
    v_add_u32 v5, s7, v7
    ; tr read addr: lane (G,i): row i/4 (256B rows), 64B tile G, 8B chunk 2*(i%4)+e
    v_bfe_u32 v6, v0, 2, 2
    v_lshlrev_b32 v6, 8, v6
    v_lshrrev_b32 v121, 4, v0
    v_lshl_add_u32 v6, v121, 6, v6
    v_and_b32 v121, 3, v0
    v_lshl_add_u32 v6, v121, 4, v6
    v_add_u32 v6, s7, v6
    s_add_u32 s41, s5, {18*8192}
    s_cmp_ge_u32 s3, 4
    s_cselect_b32 s41, 0x30000, s41
    v_mov_b32 v{KS[0]+5}, 0x3f803f80
    v_mov_b32 v{KS[1]+5}, 0x3f803f80
    v_mul_u32_u24 v124, 19, v122
    v_add_lshl_u32 v124, v124, v123, 4
    v_add_u32 v125, 0x30000, v124
    v_cmp_gt_u32 vcc, 19, v123
    s_mov_b32 s31, 0
    s_mov_b32 s40, 1
    v_cndmask_b32 v124, v125, v124, vcc
    ; STAMP 1
    s_waitcnt vmcnt(0)
    s_barrier
    ; STAMP 2
K3_maxpass:
    v_mov_b32 v1, v7
    v_lshlrev_b32 v2, 2, v123
    v_mov_b32 v{Q2+1}, 0
    v_mov_b32 v126, 0xff800000
K3_maxloop:
    """)
    for l in rdK(0): a(l)
    a(f"""
    v_add_u32 v1, {KV_TILE}, v1
    v_add_u32 v2, {KV_TILE}, v2
    s_sub_u32 s40, s40, 1
    s_cmp_lg_u32 s40, 0
    s_waitcnt lgkmcnt(0)
    {M1(0)}
    {M2(0)}
    s_nop 11
    """)
    for i in range(8):
        a(f"v_max3_f32 v126, v{SB[0]+2*i}, v{SB[0]+2*i+1}, v126")
    a(f"""
    s_cbranch_scc1 K3_maxloop
    v_mov_b32 v127, v126
    v_mov_b32 v1, v7
    v_lshlrev_b32 v2, 2, v123
    v_permlane32_swap_b32 v126, v127
    v_mov_b32 v3, v124
    v_max_f32 v126, v126, v127
    """)
    for l in rdK(0) + rdK(1) + rdV(0): a(l)
    a(f"""
    v_sub_f32 v126, 0, v126               ; -m
    v_cvt_pk_bf16_f32 v127, v126, v126
    v_and_b32 v127, 0xffff0000, v127      ; hi
    v_sub_f32 v126, v126, v127            ; r1
    v_cvt_pk_bf16_f32 v125, v127, v126
    v_and_b32 v127, 0xffff0000, v125      ; mid
    v_sub_f32 v126, v126, v127            ; r2
    v_cvt_pk_bf16_f32 v126, v126, 0       ; (lo, 0)
    v_cmp_gt_u32 vcc, 32, v0
    """)
    for i in range(16): a(f"v_mov_b32 v{O+i}, 0")
    a(f"v_cndmask_b32 v{Q2+1}, v126, v125, vcc")
    for i in range(4): a(f"v_mov_b32 v{P+4+i}, 0\nv_mov_b32 v{VS[1]+4+i}, 0")
    a(f"""
    s_lshl_b32 s30, s31, 2
    s_max_u32 s30, s30, 3
    s_cmp_lg_u32 s31, 0
    s_waitcnt lgkmcnt(0)
    {M1(0)}
    {M2(0)}
    s_nop 8
    ; STAMP 3
    ; CSTAMP 13
    s_cbranch_scc1 K3_loop
    """)
    def iteration(first):
        nr = 3
        for t in range(16):
            extra = []
            if first and t < 12:
                for _ in range(2 if t % 3 == 0 else 1):
                    if nr == 18: extra += ["s_mov_b32 m0, s41", "s_nop 0"]
                    extra += ["buffer_load_dwordx4 v7, s[12:15], m0 offen lds"]
                    if nr < 17: extra += ["s_add_u32 m0, m0, 0x2000", "s_nop 0"]
                    nr += 1
                if t == 7:
                    extra += ["; STAMP 7", f"s_waitcnt vmcnt({nr - 6 + 2})", "; STAMP 8", "s_barrier", "; STAMP 9"]
            if t == 14:
                extra = (["; STAMP 10", "s_waitcnt vmcnt(5)", "; STAMP 11"] if first else ["s_waitcnt vmcnt(0)"]) + [f"ds_write_b128 v5, {vr(R)}",
                         f"ds_read_b64_tr_b16 {vr(T,2)}, v6", f"ds_read_b64_tr_b16 {vr(T+4,2)}, v6 offset:8",
                         f"ds_write_b128 v5, {vr(R+4)}",
                         f"ds_read_b64_tr_b16 {vr(T+2,2)}, v6", f"ds_read_b64_tr_b16 {vr(T+6,2)}, v6 offset:8"]
            if t == 15:
                extra = [f"buffer_store_dwordx4 {vr(T)}, v120, s[20:23], s37 offen sc1",
                         f"buffer_store_dwordx4 {vr(T+4)}, v129, s[20:23], s37 offen sc1",
                         "s_add_u32 s37, s37, 256"]
            for l in step(t, extra): a(l)
            if t == 1:
                for l in PREP_LOADS: a(l)
            if first and t == 12:
                a("s_mul_i32 s33, s4, 5120\n" + f"s_add_u32 s33, s33, {WS_PART:#x}\ns_add_u32 s35, s33, 0x1000")
                for i in range(4): a(f"v_mov_b32 v{T+i}, -1")
                for i in range(4): a(f"buffer_store_dwordx4 {vr(T)}, v7, s[8:11], s33 offen offset:{i*1024} sc1")
                a(f"buffer_store_dwordx4 {vr(T)}, v7, s[8:11], s35 offen sc1")
        assert (not first) or nr == 19
        a(f"""
        v_add_u32 v1, {16*KV_TILE}, v1
        v_add_u32 v2, {16*KV_TILE}, v2
        v_add_u32 v3, {16*KV_TILE}, v3
        """)
    iteration(True)
    a("""
    ; STAMP 4
    s_barrier
    ; STAMP 5
.p2align 3
K3_loop:
    """)
    iteration(False)
    a(f"""
    s_sub_u32 s30, s30, 1
    s_cmp_lg_u32 s30, 0
    s_cbranch_scc1 K3_loop
    {PV(15, 1)}
    ; STAMP 6
    ; CSTAMP 14
    s_lshr_b32 s5, s4, 5
    s_mul_i32 s5, s5, 36864
    s_and_b32 s6, s4, 31
    s_lshl_b32 s6, s6, 4
    s_add_u32 s5, s5, s6
    s_add_u32 s5, s5, {WS_O:#x}
    v_lshlrev_b32 v16, 10, v123
    v_lshl_add_u32 v16, v122, 9, v16
    v_lshrrev_b32 v17, 2, v123
    v_lshlrev_b32 v17, 9, v17
    v_and_b32 v18, 3, v123
    v_lshl_add_u32 v17, v18, 2, v17
    v_lshl_add_u32 v17, v122, 30, v17
    v_add_u32 v17, 0x8000, v17
    v_mov_b32 v18, v{O+10}
    v_mov_b32 v19, v{O+10}
    v_mul_f32 v20, 0, v{O}
    """)
    for i in range(1, 10): a(f"v_fmac_f32 v20, 0, v{O+i}")
    a(f"""
    v_permlane32_swap_b32 v18, v19
    v_add_f32 v20, v20, v18
    v_rcp_f32 v18, v18
    v_cmp_nlt_f32 vcc, v20, v128
    s_cmp_lg_u32 s31, 0
    s_cbranch_scc1 K3_fin
    s_cbranch_vccz K3_fin
    s_mov_b32 s31, 1
    s_mov_b32 s40, 64
    s_mov_b32 s37, 0x7fff0000
    s_branch K3_maxpass
K3_fin:
    """)
    for i in range(10): a(f"v_mul_f32 v{O+i}, v18, v{O+i}")
    for i in range(5): a(f"v_cvt_pk_bf16_f32 v{24+i}, v{O+2*i}, v{O+2*i+1}")
    a(f"""
    buffer_store_dwordx4 v[24:27], v16, s[8:11], s5 offen
    buffer_store_dword v28, v17, s[8:11], s5 offen
K3_end:
    s_endpgm
    """)
    t = a.text().replace("    v_mov_b32 v%d, 0x3f803f80\n" % (KS[0]+5), "    v_mov_b32 v%d, 0x3f803f80\n    v_mov_b32 v128, 0x71800000\n" % (KS[0]+5), 1)
    return t, kernel_desc(NAME, 132, 48)
```

```python
from common import *
NAME = "k5_ffn_kernel"
NWG = 256
SS = 36864
LDS_AB = 4 * SS
LDS = LDS_AB + 5 * 1024
LAUNCH = f"; @launch kernel={NAME} grid=({NWG},1,1) block=(256,1,1) lds={LDS}"
X = 112
ACC = (48, 80)
HB = 8
FR = 80
NR = 12
PF = 8
BASE = (4, 5, 6, 7)
TMP = 8
STREAM = 972 * 1024

def mfma(acc, a_, b_, first):
    return f"v_mfma_f32_16x16x32_bf16 {vr(acc)}, {a_}, {b_}, {'0' if first else vr(acc)}"

def interleave(mf, fill, maxper=2):
    n = len(mf)
    out = []
    gaps = [[] for _ in range(n)]
    cnt = [len(mf[(i + 1) % n][1]) if i + 1 < n else 0 for i in range(n)]
    for i in range(n): cnt[i] += len(mf[i][2])
    g = 0
    for (lo, item) in fill:
        g = max(g, lo)
        while g < n - 1 and cnt[g] >= maxper: g += 1
        gaps[g].append(item); cnt[g] += 1
    for i in range(n):
        out += mf[i][1] + [mf[i][0]] + mf[i][2] + gaps[i]
    return out

def rd(t, basefn, per):
    r = FR + (t % NR) * 4
    b, off = basefn(t)
    return f"ds_read_b128 {ar(r)}, v{b} offset:{off}"

def dma_items(pos_imm, dyn=False):
    it = []
    for k in range(9):
        g = k // 4
        if dyn: it.append(f"s_mov_b32 m0, s{27+g}")
        else: it.append(f"s_add_u32 m0, s20, {pos_imm + g*4096}")
        it.append(f"buffer_load_dwordx4 v1, s[12:15], s{24+g} offen offset:{(k%4)*1024} lds")
    return it
ADV = [f"s_add_u32 s{24+g}, s{24+g}, {SS}" for g in range(3)]

def epi1(acc):
    it = []
    for rt in range(2):
        for e in range(2):
            g = acc + ((0 * 2 + e) * 2 + rt) * 4; u = acc + ((1 * 2 + e) * 2 + rt) * 4
            for i in range(4): it.append(f"v_max_f32 v{g+i}, 0, v{g+i}")
            for i in range(4): it.append(f"v_mul_f32 v{g+i}, v{g+i}, v{u+i}")
            for i in range(2): it.append(f"v_cvt_pk_bf16_f32 v{TMP+rt*4+e*2+i}, v{g+2*i}, v{g+2*i+1}")
        it.append(f"buffer_store_dwordx4 {vr(TMP+rt*4)}, v1, s[8:11], s41 offen offset:{rt*1024} sc1")
    for q in range(4):
        it.append(["s_set_gpr_idx_on s30, gpr_idx(DST)", f"v_accvgpr_write_b32 a{2*q}, v{TMP+2*q}", f"v_accvgpr_write_b32 a{2*q+1}, v{TMP+2*q+1}", "s_set_gpr_idx_off"])
    it += ["s_add_u32 s30, s30, 8", "s_add_u32 s41, s41, 0x800"]
    return it
FLAG_ST = ["v_mov_b32 v19, 9", "buffer_store_dword v19, v18, s[8:11], s46 offen sc1"]
FLAG_LD = ["buffer_load_dwordx4 v[20:23], v24, s[8:11], s45 offen sc1"]
def nvm(lines): return sum(1 for l in lines if l.startswith(("buffer_", "global_")))
def check(n, need):
    return [f"K5_chk{n}:", "v_min_i32 v25, v20, v21", "v_min3_i32 v25, v22, v23, v25", f"v_cmp_gt_i32 vcc, {need}, v25",
            f"s_cbranch_vccz K5_ok{n}", "s_sleep 2"] + FLAG_LD + ["s_waitcnt vmcnt(0)", f"s_branch K5_chk{n}", f"K5_ok{n}:"]

def flat(L):
    o = []
    for x in L:
        if isinstance(x, list): o += x
        else: o.append(x)
    return o

def spread(items, lo, hi):
    n = len(items)
    return [(lo + (hi - lo) * i // max(n, 1), it) for i, it in enumerate(items)]

def merge(*ls):
    return sorted(sum(ls, []), key=lambda x: x[0])

def chunk(half):
    acc = ACC[half]
    def basefn(t):
        t %= 144
        t2 = (half * 72 + t) % 144
        return BASE[t2 // 36], (t2 % 36) * 1024
    out = []
    for sub in range(2):
        pos = 2 * half + sub
        mf = []
        for ks in range(9):
            s = sub * 9 + ks
            for f in range(4):
                t = s * 4 + f
                for rt in range(2):
                    pre = []; post = []
                    if rt == 0 and f % 2 == 0: pre = [f"s_waitcnt lgkmcnt({PF-2})"]
                    if rt == 0: post = [rd(t + PF, basefn, 72)]
                    mf.append((mfma(acc + (f * 2 + rt) * 4, ar(FR + (t % NR) * 4), vr(X + (2 * s + rt) * 4), s == 0), pre, post))
        d = dma_items(((pos + 1) % 4) * SS)
        fill = spread(d, 1, 66) + [(67, x) for x in ADV]
        if sub == 0:
            fill = merge(fill, spread(epi1(ACC[1 - half]), 6, 70))
            if half == 1:
                cond = ["s_cmp_eq_u32 s30, 48", "s_cselect_b32 s52, s46, s54", "buffer_store_dword v19, v18, s[8:11], s52 offen sc1",
                        "s_cmp_eq_u32 s30, 64", "s_cselect_b32 s53, s45, s54", "buffer_load_dwordx4 v[20:23], v24, s[8:11], s53 offen sc1"]
                fill = [(0, cond[:3]), (0, cond[3:])] + fill
        fill = fix_m0(fill)
        body = flat(interleave(mf, fill))
        out += body + ["s_mov_b32 s20, s40", f"s_waitcnt vmcnt({nvm(body)})", "s_barrier"]
    return out

def fix_m0(fill):
    res = []; pend = []; inpair = False
    for lo, it in fill:
        if isinstance(it, list) and inpair:
            pend.append((lo, it)); continue
        res.append((lo, it))
        if isinstance(it, str) and ' m0, ' in it: inpair = True
        if isinstance(it, str) and it.endswith(' lds'):
            inpair = False
            res += pend; pend = []
    return res

A2 = 112
BR = 128
def breg(kpos, rt):
    if kpos < 9: return ar(HB + (2 * kpos + rt) * 4)
    return ar(BR + ((kpos - 9) % 16) * 8 + rt * 4)
def bloads(kpos):
    n = kpos - 9
    c, p = divmod(n, 3)
    it = [f"buffer_load_dwordx4 {breg(kpos, rt)}, v1, s[8:11], s{42+p} offen offset:{(c%2)*2048 + rt*1024} sc1" for rt in range(2)]
    if c % 2 == 1: it.append(f"s_add_u32 s{42+p}, s{42+p}, 0x1000")
    return it

def phase2(pre):
    out = []
    for i in range(9):
        ss = 18 + i
        mf = []
        def order(ii, t):
            return divmod(t, 9) if ii < 8 else (t % 4, t // 4)
        def basefn(t):
            ii = i + t // 36
            kk_, t9_ = order(ii, t % 36)
            return BASE[(18 + ii + 2) % 4], (kk_ * 9 + t9_) * 1024
        for t in range(36):
            kk, t9 = order(i, t)
            kpos = 4 * i + kk
            for rt in range(2):
                pre_ = []; post = []
                last = (i == 8)
                if rt == 0 and t % 2 == 0:
                    pre_ = [f"s_waitcnt lgkmcnt({min(PF - 2, max(0, 36 - t - 2)) if last else PF - 2})"]
                if rt == 0 and not (last and t + PF >= 36): post = [rd(t + PF, basefn, 36)]
                mf.append((mfma(A2 + (2 * t9 + rt) * 4, ar(FR + (t % NR) * 4), breg(kpos, rt), kpos == 0), pre_, post))
        fill = []
        if ss + 3 <= 26:
            fill += spread(dma_items(((ss + 3) % 4) * SS), 1, 66) + [(67, x) for x in ADV]
        bl = []
        for kpos in range(4 * (i + 2), 4 * (i + 2) + 4):
            if 9 <= kpos < 36: bl += bloads(kpos)
        fill = merge(fill, spread(bl, 3, 64))
        if i == 2: fill = merge([(0, x) for x in FLAG_ST], fill)
        if i == 3: fill = merge([(30, x) for x in FLAG_LD], fill)
        if i == 7: fill = merge(fill, spread(reduce_prefetch(), 3, 60))
        if i == 8:
            for p in range(3): fill = merge(fill, spread(epi_pair(p), 16 * p + 16 + 6, 16 * p + 16 + 16))
        body = flat(interleave(mf, fill))
        n = nvm(body) + (nvm(pre) if i == 0 else 0)
        if i == 3:
            k = body.index(FLAG_LD[0]); n = nvm(body[k + 1:])
        out += body
        if i <= 7: out += [f"s_waitcnt vmcnt({n})"]
        if i <= 6: out += ["s_barrier"]
        if i == 3: out += check(2, 9)
    return out

def epi_pair(p):
    it = []
    for rt in range(2):
        d = 48 + (rt * 4 + p) * 4
        for e in range(2):
            c = A2 + (2 * (2 * p + e) + rt) * 4
            for i in range(2): it.append(f"v_cvt_pk_bf16_f32 v{d+e*2+i}, v{c+2*i}, v{c+2*i+1}")
        for i in range(4): it.append(f"v_min_u32 v{d+i}, -2, v{d+i}")
        it.append(f"buffer_store_dwordx4 {vr(d)}, v1, s[16:19], s{32+rt} offen offset:{p*1024} sc1")
    return it
def final_epi():
    it = epi_pair(3)
    for rt in range(2):
        c = A2 + (16 + rt) * 4
        for i in range(2): it.append(f"v_cvt_pk_bf16_f32 v{80+2*rt+i}, v{c+2*i}, v{c+2*i+1}")
    for i in range(4): it.append(f"v_min_u32 v{80+i}, -2, v{80+i}")
    it.append(f"buffer_store_dwordx4 v[80:83], v1, s[8:11], s35 offen sc1")
    return it

RX, RG, RP, RO = 184, 196, 112, 48
WS_SG = WS_PART + 4 * XBYTES
def reduce_prefetch():
    return [f"buffer_load_dwordx4 {vr(RX)}, v1, s[8:11], s56 offen",
            f"buffer_load_dwordx4 {vr(RX+4)}, v1, s[8:11], s56 offen offset:1024",
            f"buffer_load_dwordx2 {vr(RX+8,2)}, v1, s[8:11], s57 offen",
            f"s_add_u32 s57, s57, {18*1024}",
            f"buffer_load_dwordx2 {vr(RX+10,2)}, v1, s[8:11], s57 offen",
            f"buffer_load_dwordx4 {vr(RG)}, v26, s[8:11], s58 offen",
            f"buffer_load_dwordx4 {vr(RG+4)}, v26, s[8:11], s58 offen offset:16",
            f"buffer_load_dwordx4 {vr(RG+8)}, v26, s[8:11], s58 offen offset:128",
            f"buffer_load_dwordx4 {vr(RG+12)}, v26, s[8:11], s58 offen offset:144",
            f"buffer_load_dwordx4 {vr(RG+16)}, v26, s[8:11], s59 offen"]
def final_reduce():
    it = [f"s_add_u32 s56, s56, {WS_PART - WS_X1}"]
    for J in range(1, 4):
        it += [f"s_add_u32 s{40+J}, s56, {J*XBYTES}", f"s_add_u32 s{50+J}, s34, {J*0x40000}"]
    it += ["; STAMP 9", "K5_chk3:"]
    for J in range(4):
        b = RP + 12 * J
        sa = 56 if J == 0 else 40 + J; sb = 34 if J == 0 else 50 + J
        it += [f"buffer_load_dwordx4 {vr(b)}, v1, s[8:11], s{sa} offen sc1",
               f"buffer_load_dwordx4 {vr(b+4)}, v1, s[8:11], s{sa} offen offset:1024 sc1",
               f"buffer_load_dwordx4 {vr(b+8)}, v1, s[8:11], s{sb} offen sc1"]
    it += ["v_mov_b32 v25, 0"]
    for J in range(4):
        b = RP + 12 * J
        it.append(f"s_waitcnt vmcnt({9 - 3 * J})")
        for k in range(6): it.append(f"v_max3_u32 v25, v{b+2*k}, v{b+2*k+1}, v25")
    it += ["v_cmp_eq_u32 vcc, -1, v25", "s_cbranch_vccnz K5_chk3", "; STAMP 10"]
    S, U = 160, 216
    for J in range(4):
        b = RP + 12 * J
        d = S if J == 0 else U
        for k in range(12): it += [f"v_lshlrev_b32 v{d+2*k}, 16, v{b+k}", f"v_and_b32 v{d+2*k+1}, s23, v{b+k}"]
        if J:
            for k in range(12): it.append(f"v_pk_add_f32 {vr(S+2*k,2)}, {vr(S+2*k,2)}, {vr(U+2*k,2)}")
    for k in range(12): it += [f"v_lshlrev_b32 v{U+2*k}, 16, v{RX+k}", f"v_and_b32 v{U+2*k+1}, s23, v{RX+k}"]
    for k in range(12):
        g = RG + 2 * k if k < 10 else RG + 2 * (k - 2)
        it.append(f"v_pk_fma_f32 {vr(S+2*k,2)}, {vr(S+2*k,2)}, {vr(g,2)}, {vr(U+2*k,2)}")
    for k in range(12): it.append(f"v_cvt_pk_bf16_f32 v{RO+k}, v{S+2*k}, v{S+2*k+1}")
    it += [f"buffer_store_dwordx4 {vr(RO)}, v27, s[64:67], s62 offen",
           f"buffer_store_dwordx4 {vr(RO+4)}, v27, s[64:67], s62 offen offset:64",
           f"buffer_store_dwordx2 {vr(RO+8,2)}, v27, s[64:67], s63 offen",
           f"s_add_u32 s63, s63, {16*1152}",
           f"buffer_store_dwordx2 {vr(RO+10,2)}, v27, s[64:67], s63 offen"]
    return it
PROF_VGPR = 47
MAPS = {
 "2x16": """s_and_b32 s4, s2, 7
    s_lshl_b32 s4, s4, 1
    s_bfe_u32 s5, s2, 0x10003
    s_add_u32 s4, s4, s5
    s_lshr_b32 s5, s2, 4""",
 "4x8": """s_and_b32 s4, s2, 3
    s_lshl_b32 s4, s4, 2
    s_bfe_u32 s5, s2, 0x20003
    s_add_u32 s4, s4, s5
    s_bfe_u32 s5, s2, 0x10002
    s_lshl_b32 s5, s5, 3
    s_lshr_b32 s6, s2, 5
    s_add_u32 s5, s5, s6""",
 "8x4": """s_and_b32 s4, s2, 1
    s_lshl_b32 s4, s4, 3
    s_bfe_u32 s5, s2, 0x30003
    s_add_u32 s4, s4, s5
    s_bfe_u32 s5, s2, 0x20001
    s_lshl_b32 s5, s5, 2
    s_lshr_b32 s6, s2, 6
    s_add_u32 s5, s5, s6""",
}
import os
MAP = MAPS[os.environ.get("K5MAP", "8x4")]
def gen():
    a = Asm()
    a(kernel_head(NAME))
    ST = 48
    a(f"""
    s_cmp_ge_u32 s2, {NWG}
    s_cbranch_scc1 K5_end
    s_load_dwordx2 s[8:9], s[0:1], {ARG['ws']}
    s_load_dwordx2 s[64:65], s[0:1], {ARG['out']}
    s_mov_b32 s66, {XBYTES}
    s_mov_b32 s67, 0x20000
    v_lshrrev_b32 v2, 6, v0
    v_and_b32 v0, 63, v0
    v_readfirstlane_b32 s3, v2            ; wave
    v_lshlrev_b32 v1, 4, v0
    s_mov_b32 s10, {WS_SIZE:#x}
    s_mov_b32 s11, 0x20000
    s_mov_b32 s14, {STREAM}
    s_mov_b32 s15, 0x20000
    s_mov_b32 s18, {XBYTES}
    s_mov_b32 s19, 0x20000
    s_mov_b32 s23, 0xffff0000
    {MAP}
    s_lshl_b32 s5, s5, 2
    s_add_u32 s5, s5, s3
    s_mul_i32 s20, s3, 9216
    v_lshrrev_b32 v9, 4, v0               ; g
    v_lshlrev_b32 v10, 3, v0
    s_mul_i32 s6, s5, {32*288}
    s_add_u32 s6, s6, {WS_ST:#x}
    s_add_u32 s7, s6, {16*288}
    s_mul_i32 s34, s4, {STREAM}
    s_add_u32 s34, s34, {WS_WP:#x}
    s_lshr_b32 s47, s4, 2                 ; J
    s_and_b32 s48, s4, 3                  ; q
    s_mul_i32 s35, s47, {XBYTES}
    s_add_u32 s35, s35, {WS_PART:#x}
    s_lshl_b32 s36, s3, 10
    s_add_u32 m0, s36, {LDS_AB}
    s_add_u32 s36, s36, {WS_MOD + 3*2304}
    s_mul_i32 s37, s5, 36864
    s_waitcnt lgkmcnt(0)
    s_add_u32 s12, s8, s34
    s_addc_u32 s13, s9, 0
    s_add_u32 s16, s8, s35
    s_addc_u32 s17, s9, 0
    """)
    for rt in range(2):
        for k in range(9):
            if k == 8: a(f"s_add_u32 s{6+rt}, s{6+rt}, 0x1000")
            a(f"buffer_load_dwordx2 {vr(ST+18*rt+2*k,2)}, v10, s[8:11], s{6+rt} offen offset:{512*(k%8)}")
    a(f"""
    buffer_load_dwordx4 v1, s[8:11], s36 offen lds
    s_mov_b32 m0, {LDS_AB + 4096}
    s_movk_i32 s36, {WS_MOD + 3*2304 + 4096}
    buffer_load_dwordx4 v1, s[8:11], s36 offen lds
    s_add_u32 s36, s37, {WS_X1:#x}
    """)
    a(f"s_add_u32 s38, s36, {18*1024}")
    def xloads(lo, hi):
        for s_ in range(lo, hi):
            for rt in range(2):
                a(f"buffer_load_dwordx4 {vr(X+(2*s_+rt)*4)}, v1, s[8:11], s{36 if rt == 0 else 38} offen offset:{(s_%4)*1024}")
            if s_ % 4 == 3: a("s_add_u32 s36, s36, 0x1000\ns_add_u32 s38, s38, 0x1000")
    xloads(0, 12)
    a(f"""
    v_add_u32 v4, {2*SS}, v1
    v_add_u32 v5, {3*SS}, v1
    v_mov_b32 v6, v1
    v_add_u32 v7, {SS}, v1
    v_lshlrev_b32 v12, 5, v9
    v_add_u32 v12, {LDS_AB}, v12          ; ab lds addr
    s_lshr_b32 s49, s5, 2                 ; i
    s_lshl_b32 s50, s49, 2
    s_add_u32 s50, s50, s47               ; 4i + J
    s_lshl_b32 s45, s50, 2
    s_add_u32 s45, s45, s3
    s_lshl_b32 s45, s45, 7
    s_add_u32 s45, s45, {WS_FLAG:#x}
    s_lshl_b32 s46, s48, 2
    s_add_u32 s46, s46, s45
    s_lshl_b32 s50, s50, 4
    s_add_u32 s50, s50, s3                ; ((4i+J)*4)*4 + w
    s_mul_i32 s50, s50, 20480
    s_add_u32 s50, s50, {WS_HX:#x}
    s_mul_i32 s41, s48, {4*20480}
    s_add_u32 s41, s41, s50
    s_add_u32 s50, s50, 0x800
    s_add_u32 s42, s48, 1
    s_and_b32 s42, s42, 3
    s_mul_i32 s42, s42, {4*20480}
    s_add_u32 s42, s42, s50
    s_add_u32 s43, s48, 2
    s_and_b32 s43, s43, 3
    s_mul_i32 s43, s43, {4*20480}
    s_add_u32 s43, s43, s50
    s_add_u32 s44, s48, 3
    s_and_b32 s44, s44, 3
    s_mul_i32 s44, s44, {4*20480}
    s_add_u32 s44, s44, s50
    s_lshr_b32 s50, s48, 1
    s_mul_i32 s50, s50, 9216
    s_add_u32 s50, s50, s37
    s_and_b32 s51, s48, 1
    s_mul_i32 s32, s51, 5120
    s_add_u32 s32, s32, s50
    s_add_u32 s33, s32, {18*1024}
    s_lshl_b32 s34, s51, 3
    s_add_u32 s34, s34, s50
    s_add_u32 s34, s34, 0x1000
    s_add_u32 s35, s34, {18*1024}
    v_cmp_eq_u32 vcc, 0, v0
    v_mov_b32 v18, 0x7fffffff
    v_mov_b32 v19, 5
    s_mov_b32 s54, 0x7fff0000
    v_mov_b32 v24, 0
    v_cndmask_b32 v18, v18, v24, vcc
    s_lshr_b32 s55, s47, 1
    s_mul_i32 s55, s55, {18*1024}
    s_and_b32 s59, s47, 1
    s_lshl_b32 s56, s59, 11
    s_add_u32 s56, s56, s32
    s_sub_u32 s62, s56, s37
    s_add_u32 s56, s56, s55
    s_lshr_b32 s62, s62, 4
    s_lshl_b32 s58, s62, 1
    s_add_u32 s58, s58, {WS_MOD + 5*2304}
    s_lshr_b32 s63, s48, 1
    s_mul_i32 s63, s63, 576
    s_lshl_b32 s60, s51, 3
    s_add_u32 s63, s63, s60
    s_add_u32 s63, s63, 256
    s_lshl_b32 s59, s63, 1
    s_add_u32 s59, s59, {WS_MOD + 5*2304}
    s_add_u32 s56, s56, {WS_X1:#x}
    s_add_u32 s57, s34, {WS_X1:#x}
    s_mul_i32 s60, s5, {32*1152}
    s_add_u32 s63, s63, s60
    s_add_u32 s62, s62, s60
    s_add_u32 s62, s62, s55               ; 18*1024 == 16*1152
    v_lshlrev_b32 v26, 5, v9              ; g*32 (gb)
    v_and_b32 v27, 15, v0
    v_mul_u32_u24 v27, 1152, v27
    v_lshl_add_u32 v27, v9, 4, v27
    s_lshl_b32 s60, s49, 2
    s_add_u32 s60, s60, s48
    s_lshl_b32 s60, s60, 2
    s_add_u32 s60, s60, s3
    s_lshl_b32 s34, s60, 10
    s_add_u32 s34, s34, {WS_SG:#x}
    s_lshl_b32 s35, s47, 18
    s_add_u32 s35, s35, s34
    s_lshl_b32 s60, s60, 7
    s_add_u32 s60, s60, {WS_FLAG + 0x8000}
    s_lshl_b32 s61, s47, 2
    s_add_u32 s61, s61, s60
    s_cmp_eq_u32 s47, 3
    s_cselect_b32 s63, s63, s54
    s_cselect_b32 s57, s57, s54
    s_cselect_b32 s34, s34, 0x70000000
    ; prologue DMA cursor: wave w streams KBs w, w+4, ... (lds offset == stream offset)
    s_lshl_b32 s21, s3, 10
    ; STAMP 1
    s_waitcnt vmcnt(24)
    ; STAMP 2
    s_barrier
    """)
    for rt in range(2):
        b = ST + 18 * rt
        a(f"v_pk_add_f32 v[20:21], {vr(b,2)}, {vr(b+2,2)}")
        for i in range(2, 9): a(f"v_pk_add_f32 v[20:21], v[20:21], {vr(b+2*i,2)}")
        a(f"""
        v_mov_b32 v22, v20
        s_nop 1
        v_permlane32_swap_b32 v20, v22
        v_add_f32 v20, v20, v22
        v_mov_b32 v22, v20
        s_nop 1
        v_permlane16_swap_b32 v20, v22
        v_add_f32 v20, v20, v22
        v_mul_f32 v20, {-1.0/576!r}, v20      ; -mean
        v_mov_b32 v23, 0
        """)
        for i in range(9):
            a(f"v_fma_f32 v22, v{b+2*i}, v13, v20\nv_fmac_f32 v23, v22, v22") if False else None
            a(f"v_mov_b32 v22, v20\nv_fmac_f32 v22, 0x3d800000, v{b+2*i}\nv_fmac_f32 v23, v22, v22")
        a(f"""
        v_fmac_f32 v21, 0x41800000, v23
        v_mov_b32 v22, v21
        s_nop 1
        v_permlane32_swap_b32 v21, v22
        v_add_f32 v21, v21, v22
        v_mov_b32 v22, v21
        s_nop 1
        v_permlane16_swap_b32 v21, v22
        v_add_f32 v21, v21, v22
        v_mov_b32 v22, 0x3727c5ac
        v_fmac_f32 v22, {1.0/576!r}, v21
        v_rsq_f32 v{14+2*rt}, v22
        s_nop 0
        v_mul_f32 v{15+2*rt}, v20, v{14+2*rt}
        """)
    AB, U = 48, 64
    a(f"""
    s_mov_b32 s30, 0
    s_mov_b32 s31, 48
    ; STAMP 3
    ds_read_b128 {vr(AB)}, v12
    ds_read_b128 {vr(AB+4)}, v12 offset:16
    ds_read_b128 {vr(AB+8)}, v12 offset:2304
    ds_read_b128 {vr(AB+12)}, v12 offset:2320
    s_waitcnt vmcnt(12)
    """)
    def norm_body(label, ndma):
        def pdma():
            a("s_mov_b32 m0, s21\ns_add_u32 s21, s21, 0x1000\nbuffer_load_dwordx4 v1, s[12:15], m0 offen lds")
        a(f"{label}:\ns_set_gpr_idx_on s30, gpr_idx(SRC1)")
        for j in range(8):
            a(f"v_lshlrev_b32 v{U+2*j}, 16, v{X+j}\nv_and_b32 v{U+2*j+1}, s23, v{X+j}")
        a("s_set_gpr_idx_off\nv_add_u32 v12, 0x80, v12")
        if ndma > 0: pdma()
        for j in range(8):
            r = 14 + 2 * (j // 4)
            a(f"v_pk_fma_f32 {vr(U+2*j,2)}, {vr(U+2*j,2)}, {vr(r,2)}, {vr(r,2)} op_sel:[0,0,1] op_sel_hi:[1,0,1]")
        if ndma > 2: pdma()
        a("s_waitcnt lgkmcnt(0)")
        for j in range(8):
            jj = j % 4
            a(f"v_pk_fma_f32 {vr(U+2*j,2)}, {vr(U+2*j,2)}, {vr(AB+8+2*jj,2)}, {vr(AB+2*jj,2)}")
        if ndma > 1: pdma()
        a(f"""
        ds_read_b128 {vr(AB)}, v12
        ds_read_b128 {vr(AB+4)}, v12 offset:16
        ds_read_b128 {vr(AB+8)}, v12 offset:2304
        ds_read_b128 {vr(AB+12)}, v12 offset:2320
        s_set_gpr_idx_on s30, gpr_idx(DST)
        """)
        for j in range(8):
            a(f"v_cvt_pk_bf16_f32 v{X+j}, v{U+2*j}, v{U+2*j+1}")
        a(f"""
        s_set_gpr_idx_off
        s_add_u32 s30, s30, 8
        s_cmp_lt_u32 s30, s31
        s_cbranch_scc1 {label}
        """)
    xloads(12, 18)
    norm_body("K5_normA", 0)
    a("s_movk_i32 s31, 96\ns_waitcnt vmcnt(12)")
    norm_body("K5_normB", 3)
    a(f"""
    s_movk_i32 s31, 144
    s_waitcnt vmcnt(18)
    s_cmp_lt_u32 s30, 144
    s_cbranch_scc1 K5_normB
    s_mov_b32 s30, 0
    s_mov_b32 s40, s20
    s_add_u32 s24, s20, {3*SS}
    s_add_u32 s25, s24, 0x1000
    s_add_u32 s26, s24, 0x2000
    s_mov_b32 s20, {0x28000 - 3*SS}
    ; STAMP 5
    s_waitcnt lgkmcnt(0)
    s_barrier
    ; STAMP 6
    ; CSTAMP 13
    """)
    for t in range(PF):
        a(f"ds_read_b128 {ar(FR+4*t)}, v6 offset:{t*1024}")
    a("s_branch K5_p1_B\n.p2align 3\nK5_p1_A:")
    for l in chunk(0): a(l)
    a("K5_p1_B:")
    for l in chunk(1): a(l)
    a(f"""
    s_cmp_lt_u32 s30, 72
    s_cbranch_scc1 K5_p1_A
    ; STAMP 7
    s_nop 4
    """)
    pre = flat(epi1(ACC[1]))
    for l in pre + check(1, 5): a(l)
    for l in phase2(pre): a(l)
    a("""
    ; STAMP 8
    ; CSTAMP 14
    s_nop 7
    """)
    for l in final_epi(): a(l)
    for l in final_reduce(): a(l)
    a("""
K5_end:
    s_endpgm
    """)
    return a.text(), kernel_desc(NAME, 512, 72, accum=256)
```

```python
from common import *
import os
N_MOD, N_LN, N_PACK, N_WARM = 112, 128, 342, int(os.environ.get("NWARM", "16"))
NWG = N_MOD + N_LN + N_PACK + N_WARM
NAME = "k1_prep_kernel"
LAUNCH = f"; @launch kernel={NAME} grid=({NWG},1,1) block=(256,1,1) lds=2048"

PROF_VGPR = 100
def gen():
    a = Asm()
    a(kernel_head(NAME))
    a(f"""
    s_load_dwordx2 s[20:21], s[0:1], {ARG['ws']}
    s_mov_b32 s18, 0xffff0000
    s_cmp_ge_u32 s2, {N_MOD}
    s_cbranch_scc1 K1_not_mod
    """)
    C, W, A, U, T = 8, 44, 80, 88, 96
    a(f"""
    s_cmp_ge_u32 s2, 108
    s_cbranch_scc1 K1_zero
    s_load_dwordx4 s[4:7], s[0:1], {ARG['c']}
    v_and_b32 v1, 3, v0
    v_lshrrev_b32 v2, 2, v0
    v_lshlrev_b32 v3, 1, v2
    v_mul_u32_u24 v4, 6912, v2
    v_lshl_add_u32 v4, v1, 4, v4
    s_lshl_b32 s10, s2, 6
    s_mov_b32 s14, {576*6912}
    s_mov_b32 s15, 0x20000
    s_mov_b32 s16, {64*6912}
    s_waitcnt lgkmcnt(0)
    s_mov_b32 s12, s6
    s_mov_b32 s13, s7
    """)
    for i in range(9):
        a(f"buffer_load_dwordx4 {vr(W+4*i)}, v4, s[12:15], s10 offen")
        if i < 8: a("s_add_u32 s10, s10, s16")
        a(f"global_load_ushort v{C+4*i}, v3, s[4:5] offset:{128*i}")
    for i in range(8): a(f"v_mov_b32 v{A+i}, 0")
    a(f"""
    v_lshrrev_b32 v5, 4, v0
    v_lshlrev_b32 v5, 7, v5
    v_lshl_add_u32 v5, v1, 5, v5
    s_mov_b32 s11, 0
    s_waitcnt vmcnt(0)
    ; STAMP 1
K1_mod_loop:
    s_set_gpr_idx_on s11, gpr_idx(SRC1)
    v_lshlrev_b32 v{T}, 16, v{C}
    """)
    for j in range(4):
        a(f"v_lshlrev_b32 v{U+2*j}, 16, v{W+j}\nv_and_b32 v{U+2*j+1}, s18, v{W+j}")
    a(f"""
    s_set_gpr_idx_off
    v_mul_f32 v{T+2}, 0xbfb8aa3b, v{T}
    v_exp_f32 v{T+2}, v{T+2}
    s_add_u32 s11, s11, 4
    v_add_f32 v{T+2}, 1.0, v{T+2}
    v_rcp_f32 v{T+2}, v{T+2}
    s_cmp_lt_u32 s11, 36
    v_mul_f32 v{T+2}, v{T+2}, v{T}
    v_cvt_pk_bf16_f32 v{T+2}, v{T+2}, v{T+2}
    v_and_b32 v{T+2}, s18, v{T+2}
    """)
    for j in range(4):
        a(f"v_pk_fma_f32 {vr(A+2*j,2)}, {vr(U+2*j,2)}, {vr(T+2,2)}, {vr(A+2*j,2)} op_sel_hi:[1,0,1]")
    a("s_cbranch_scc1 K1_mod_loop")
    for rot in (4, 8):
        for j in range(8):
            a(f"v_add_f32_dpp v{A+j}, v{A+j}, v{A+j} row_ror:{rot} row_mask:0xf bank_mask:0xf")
    a(f"""
    ds_write_b128 v5, {vr(A)}
    ds_write_b128 v5, {vr(A+4)} offset:16
    v_and_b32 v6, 31, v0
    v_bfe_u32 v7, v0, 5, 1
    v_lshlrev_b32 v7, 10, v7
    v_lshl_add_u32 v7, v6, 2, v7
    s_mov_b32 s17, 0
    s_sub_u32 s3, s2, 18
    s_cmp_lt_u32 s3, 18
    s_cselect_b32 s17, 1.0, s17
    s_sub_u32 s3, s2, 72
    s_cmp_lt_u32 s3, 18
    s_cselect_b32 s17, 1.0, s17
    s_lshl_b32 s3, s2, 7
    v_lshl_add_u32 v6, v6, 2, s3
    s_waitcnt lgkmcnt(0)
    s_barrier
    ds_read2_b32 v[8:9], v7 offset0:0 offset1:32
    ds_read2_b32 v[10:11], v7 offset0:64 offset1:96
    ds_read2_b32 v[12:13], v7 offset0:128 offset1:160
    ds_read2_b32 v[14:15], v7 offset0:192 offset1:224
    v_cmp_gt_u32 vcc, 32, v0
    s_waitcnt lgkmcnt(0)
    v_pk_add_f32 v[8:9], v[8:9], v[10:11]
    v_pk_add_f32 v[12:13], v[12:13], v[14:15]
    v_pk_add_f32 v[8:9], v[8:9], v[12:13]
    v_add_f32 v8, v8, v9
    v_mov_b32 v9, v8
    s_nop 1
    v_permlane32_swap_b32 v8, v9
    v_add_f32 v8, v8, v9
    v_cvt_pk_bf16_f32 v8, v8, v8
    v_and_b32 v8, s18, v8
    v_add_f32 v8, s17, v8
    v_cvt_pk_bf16_f32 v8, v8, v8
    v_and_b32 v8, s18, v8
    s_and_saveexec_b64 s[22:23], vcc
    s_cbranch_execz K1_end
    global_store_dword v6, v8, s[20:21]
    s_endpgm
K1_not_mod:
    s_cmp_ge_u32 s2, {N_MOD+N_LN}
    s_cbranch_scc1 K1_pack
    """)
    X, Y = 8, 28
    a(f"""
    s_load_dwordx2 s[4:5], s[0:1], {ARG['x']}
    s_sub_u32 s3, s2, {N_MOD}
    s_and_b32 s6, s3, 7
    s_lshl_b32 s6, s6, 4
    s_lshr_b32 s3, s3, 3
    s_add_u32 s3, s3, s6
    v_lshrrev_b32 v1, 4, v0
    v_lshl_add_u32 v1, s3, 4, v1          ; row
    v_and_b32 v2, 15, v0                  ; c
    v_mul_u32_u24 v3, 1152, v1
    v_lshl_add_u32 v3, v2, 3, v3
    v_mov_b32 v7, 0x3f803f80
    v_mov_b32 v4, 0
    s_waitcnt lgkmcnt(0)
    """)
    for i in range(9):
        a(f"global_load_dwordx2 {vr(X+2*i,2)}, v3, s[4:5] offset:{128*i}")
    a(f"""
    v_lshrrev_b32 v5, 5, v1
    v_mul_u32_u24 v5, 36864, v5
    v_and_b32 v6, 31, v1
    v_lshl_add_u32 v5, v6, 4, v5
    v_lshrrev_b32 v6, 1, v2
    v_lshl_add_u32 v5, v6, 9, v5
    v_and_b32 v6, 1, v2
    v_lshl_add_u32 v5, v6, 3, v5
    v_add_u32 v5, {WS_XN:#x}, v5
    s_movk_i32 s16, 0x1000
    s_waitcnt vmcnt(0)
    ; STAMP 1
    """)
    for i in range(18):
        a(f"v_dot2c_f32_bf16 v4, v{X+i}, v7")
    for i in range(18):
        a(f"v_lshlrev_b32 v{Y+2*i}, 16, v{X+i}\nv_and_b32 v{Y+2*i+1}, s18, v{X+i}")
    for rot in (1, 2, 4, 8):
        a(f"v_add_f32_dpp v4, v4, v4 row_ror:{rot} row_mask:0xf bank_mask:0xf\ns_nop 1")
    a(f"v_mul_f32 v4, {-1.0/576!r}, v4\nv_mov_b32 v64, 0\nv_mov_b32 v65, 0")
    for i in range(18):
        a(f"v_pk_add_f32 {vr(Y+2*i,2)}, {vr(Y+2*i,2)}, v[4:5] op_sel_hi:[1,0]")
    for i in range(18):
        a(f"v_pk_fma_f32 v[64:65], {vr(Y+2*i,2)}, {vr(Y+2*i,2)}, v[64:65]")
    a("v_add_f32 v64, v64, v65\ns_nop 1")
    for rot in (1, 2, 4, 8):
        a(f"v_add_f32_dpp v64, v64, v64 row_ror:{rot} row_mask:0xf bank_mask:0xf\ns_nop 1")
    a(f"""
    v_mov_b32 v65, 0x3727c5ac
    v_fmac_f32 v65, {1.0/576!r}, v64
    v_rsq_f32 v64, v65
    s_nop 0
    """)
    for i in range(9):
        a(f"v_pk_mul_f32 {vr(Y+4*i,2)}, {vr(Y+4*i,2)}, v[64:65] op_sel_hi:[1,0]")
        a(f"v_pk_mul_f32 {vr(Y+4*i+2,2)}, {vr(Y+4*i+2,2)}, v[64:65] op_sel_hi:[1,0]")
        a(f"v_cvt_pk_bf16_f32 v{X+2*i}, v{Y+4*i}, v{Y+4*i+1}")
        a(f"v_cvt_pk_bf16_f32 v{X+2*i+1}, v{Y+4*i+2}, v{Y+4*i+3}")
        a(f"global_store_dwordx2 v5, {vr(X+2*i,2)}, s[20:21]")
        if i < 8: a("v_add_u32 v5, s16, v5")
    a("s_endpgm")
    a(f"""
K1_pack:
    s_cmp_ge_u32 s2, {N_MOD+N_LN+N_PACK}
    s_cbranch_scc1 K1_warm
    s_load_dwordx8 s[4:11], s[0:1], {ARG['wq']}
    v_lshrrev_b32 v1, 6, v0
    v_and_b32 v2, 63, v0
    v_readfirstlane_b32 s3, v1
    s_sub_u32 s12, s2, {N_MOD+N_LN}
    s_lshl_b32 s12, s12, 2
    v_and_b32 v3, 31, v2                 ; m
    v_lshrrev_b32 v4, 5, v2              ; h
    s_add_u32 s12, s12, s3
    s_mul_hi_u32 s13, s12, {(1<<32)//36+1}   ; tile
    s_mul_i32 s14, s13, 36
    s_sub_u32 s14, s12, s14              ; s
    v_and_b32 v5, 0x13, v3
    v_bfe_u32 v6, v3, 2, 1
    v_lshl_add_u32 v5, v6, 3, v5
    v_bfe_u32 v6, v3, 3, 1
    v_lshl_add_u32 v5, v6, 2, v5
    s_waitcnt lgkmcnt(0)
    s_mov_b32 s24, s4
    s_mov_b32 s25, s5
    s_mov_b32 s26, {576*1152}
    s_mov_b32 s27, 0x20000
    s_movk_i32 s28, 1152                 ; stride
    s_lshl_b32 s29, s14, 4
    s_mov_b32 s30, 8                     ; h multiplier
    s_movk_i32 s31, 2304                 ; A
    s_lshl_b32 s15, s13, 6
    s_mov_b32 s16, 32
    s_cmp_lt_u32 s13, 18
    s_cbranch_scc1 K1_pack_go
    s_cmp_ge_u32 s13, 20
    s_cbranch_scc1 K1_pack_wo
    s_cmp_eq_u32 s13, 18
    s_cselect_b32 s24, s6, s8
    s_cselect_b32 s25, s7, s9
    s_movk_i32 s26, {576*36}
    s_mov_b32 s28, 36
    s_movk_i32 s31, 72
    s_mov_b32 s15, 0
    s_mov_b32 s16, 18
    s_branch K1_pack_go
K1_pack_wo:
    ; 16x32 fragments: f' = f-720 -> (ct = f'/18, s = f'%18); lane (g, m16)
    s_mov_b32 s24, s10
    s_mov_b32 s25, s11
    s_sub_u32 s12, s12, 720
    s_mul_hi_u32 s13, s12, {(1<<32)//18+1}   ; ct
    s_mul_i32 s14, s13, 18
    s_sub_u32 s14, s12, s14                  ; s
    s_lshl_b32 s15, s13, 5
    v_and_b32 v5, 15, v2
    s_mul_hi_u32 s12, s13, {(1<<32)//9+1}
    s_mul_i32 s12, s12, 54
    s_mul_i32 s17, s13, 9
    s_add_u32 s12, s12, s17
    s_add_u32 s12, s12, s14                  ; half 0
    s_mov_b32 s29, 0
    s_cmp_lt_u32 s14, 9
    s_cbranch_scc1 K1_wo_d
    s_movk_i32 s29, 288
    s_sub_u32 s14, s14, 9                    ; ks
    s_mul_hi_u32 s12, s13, {(1<<32)//6+1}
    s_mul_i32 s12, s12, 129
    s_mul_i32 s17, s14, 6
    s_add_u32 s12, s12, s17
    s_add_u32 s12, s12, s13
    s_add_u32 s12, s12, 81
    s_cmp_lt_u32 s13, 24
    s_cbranch_scc1 K1_wo_d
    s_mul_hi_u32 s12, s13, {(1<<32)//3+1}
    s_mul_i32 s12, s12, 24
    s_mul_i32 s17, s14, 3
    s_add_u32 s12, s12, s17
    s_add_u32 s12, s12, s13
    s_add_u32 s12, s12, {540 - 8*27}
K1_wo_d:
    s_add_u32 s12, s12, 720
    v_lshrrev_b32 v4, 4, v2                  ; g
    s_add_u32 s29, s29, 16
    s_movk_i32 s30, 72
    s_movk_i32 s31, {18*1152}
    s_cmp_eq_u32 s14, 8
    s_cbranch_scc1 K1_pack_go
    s_mul_i32 s17, s14, 36
    s_add_u32 s29, s29, s17
    s_sub_u32 s29, s29, 16
    s_mov_b32 s30, 2
    s_movk_i32 s31, 2304
    v_lshrrev_b32 v6, 1, v4
    v_lshl_add_u32 v4, v4, 2, v6             ; (18*(g>>1) + 8*(g&1))/2 = 4g + (g>>1)
K1_pack_go:
    v_mov_b32 v7, s29
    v_mad_u32_u24 v7, v4, s30, v7        ; row
    v_mul_u32_u24 v7, s28, v7
    v_lshl_add_u32 v7, v5, 1, v7
    v_cmp_gt_u32 vcc, s16, v5
    v_mov_b32 v8, 0x7fffffff
    s_add_u32 s17, s15, s28
    v_cndmask_b32 v7, v8, v7, vcc
    """)
    for jj in range(4):
        a(f"buffer_load_ushort v{10+2*jj}, v7, s[24:27], s15 offen")
        a(f"buffer_load_ushort v{11+2*jj}, v7, s[24:27], s17 offen")
        if jj < 3: a("s_add_u32 s15, s15, s31\ns_add_u32 s17, s17, s31")
    a(f"""
    s_lshl_b32 s12, s12, 10
    s_add_u32 s12, s12, {WS_WQKV:#x}
    v_lshl_add_u32 v9, v2, 4, s12
    s_waitcnt vmcnt(0)
    ; STAMP 1
    v_lshl_or_b32 v20, v11, 16, v10
    v_lshl_or_b32 v21, v13, 16, v12
    v_lshl_or_b32 v22, v15, 16, v14
    v_lshl_or_b32 v23, v17, 16, v16
    global_store_dwordx4 v9, v[20:23], s[20:21]
    s_endpgm
K1_zero:
    s_sub_u32 s3, s2, 108
    s_lshl_b32 s3, s3, 15
    s_add_u32 s3, s3, {WS_FLAG:#x}
    v_lshl_add_u32 v1, v0, 4, s3
    v_mov_b32 v4, 0
    v_mov_b32 v5, 0
    v_mov_b32 v6, 0
    v_mov_b32 v7, 0
    s_mov_b32 s4, 8
    s_waitcnt lgkmcnt(0)
K1_zloop:
    global_store_dwordx4 v1, v[4:7], s[20:21]
    v_add_u32 v1, 0x1000, v1
    s_sub_u32 s4, s4, 1
    s_cmp_lg_u32 s4, 0
    s_cbranch_scc1 K1_zloop
    s_endpgm
K1_warm:
    s_cmp_ge_u32 s2, {NWG}
    s_cbranch_scc1 K1_end
    s_load_dwordx4 s[4:7], s[0:1], {ARG['wg']}
    s_load_dwordx2 s[8:9], s[0:1], {ARG['wd']}
    s_load_dwordx2 s[24:25], s[0:1], {ARG['out']}
    v_lshlrev_b32 v1, 18, v0
    s_mov_b32 s22, 0x4500000
    s_mov_b32 s23, 0x20000
    s_mov_b32 s10, {576*4608*2}
    s_mov_b32 s11, 0x20000
    s_mov_b32 s14, {576*4608*2}
    s_mov_b32 s15, 0x20000
    s_mov_b32 s18, {576*4608*2}
    s_mov_b32 s19, 0x20000
    s_mov_b32 s26, {XBYTES}
    s_mov_b32 s27, 0x20000
    s_mov_b32 s3, 0x4000000
    s_getpc_b64 s[28:29]
K1_pc:
    s_add_u32 s28, s28, k2_qkv_kernel-K1_pc
    s_addc_u32 s29, s29, 0
    v_lshlrev_b32 v2, 7, v0
    v_add_u32 v3, 0x8000, v2
    v_min_u32 v3, CODE_END-k2_qkv_kernel-4, v3
    s_waitcnt lgkmcnt(0)
    s_mov_b32 s12, s4
    s_mov_b32 s13, s5
    s_mov_b32 s16, s6
    s_mov_b32 s17, s7
    buffer_load_dword v4, v1, s[8:11], 0 offen
    buffer_load_dword v5, v1, s[12:15], 0 offen
    buffer_load_dword v6, v1, s[16:19], 0 offen
    buffer_load_dword v7, v1, s[20:23], 0 offen
    buffer_load_dword v8, v1, s[20:23], s3 offen
    buffer_load_dword v9, v1, s[24:27], 0 offen
    global_load_dword v10, v2, s[28:29]
    global_load_dword v11, v3, s[28:29]
    s_waitcnt vmcnt(0)
K1_end:
    s_endpgm
    """)
    return a.text(), kernel_desc(NAME, 101, 32)
```

```python
from common import *
NAME = "k3_attn_kernel"
NWG = 256
LDS_PROG = KV_BYTES + 8192
LDS = LDS_PROG + 64
OS = 1168
LDS_O = 0
LDS_PAR = 8 * OS
RS = 2320
LDS_R1 = LDS_PAR + 8192
assert LDS_R1 + 8 * RS <= 16 * KV_TILE
LDS_R2 = 16 * KV_TILE
W1, W2 = 132, 32
LAUNCH = f"; @launch kernel={NAME} grid=({NWG},1,1) block=(512,1,1) lds={LDS}"
Q1, Q2 = 8, 12
SB = (16, 32)
P, O = 48, 56
KS = (72, 80)
VS = (88, 96)
R, T = 104, 112
WBYTES = 576 * 4608 * 2
WPBYTES = 16 * 972 * 1024

def rdK(t):
    k = KS[t % 2]; o = t * KV_TILE
    return [f"ds_read_b128 {vr(k)}, v1 offset:{o}", f"ds_read_b32 v{k+4}, v2 offset:{o+KV_K2}"]
def rdV(t):
    v = VS[t % 2]; o = t * KV_TILE + KV_V
    return [f"ds_read_b128 {vr(v)}, v3 offset:{o}", f"ds_read_b128 {vr(v+4)}, v3 offset:{o+608}"]
def M1(t): return f"v_mfma_f32_32x32x16_bf16 {vr(SB[t%2],16)}, {vr(KS[t%2])}, {vr(Q1)}, 0"
def M2(t): return f"v_mfma_f32_32x32x8_bf16 {vr(SB[t%2],16)}, {vr(KS[t%2]+4,2)}, {vr(Q2,2)}, {vr(SB[t%2],16)}"
def PV(t, b): return f"v_mfma_f32_32x32x16_bf16 {vr(O,16)}, {vr(VS[t%2]+4*b)}, {vr(P+4*b)}, {vr(O,16)}"

def step(t, extra=()):
    s = SB[t % 2]
    e = [f"v_exp_f32 v{s+i}, v{s+i}" for i in range(16)]
    c = [f"v_cvt_pk_bf16_f32 v{P+i}, v{s+2*i}, v{s+2*i+1}" for i in range(8)]
    L = ["s_waitcnt lgkmcnt(0)", M1(t + 1)] + e[0:4] + [PV(t - 1, 1)] + list(extra) + rdK(t + 2) + rdV(t + 1)
    L += e[4:8] + c[0:2] + [M2(t + 1)] + c[2:4] + e[8:12] + [PV(t, 0)] + e[12:16] + c[4:8]
    return L

class _N: n = 0
prep_setup = _N
STREAM = 972 * 1024
def magic(d): return (1 << 32) // d + 1
def prep_init(a0, n):
    a = lambda t: a0(t.replace('K3_pi_', f'K3_pi{n}_'))
    a(f"""
    s_lshl_b32 s33, s39, 2                      ; T0
    v_bfe_u32 v104, v0, 2, 2
    v_lshrrev_b32 v105, 4, v0
    s_cmp_ge_u32 s33, 5184
    s_cbranch_scc1 K3_pi_down
    s_cmp_ge_u32 s33, 2592
    s_cselect_b32 s16, s26, s24
    s_cselect_b32 s17, s27, s25
    s_cselect_b32 s35, 2592, 0
    s_cselect_b32 s37, 2048, 0
    s_sub_u32 s33, s33, s35
    s_mul_hi_u32 s34, s33, {magic(144)}         ; s
    s_mul_i32 s35, s34, 144
    s_sub_u32 s33, s33, s35                     ; Pg0
    s_lshl_b32 s35, s34, 12
    s_add_u32 s37, s37, s35                     ; + s*4096
    s_mul_i32 s34, s34, {32*9216}
    s_lshl_b32 s35, s33, 6
    s_add_u32 s34, s34, s35
    s_mov_b32 s36, {4*9216}
    v_and_b32 v4, 15, v0
    v_lshlrev_b32 v4, 4, v4
    v_mul_u32_u24 v106, 9216, v105
    v_add_u32 v4, v4, v106
    v_add_u32 v105, s33, v105                   ; Pg
    s_mov_b32 s35, {magic(9)}
    v_mul_hi_u32 v106, v105, s35                ; j
    v_mul_u32_u24 v107, 9, v106
    v_sub_u32 v105, v105, v107                  ; P
    s_mov_b32 s35, {STREAM}
    v_mul_lo_u32 v106, v106, s35
    v_mul_u32_u24 v105, {72*1024}, v105
    s_branch K3_pi_end
K3_pi_down:
    s_sub_u32 s33, s33, 5184
    s_mov_b32 s16, s28
    s_mov_b32 s17, s29
    s_mov_b32 s34, 0
    s_mov_b32 s37, {648*1024}
    s_movk_i32 s36, {4*1152}
    s_mov_b32 s35, {magic(18)}
    v_add_u32 v104, s33, v104                   ; T (source)
    v_mul_hi_u32 v106, v104, s35                ; kb
    v_mul_u32_u24 v107, 18, v106
    v_sub_u32 v104, v104, v107                  ; P'
    v_lshl_add_u32 v106, v106, 5, v105
    v_mul_u32_u24 v106, 1152, v106
    v_lshl_add_u32 v106, v104, 6, v106
    v_and_b32 v4, 3, v0
    v_lshl_add_u32 v4, v4, 4, v106
    v_add_u32 v105, s33, v105                   ; T (dest)
    v_mul_hi_u32 v106, v105, s35                ; kb
    v_mul_u32_u24 v107, 18, v106
    v_sub_u32 v105, v105, v107                  ; P'
    s_mov_b32 s35, {magic(9)}
    v_mul_hi_u32 v107, v106, s35                ; j
    v_mul_u32_u24 v104, 9, v107
    v_sub_u32 v104, v106, v104                  ; c
    v_cmp_le_u32 vcc, 9, v105
    v_subrev_u32 v108, 9, v105
    v_mov_b32 v109, 0
    v_cndmask_b32 v105, v105, v108, vcc         ; b9
    v_cndmask_b32 v109, v109, 2, vcc            ; 2*qq
    s_mov_b32 s35, {STREAM}
    v_and_b32 v120, 15, v0
    v_lshlrev_b32 v120, 4, v120
    """)
    for e, dst in ((1, 129), (0, 120)):
        a(f"""
    v_mov_b32 v119, {252+e}
    v_lshl_add_u32 v110, v105, 1, {e}
    v_cmp_le_u32 vcc, 9, v110
    v_subrev_u32 v111, 10, v110
    v_min_u32 v111, 8, v111
    v_addc_co_u32 v112, s[44:45], 0, v109, vcc  ; q
    v_cndmask_b32 v110, v110, v111, vcc         ; t
    v_sub_u32 v113, v107, v112
    v_and_b32 v113, 3, v113                     ; p = (j - q) & 3
    v_mul_u32_u24 v114, 3, v104
    v_add3_u32 v114, v114, v113, 8              ; 9 + 3c + p - 1
    v_cmp_eq_u32 vcc, 0, v113
    v_and_b32 v115, 0xfc, v107
    v_add_u32 v115, v115, v112                  ; stream = 4J + q
    v_cndmask_b32 v114, v114, v104, vcc         ; kpos
    v_lshrrev_b32 v116, 2, v107                 ; J
    v_lshrrev_b32 v117, 1, v110                 ; pair
    v_sub_u32 v116, v117, v116
    v_subrev_u32 v116, 1, v116
    v_and_b32 v116, 3, v116                     ; rel
    v_lshl_add_u32 v117, v116, 1, {e}           ; 2*rel+e
    v_cmp_eq_u32 vcc, 8, v110
    v_mul_u32_u24 v118, 7, v114
    v_lshl_add_u32 v114, v114, 1, v119          ; 252 + e + 2*kpos
    v_cndmask_b32 v117, v117, 6, vcc
    v_cndmask_b32 v116, v116, 0, vcc
    v_add_u32 v118, v118, v117
    v_cmp_eq_u32 vcc, 3, v116
    s_nop 1
    v_cndmask_b32 v114, v118, v114, vcc
    v_lshlrev_b32 v114, 10, v114
    v_mul_lo_u32 v115, v115, s35
    v_add3_u32 v{dst}, v120, v114, v115
    """)
    a(f"""
    s_branch K3_pi_done
K3_pi_end:
    v_and_b32 v120, 15, v0
    v_lshlrev_b32 v120, 4, v120
    v_add3_u32 v120, v120, v105, v106
    v_add_u32 v129, 0x400, v120
K3_pi_done:
    """)
RA = 136
CTX = {"A": (132, 133, 134, 52, 53, RA), "B": (4, 120, 129, 34, 37, R)}
def p_loads(c):
    va, _, _, ss, _, r = CTX[c]
    return [f"buffer_load_dwordx4 {vr(r)}, v{va}, s[16:19], s{ss} offen", f"s_add_u32 s{ss}, s{ss}, s36",
            f"buffer_load_dwordx4 {vr(r+4)}, v{va}, s[16:19], s{ss} offen", f"s_add_u32 s{ss}, s{ss}, s36"]
def p_stage(c):
    r = CTX[c][5]
    return [f"ds_write_b128 v5, {vr(r)}", f"ds_read_b64_tr_b16 {vr(T,2)}, v6", f"ds_read_b64_tr_b16 {vr(T+4,2)}, v6 offset:8",
            f"ds_write_b128 v5, {vr(r+4)}", f"ds_read_b64_tr_b16 {vr(T+2,2)}, v6", f"ds_read_b64_tr_b16 {vr(T+6,2)}, v6 offset:8"]
def p_store(c):
    _, d0, d1, _, sd, _ = CTX[c]
    return [f"buffer_store_dwordx4 {vr(T)}, v{d0}, s[20:23], s{sd} offen sc1", f"buffer_store_dwordx4 {vr(T+4)}, v{d1}, s[20:23], s{sd} offen sc1",
            f"s_add_u32 s{sd}, s{sd}, 256"]
_lab = [0]
def only_old(L):
    _lab[0] += 1
    return ["s_cmp_ge_u32 s3, 4", f"s_cbranch_scc1 K3_oo{_lab[0]}"] + L + [f"K3_oo{_lab[0]}:"]

PROF_VGPR = 15
def wreg(f):
    return W1 + 4 * f if f < 31 else W2 + 4 * (f - 31)
def wo_load(f, reg):
    L = [f"buffer_load_dwordx4 {vr(reg)}, v7, s[8:11], s42 offen offset:{(f%4)*1024}"]
    if f % 4 == 3: L.append("s_add_u32 s42, s42, 0x1000")
    return L

class Track:
    def __init__(self, init=(), cap=63): self.q = list(init); self.cap = cap
    def issue(self, tag): self.q.append(tag)
    def need(self, tag):
        if tag not in self.q: return None
        k = len(self.q) - 1 - max(i for i, t in enumerate(self.q) if t == tag)
        k = min(k, self.cap)
        self.q = self.q[len(self.q) - k:] if k else []
        return k

NS = 54
def slot(k): return W1 + 4 * k if k < 31 else (128 if k == 31 else 40 + 4 * (k - 32))
ACCQ = (16, 20, 24, 28, 32, 36)
PX = slot(27)
XLOAD = [f"buffer_load_dwordx4 {vr(PX)}, v2, s[48:51], s6 offen", f"buffer_load_dwordx4 {vr(PX+4)}, v2, s[48:51], s6 offen offset:16"]

def proj1(a):
    vm = Track([("w", f) for f in range(NS)])
    lg = Track(cap=15)
    BQ = (8, 24, 28, 32, 36)
    def rdB(i):
        a(f"ds_read_b128 {vr(BQ[i%5])}, v1 offset:{LDS_O + (i%9)*64}"); lg.issue(("b", i))
    for i in range(4): rdB(i)
    for f in range(81):
        tl, s_ = divmod(f, 9)
        acc = ACCQ[tl % 2]
        if f + 4 < 81: rdB(f + 4)
        w = []
        n = vm.need(("w", f))
        if n is not None: w.append(f"vmcnt({n})")
        n = lg.need(("b", f))
        if n is not None: w.append(f"lgkmcnt({n})")
        if w: a("s_waitcnt " + " ".join(w))
        a(f"v_mfma_f32_16x16x32_bf16 {vr(acc)}, {vr(slot(f % NS))}, {vr(BQ[f%5])}, {'0' if s_ == 0 else vr(acc)}")
        for l in wo_load(f + NS, slot(f % NS)): a(l)
        vm.issue(("w", f + NS))
        if s_ == 4 and tl > 0:
            a(f"ds_write_b128 v5, {vr(ACCQ[(tl-1)%2])} offset:{(tl-1)*64}"); lg.issue(("r",))
    a(f"s_nop 7\nds_write_b128 v5, {vr(ACCQ[0])} offset:{8*64}")

def proj2(a, old):
    nt = 6 if old else 3
    lg = Track(cap=15)
    reg = (lambda i: slot((81 + i) % NS)) if old else (lambda i: slot(i))
    breg = (lambda k: 8 if k == 0 else reg(k + 1)) if old else (lambda k: 40 + 4 * k)
    def rdB(k):
        a(f"ds_read_b128 {vr(breg(k))}, v1 offset:{LDS_O + (9 + k)*64}"); lg.issue(("b", k))
    if old: rdB(0)
    else:
        for k in range(9): rdB(k)
    for i in range(9 * nt):
        k, tl = divmod(i, nt)
        n = lg.need(("b", k))
        if n is not None: a(f"s_waitcnt lgkmcnt({n})")
        a(f"v_mfma_f32_16x16x32_bf16 {vr(ACCQ[tl])}, {vr(reg(i))}, {vr(breg(k))}, {'0' if k == 0 else vr(ACCQ[tl])}")
        if old and i == 1:
            for l in XLOAD: a(l)
        if old and 2 <= i <= 9: rdB(i - 1)
    a("s_nop 7")
    for tl in range(nt): a(f"ds_write_b128 v6, {vr(ACCQ[tl])} offset:{tl*64}")

def allreduce(a, r, t):
    for rot in (1, 2, 4, 8):
        a(f"s_nop 1\nv_add_f32_dpp v{r}, v{r}, v{r} row_ror:{rot} row_mask:0xf bank_mask:0xf")
    for op in ("v_permlane16_swap_b32", "v_permlane32_swap_b32"):
        a(f"v_mov_b32 v{t}, v{r}\ns_nop 1\n{op} v{r}, v{t}\nv_add_f32 v{r}, v{r}, v{t}")

def tail(a):
    a("""
    s_cmp_ge_u32 s3, 4
    s_cbranch_scc1 K3_projy
    """)
    proj2(a, True)
    a("s_branch K3_ln\nK3_projy:")
    proj2(a, False)
    Y, U, Z, Y2, PG, PA, PB = 168, 48, 64, 80, 152, 112, 136
    PXr = [PX + k for k in range(8)]
    a(f"""
K3_ln:
    ; STAMP 2
    s_mul_i32 s33, s3, {RS}
    v_lshl_add_u32 v4, v0, 6, s33
    v_lshlrev_b32 v5, 6, v0
    s_mov_b64 exec, s[46:47]
    """)
    for k in range(4): a(f"ds_read_b128 {vr(PG+4*k)}, v5 offset:{LDS_PAR + 16*k}")
    for k in range(4): a(f"ds_read_b128 {vr(PB+4*k)}, v5 offset:{LDS_PAR + 2304 + 16*k}")
    for k in range(4): a(f"ds_read_b128 {vr(PA+4*k)}, v5 offset:{LDS_PAR + 4608 + 16*k}")
    for k in range(4): a(f"ds_read_b128 {vr(Y2+4*k)}, v4 offset:{LDS_R1 + 16*k}")
    a(f"""
    s_lshr_b32 s5, s4, 4
    s_mul_i32 s5, s5, {72*256}
    s_and_b32 s6, s4, 15
    s_lshl_b32 s6, s6, 4
    s_add_u32 s5, s5, s6
    s_add_u32 s6, s5, {WS_X1:#x}
    s_add_u32 s5, s5, {WS_O:#x}
    v_lshlrev_b32 v6, 9, v0
    s_mov_b32 s33, 0xffff0000
    s_waitcnt vmcnt(0)
    """)
    for k in range(8): a(f"v_lshlrev_b32 v{U+2*k}, 16, v{PXr[k]}\nv_and_b32 v{U+2*k+1}, s33, v{PXr[k]}")
    a(f"""
    s_mov_b64 exec, -1
    v_mov_b32 v8, 0
    v_mov_b32 v9, 0
    v_mov_b32 v10, 0
    v_mov_b32 v11, 0
    s_mov_b64 exec, s[46:47]
    ; STAMP 9
    s_waitcnt lgkmcnt(0)
    s_barrier
    ; STAMP 10
    """)
    for k in range(4): a(f"ds_read_b128 {vr(Y+4*k)}, v4 offset:{LDS_R2 + 16*k}")
    for k in range(8): a(f"v_pk_fma_f32 {vr(U+2*k,2)}, {vr(Y2+2*k,2)}, {vr(PG+2*k,2)}, {vr(U+2*k,2)}")
    a("s_waitcnt lgkmcnt(0)")
    for k in range(8): a(f"v_pk_fma_f32 {vr(Y+2*k,2)}, {vr(Y+2*k,2)}, {vr(PG+2*k,2)}, {vr(U+2*k,2)}")
    for k in range(8): a(f"v_cvt_pk_bf16_f32 v{Z+k}, v{Y+2*k}, v{Y+2*k+1}")
    a(f"""
    buffer_store_dwordx4 {vr(Z)}, v6, s[8:11], s6 offen
    buffer_store_dwordx4 {vr(Z+4)}, v6, s[8:11], s6 offen offset:256
    """)
    for k in range(8): a(f"v_lshlrev_b32 v{Y+2*k}, 16, v{Z+k}\nv_and_b32 v{Y+2*k+1}, s33, v{Z+k}")
    for k in range(8): a(f"v_pk_add_f32 v[8:9], v[8:9], {vr(Y+2*k,2)}")
    a("v_add_f32 v8, v8, v9\ns_mov_b64 exec, -1")
    allreduce(a, 8, 9)
    a("; STAMP 3")
    a(f"v_mul_f32 v8, {-1.0/576!r}, v8\ns_mov_b64 exec, s[46:47]")
    for k in range(8): a(f"v_pk_add_f32 {vr(Y+2*k,2)}, {vr(Y+2*k,2)}, v[8:9] op_sel_hi:[1,0]")
    for k in range(8): a(f"v_pk_fma_f32 v[10:11], {vr(Y+2*k,2)}, {vr(Y+2*k,2)}, v[10:11]")
    a("v_add_f32 v10, v10, v11\ns_mov_b64 exec, -1")
    allreduce(a, 10, 11)
    a(f"""
    v_mov_b32 v11, 0x3727c5ac
    v_fmac_f32 v11, {1.0/576!r}, v10
    v_rsq_f32 v10, v11
    s_mov_b64 exec, s[46:47]
    """)
    for k in range(8): a(f"v_pk_mul_f32 {vr(Y+2*k,2)}, {vr(Y+2*k,2)}, v[10:11] op_sel_hi:[1,0]")
    for k in range(8): a(f"v_pk_fma_f32 {vr(Y+2*k,2)}, {vr(Y+2*k,2)}, {vr(PA+2*k,2)}, {vr(PB+2*k,2)}")
    for k in range(8): a(f"v_cvt_pk_bf16_f32 v{Z+8+k}, v{Y+2*k}, v{Y+2*k+1}")
    a(f"""
    buffer_store_dwordx4 {vr(Z+8)}, v6, s[8:11], s5 offen
    buffer_store_dwordx4 {vr(Z+12)}, v6, s[8:11], s5 offen offset:256
    ; STAMP 4
    """)

def gen():
    a = Asm()
    a(kernel_head(NAME))
    a(f"""
    s_cmp_ge_u32 s2, {NWG}
    s_cbranch_scc1 K3_end
    s_load_dwordx2 s[8:9], s[0:1], {ARG['ws']}
    s_load_dwordx4 s[24:27], s[0:1], {ARG['wg']}
    s_load_dwordx2 s[28:29], s[0:1], {ARG['wd']}
    s_load_dwordx2 s[48:49], s[0:1], {ARG['x']}
    v_lshrrev_b32 v2, 6, v0
    v_and_b32 v0, 63, v0                  ; lane
    v_readfirstlane_b32 s3, v2            ; wave
    v_lshlrev_b32 v7, 4, v0               ; lane*16
    s_mov_b32 s10, {WS_SIZE:#x}
    s_mov_b32 s11, 0x20000
    s_mov_b32 s14, {KV_BYTES}
    s_mov_b32 s15, 0x20000
    s_mov_b32 s18, {WBYTES}
    s_mov_b32 s19, 0x20000
    s_mov_b32 s22, {WPBYTES}
    s_mov_b32 s23, 0x20000
    s_mov_b32 s50, {XBYTES}
    s_mov_b32 s51, 0x20000
    s_and_b32 s4, s2, 7
    s_lshl_b32 s4, s4, 8
    s_and_b32 s5, s2, 0xf8
    s_add_u32 s4, s4, s5
    s_add_u32 s4, s4, s3
    s_lshl_b32 s5, s3, 10
    s_sub_u32 s43, s4, s3
    s_mul_i32 s43, s43, 1152
    s_mul_i32 s6, s3, 144
    s_add_u32 s43, s43, s6
    s_add_u32 s43, s43, {WS_Q:#x}
    s_mov_b32 s31, 0
    s_mov_b32 s40, 1
    s_cmp_ge_u32 s3, 4
    s_cbranch_scc1 K3_restart
    s_setprio 1
K3_restart:
    v_lshrrev_b32 v122, 5, v0             ; h
    v_and_b32 v123, 31, v0                ; m / head
    v_and_b32 v5, 7, v0
    v_mul_u32_u24 v5, 1152, v5
    v_lshrrev_b32 v6, 3, v123
    v_mul_u32_u24 v6, 36, v6
    v_add_u32 v5, v5, v6
    v_lshl_add_u32 v6, v122, 4, v5        ; q offset
    v_lshl_add_u32 v5, v122, 30, v5
    s_waitcnt lgkmcnt(0)
    s_add_u32 s12, s8, {WS_KV:#x}
    s_addc_u32 s13, s9, 0
    s_add_u32 s20, s8, {WS_WP:#x}
    s_addc_u32 s21, s9, 0
    buffer_load_dwordx4 {vr(Q1)}, v6, s[8:11], s43 offen
    buffer_load_dword v{Q2}, v5, s[8:11], s43 offen offset:32
    s_mov_b32 m0, s5
    s_nop 0
    """)
    for r in range(3):
        a("buffer_load_dwordx4 v7, s[12:15], m0 offen lds")
        a("s_add_u32 m0, m0, 0x2000\ns_nop 0")
    _lab[0] = 0
    a("s_cmp_ge_u32 s3, 4\ns_cbranch_scc1 K3_noprep\ns_add_u32 s39, s4, s3")
    prep_init(a, 0)
    a("v_mov_b32 v132, v4\nv_mov_b32 v133, v120\nv_mov_b32 v134, v129\ns_mov_b32 s52, s34\ns_mov_b32 s53, s37\ns_add_u32 s39, s39, 1")
    prep_init(a, 1)
    a(f"""
K3_noprep:
    s_add_u32 s7, s5, {KV_BYTES}
    v_add_u32 v5, s7, v7
    ; tr read addr: lane (G,i): row i/4 (256B rows), 64B tile G, 8B chunk 2*(i%4)+e
    v_bfe_u32 v6, v0, 2, 2
    v_lshlrev_b32 v6, 8, v6
    v_lshrrev_b32 v121, 4, v0
    v_lshl_add_u32 v6, v121, 6, v6
    v_and_b32 v121, 3, v0
    v_lshl_add_u32 v6, v121, 4, v6
    v_add_u32 v6, s7, v6
    s_add_u32 s41, s5, {18*8192}
    s_cmp_ge_u32 s3, 4
    s_cselect_b32 s41, 0x30000, s41
    v_mov_b32 v{KS[0]+5}, 0x3f803f80
    v_mov_b32 v{KS[1]+5}, 0x3f803f80
    v_mov_b32 v128, 0x71800000
    v_mul_u32_u24 v124, 19, v122
    v_add_lshl_u32 v124, v124, v123, 4
    v_add_u32 v125, 0x30000, v124
    v_cmp_gt_u32 vcc, 19, v123
    s_lshl_b32 s33, s3, 2
    s_add_u32 s33, s33, {LDS_PROG}
    v_cndmask_b32 v124, v125, v124, vcc
    v_mov_b32 v121, s33
    v_mov_b32 v131, 0
    ds_write_b32 v121, v131
    ds_write_b32 v121, v131 offset:32
    s_mul_i32 s42, s3, {135*1024}
    s_mul_i32 s33, s3, {27*1024}
    s_add_u32 s33, s33, {(540 - 108)*1024}
    s_cmp_ge_u32 s3, 4
    s_cselect_b32 s42, s33, s42
    s_add_u32 s42, s42, {WS_WO:#x}
    s_cmp_eq_u32 s31, 0
    s_cbranch_scc1 K3_go
    s_mov_b32 s37, 0x7fff0000
    s_mov_b32 s53, 0x7fff0000
    s_mov_b32 s33, 15
K3_refill:
    buffer_load_dwordx4 v7, s[12:15], m0 offen lds
    s_add_u32 m0, m0, 0x2000
    s_sub_u32 s33, s33, 1
    s_cmp_lg_u32 s33, 0
    s_cbranch_scc1 K3_refill
    s_mov_b32 m0, s41
    s_nop 0
    buffer_load_dwordx4 v7, s[12:15], m0 offen lds
K3_go:
    ; STAMP 1
    s_waitcnt vmcnt(0) lgkmcnt(0)
    s_barrier
    ; STAMP 2
    v_mov_b32 v1, v7
    v_lshlrev_b32 v2, 2, v123
    v_mov_b32 v{Q2+1}, 0
    v_mov_b32 v126, 0xff800000
K3_maxloop:
    """)
    for l in rdK(0): a(l)
    a(f"""
    v_add_u32 v1, {KV_TILE}, v1
    v_add_u32 v2, {KV_TILE}, v2
    s_sub_u32 s40, s40, 1
    s_cmp_lg_u32 s40, 0
    s_waitcnt lgkmcnt(0)
    {M1(0)}
    {M2(0)}
    s_nop 11
    """)
    for i in range(8):
        a(f"v_max3_f32 v126, v{SB[0]+2*i}, v{SB[0]+2*i+1}, v126")
    a(f"""
    s_cbranch_scc1 K3_maxloop
    v_mov_b32 v127, v126
    v_mov_b32 v1, v7
    v_lshlrev_b32 v2, 2, v123
    v_permlane32_swap_b32 v126, v127
    v_mov_b32 v3, v124
    v_max_f32 v126, v126, v127
    """)
    for l in rdK(0) + rdK(1) + rdV(0): a(l)
    a(f"""
    v_sub_f32 v126, 0, v126               ; -m
    v_cvt_pk_bf16_f32 v127, v126, v126
    v_and_b32 v127, 0xffff0000, v127      ; hi
    v_sub_f32 v126, v126, v127            ; r1
    v_cvt_pk_bf16_f32 v125, v127, v126
    v_and_b32 v127, 0xffff0000, v125      ; mid
    v_sub_f32 v126, v126, v127            ; r2
    v_cvt_pk_bf16_f32 v126, v126, 0       ; (lo, 0)
    v_cmp_gt_u32 vcc, 32, v0
    """)
    for i in range(16): a(f"v_mov_b32 v{O+i}, 0")
    a(f"v_cndmask_b32 v{Q2+1}, v126, v125, vcc")
    for i in range(4): a(f"v_mov_b32 v{P+4+i}, 0\nv_mov_b32 v{VS[1]+4+i}, 0")
    a(f"""
    s_add_u32 s30, s31, 3
    s_cmp_lg_u32 s31, 0
    s_waitcnt lgkmcnt(0)
    {M1(0)}
    {M2(0)}
    s_nop 8
    ; STAMP 3
    ; CSTAMP 13
    s_cbranch_scc1 K3_loop
    """)
    def iteration(kind):
        nr = 3; nw = 0; after_prep = 0
        for t in range(16):
            extra = []
            if kind == 0 and t < 12:
                for _ in range(2 if t % 3 == 0 else 1):
                    if nr == 18: extra += ["s_mov_b32 m0, s41", "s_nop 0"]
                    extra += ["buffer_load_dwordx4 v7, s[12:15], m0 offen lds"]
                    if nr < 17: extra += ["s_add_u32 m0, m0, 0x2000", "s_nop 0"]
                    nr += 1
                if t == 7:
                    extra += [f"s_waitcnt vmcnt({nr - 6})", "s_barrier"]
            if kind == 0:
                if t == 8: extra += only_old(p_loads("B"))
                if t == 12: extra += only_old(p_loads("A"))
            else:
                if t == 6: extra = only_old(["s_waitcnt vmcnt(4)"] + p_stage("A"))
                if t == 7: extra = only_old(p_store("A") + p_loads("A"))
            if t == 14: extra = only_old([f"s_waitcnt vmcnt({2 if kind == 0 else 4})"] + p_stage("B"))
            if t == 15: extra = only_old(p_store("B") + p_loads("B"))
            for l in step(t, extra): a(l)
        assert kind != 0 or nr == 19
        a(f"""
        v_add_u32 v1, {16*KV_TILE}, v1
        v_add_u32 v2, {16*KV_TILE}, v2
        v_add_u32 v3, {16*KV_TILE}, v3
        """)
    iteration(0)
    a(f"""
K3_barB:
    ; STAMP 4
    s_cmp_lt_u32 s3, 4
    s_cbranch_scc1 K3_bw
    s_waitcnt vmcnt(0)
K3_bw:
    s_barrier
    ; STAMP 5
    s_cmp_lt_u32 s3, 4
    s_cbranch_scc1 K3_loop
    """)
    a(f"""
    s_lshl_b32 s33, s3, 11
    s_sub_u32 s33, s33, {8192 - LDS_PAR}
    s_mov_b32 m0, s33
    s_add_u32 s33, s33, {WS_MOD + 2*2304 - LDS_PAR}
    buffer_load_dwordx4 v7, s[8:11], s33 offen lds
    buffer_load_dwordx4 v7, s[8:11], s33 offen offset:1024 lds
    s_cmp_lg_u32 s31, 0
    s_cbranch_scc1 K3_loop
    """)
    for f in range(27):
        for l in wo_load(f, slot(f)): a(l)
    a(f"""
    v_lshlrev_b32 v4, 5, v0
    s_mul_i32 s6, s4, 1152
    buffer_load_dwordx4 {vr(PX)}, v4, s[48:51], s6 offen
    buffer_load_dwordx4 {vr(PX+4)}, v4, s[48:51], s6 offen offset:16
    """)
    a("; STAMP 11\n.p2align 3\nK3_loop:")
    iteration(2)
    a(f"""
    s_sub_u32 s30, s30, 1
    s_cmp_eq_u32 s30, 3
    s_cbranch_scc1 K3_barB
    s_cmp_lg_u32 s30, 0
    s_cbranch_scc1 K3_loop
    {PV(15, 1)}
    ; STAMP 6
    ; CSTAMP 14
    s_setprio 0
    """)
    for l in only_old(["s_waitcnt vmcnt(4)"] + p_stage("A") + ["s_waitcnt lgkmcnt(0)"] + p_store("A")): a(l)
    a(f"""
    v_and_b32 v1, 7, v0
    v_mul_u32_u24 v1, {OS}, v1
    v_lshrrev_b32 v2, 3, v123
    s_lshr_b32 s33, s3, 2
    s_mul_i32 s33, s33, 576
    s_and_b32 s34, s3, 3
    s_lshl_b32 s35, s34, 7
    s_add_u32 s35, s35, s33
    v_lshl_add_u32 v16, v2, 5, v1
    v_lshl_add_u32 v16, v122, 4, v16
    v_add_u32 v16, s35, v16
    s_lshl_b32 s35, s34, 4
    s_add_u32 s35, s35, s33
    v_lshl_add_u32 v17, v2, 2, v1
    v_mul_u32_u24 v3, 0x30000, v122
    v_add3_u32 v17, v17, v3, s35
    v_and_b32 v2, 15, v0                  ; n16
    v_lshrrev_b32 v3, 4, v0               ; g
    v_lshl_add_u32 v1, v3, 4, v1
    v_mov_b32 v18, v{O+10}
    v_mov_b32 v19, v{O+10}
    v_mul_f32 v20, 0, v{O}
    """)
    for i in range(1, 10): a(f"v_fmac_f32 v20, 0, v{O+i}")
    a(f"""
    v_permlane32_swap_b32 v18, v19
    v_add_f32 v20, v20, v18
    v_rcp_f32 v18, v18
    v_cmp_nlt_f32 vcc, v20, v128
    s_cbranch_vccz K3_fin
    v_mov_b32 v19, 1
    ds_write_b32 v121, v19 offset:32
K3_fin:
    """)
    for i in range(10): a(f"v_mul_f32 v{O+i}, v18, v{O+i}")
    for i in range(5): a(f"v_cvt_pk_bf16_f32 v{24+i}, v{O+2*i}, v{O+2*i+1}")
    a(f"""
    ds_write_b128 v16, v[24:27] offset:{LDS_O}
    ds_write_b32 v17, v28 offset:{LDS_O + 512}
    v_mov_b32 v4, {LDS_PROG}
    v_mul_u32_u24 v5, {RS}, v2
    v_lshl_add_u32 v5, v3, 4, v5
    v_lshrrev_b32 v6, 3, v2
    v_mul_u32_u24 v6, 0x28000, v6
    v_add_u32 v5, v5, v6
    s_mul_i32 s33, s3, 384
    s_mul_i32 s34, s3, 192
    s_add_u32 s34, s34, {24*64 - 4*192}
    s_cmp_ge_u32 s3, 4
    s_cselect_b32 s33, s34, s33
    s_add_u32 s33, s33, {LDS_R2}
    v_add_u32 v6, s33, v5
    v_lshlrev_b32 v2, 5, v0               ; x offset
    v_cmp_gt_u32 vcc, 36, v0
    v_mov_b32 v3, 0x3fff0000
    s_mul_i32 s6, s4, 1152
    v_cndmask_b32 v2, v3, v2, vcc
    s_mov_b64 s[46:47], vcc
    s_cmp_ge_u32 s3, 4
    s_cbranch_scc1 K3_join
    v_mov_b32 v3, 1
    s_mov_b64 exec, 1
    ds_add_u32 v4, v3
    s_mov_b64 exec, -1
    s_mul_i32 s33, s3, 576
    s_add_u32 s33, s33, {LDS_R1}
    v_add_u32 v5, s33, v5
    """)
    a("buffer_load_dword v12, v2, s[48:51], s6 offen")
    for f in range(NS):
        for l in wo_load(f, slot(f)): a(l)
    a(f"""
K3_poll:
    ds_read_b32 v8, v4
    s_waitcnt lgkmcnt(0)
    v_cmp_gt_u32 vcc, 4, v8
    s_cbranch_vccz K3_pollok
    s_sleep 2
    s_branch K3_poll
K3_pollok:
    """)
    proj1(a)
    a(f"""
K3_join:
    ; STAMP 7
    s_waitcnt vmcnt(0) lgkmcnt(0)
    s_barrier
    ; STAMP 8
    ds_read_b128 v[16:19], v4 offset:32
    ds_read_b128 v[20:23], v4 offset:48
    s_waitcnt lgkmcnt(0)
    v_or3_b32 v16, v16, v17, v18
    v_or3_b32 v16, v16, v19, v20
    v_or3_b32 v16, v16, v21, v22
    v_or_b32 v16, v16, v23
    v_cmp_ne_u32 vcc, 0, v16
    s_cmp_lg_u32 s31, 0
    s_cbranch_scc1 K3_proj
    s_cbranch_vccz K3_proj
    s_mov_b32 s31, 1
    s_mov_b32 s40, 64
    s_waitcnt vmcnt(0)
    s_barrier
    s_branch K3_restart
K3_proj:
    ; STAMP 1
    """)
    tail(a)
    a("""
K3_end:
    s_endpgm
    """)
    return a.text(), kernel_desc(NAME, 256, 56)
```

```python
from common import *
NAME = "k5_ffn_kernel"
NWG = 256
SS = 36864
LDS_AB = 4 * SS
LDS = LDS_AB
LAUNCH = f"; @launch kernel={NAME} grid=({NWG},1,1) block=(256,1,1) lds={LDS}"
X = 112
ACC = (48, 80)
HB = 8
FR = 80
NR = 12
PF = 8
BASE = (4, 5, 6, 7)
TMP = 8
STREAM = 972 * 1024

def mfma(acc, a_, b_, first):
    return f"v_mfma_f32_16x16x32_bf16 {vr(acc)}, {a_}, {b_}, {'0' if first else vr(acc)}"

def interleave(mf, fill, maxper=2):
    n = len(mf)
    out = []
    gaps = [[] for _ in range(n)]
    cnt = [len(mf[(i + 1) % n][1]) if i + 1 < n else 0 for i in range(n)]
    for i in range(n): cnt[i] += len(mf[i][2])
    g = 0
    for (lo, item) in fill:
        g = max(g, lo)
        while g < n - 1 and cnt[g] >= maxper: g += 1
        gaps[g].append(item); cnt[g] += 1
    for i in range(n):
        out += mf[i][1] + [mf[i][0]] + mf[i][2] + gaps[i]
    return out

def rd(t, basefn, per):
    r = FR + (t % NR) * 4
    b, off = basefn(t)
    return f"ds_read_b128 {ar(r)}, v{b} offset:{off}"

def dma_items(pos_imm, dyn=False):
    it = []
    for k in range(9):
        g = k // 4
        if dyn: it.append(f"s_mov_b32 m0, s{27+g}")
        else: it.append(f"s_add_u32 m0, s20, {pos_imm + g*4096}")
        it.append(f"buffer_load_dwordx4 v1, s[12:15], s{24+g} offen offset:{(k%4)*1024} lds")
    return it
ADV = [f"s_add_u32 s{24+g}, s{24+g}, {SS}" for g in range(3)]

def epi1(acc):
    it = []
    for rt in range(2):
        for e in range(2):
            g = acc + ((0 * 2 + e) * 2 + rt) * 4; u = acc + ((1 * 2 + e) * 2 + rt) * 4
            for i in range(4): it.append(f"v_max_f32 v{g+i}, 0, v{g+i}")
            for i in range(4): it.append(f"v_mul_f32 v{g+i}, v{g+i}, v{u+i}")
            for i in range(2): it.append(f"v_cvt_pk_bf16_f32 v{TMP+rt*4+e*2+i}, v{g+2*i}, v{g+2*i+1}")
        it.append(f"buffer_store_dwordx4 {vr(TMP+rt*4)}, v1, s[8:11], s41 offen offset:{rt*1024} sc1")
    for q in range(4):
        it.append(["s_set_gpr_idx_on s30, gpr_idx(DST)", f"v_accvgpr_write_b32 a{2*q}, v{TMP+2*q}", f"v_accvgpr_write_b32 a{2*q+1}, v{TMP+2*q+1}", "s_set_gpr_idx_off"])
    it += ["s_add_u32 s30, s30, 8", "s_add_u32 s41, s41, 0x800"]
    return it
FLAG_ST = ["v_mov_b32 v19, 9", "buffer_store_dword v19, v18, s[8:11], s46 offen sc1"]
FLAG_LD = ["buffer_load_dwordx4 v[20:23], v24, s[8:11], s45 offen sc1"]
def nvm(lines): return sum(1 for l in lines if l.startswith(("buffer_", "global_")))
def check(n, need):
    return [f"K5_chk{n}:", "v_min_i32 v25, v20, v21", "v_min3_i32 v25, v22, v23, v25", f"v_cmp_gt_i32 vcc, {need}, v25",
            f"s_cbranch_vccz K5_ok{n}", "s_sleep 2"] + FLAG_LD + ["s_waitcnt vmcnt(0)", f"s_branch K5_chk{n}", f"K5_ok{n}:"]

def flat(L):
    o = []
    for x in L:
        if isinstance(x, list): o += x
        else: o.append(x)
    return o

def spread(items, lo, hi):
    n = len(items)
    return [(lo + (hi - lo) * i // max(n, 1), it) for i, it in enumerate(items)]

def merge(*ls):
    return sorted(sum(ls, []), key=lambda x: x[0])

def chunk(half, peel=None):
    acc = ACC[half]
    def basefn(t):
        t %= 144
        t2 = (half * 72 + t) % 144
        return BASE[t2 // 36], (t2 % 36) * 1024
    out = []
    for sub in range(2):
        pos = 2 * half + sub
        mf = []
        for ks in range(9):
            s = sub * 9 + ks
            for f in range(4):
                t = s * 4 + f
                for rt in range(2):
                    pre = []; post = []
                    if rt == 0 and f % 2 == 0: pre = [f"s_waitcnt lgkmcnt({PF-2})"]
                    if rt == 0: post = [rd(t + PF, basefn, 72)]
                    mf.append((mfma(acc + (f * 2 + rt) * 4, ar(FR + (t % NR) * 4), vr(X + (2 * s + rt) * 4), s == 0), pre, post))
        d = dma_items(((pos + 1) % 4) * SS)
        fill = spread(d, 1, 66) + [(67, x) for x in ADV]
        if sub == 0:
            fill = merge(fill, spread(epi1(ACC[1 - half]), 6, 70))
            if peel is None:
                if half == 1:
                    fill = [(0, ["s_cmp_ge_u32 s30, 32", "s_cselect_b32 s52, s46, s54", "buffer_store_dword v19, v18, s[8:11], s52 offen sc1"]), (2, "v_add_u32 v19, 2, v19")] + fill
                else:
                    fill = [(0, ["s_cmp_eq_u32 s30, 40", "s_cselect_b32 s53, s45, s54", "buffer_load_dwordx4 v[20:23], v24, s[8:11], s53 offen sc1"])] + fill
            if peel == 7:
                fill = merge([(0, x) for x in FLAG_LD], fill)
        if peel is not None:
            ks = PEEL_K[(peel, sub)]
            fill = merge(fill, spread(sum((bloads(k) for k in ks), []), 3, 64))
        fill = fix_m0(fill)
        body = flat(interleave(mf, fill))
        out += body + ["s_mov_b32 s20, s40", f"s_waitcnt vmcnt({nvm(body)})", "s_barrier"]
    return out

PEEL_K = {(7, 0): range(9, 13), (7, 1): range(13, 18), (8, 0): range(18, 21), (8, 1): range(21, 24)}
NPRE = 24
def fix_m0(fill):
    res = []; pend = []; inpair = False
    for lo, it in fill:
        if isinstance(it, list) and inpair:
            pend.append((lo, it)); continue
        res.append((lo, it))
        if isinstance(it, str) and ' m0, ' in it: inpair = True
        if isinstance(it, str) and it.endswith(' lds'):
            inpair = False
            res += pend; pend = []
    return res

from k3 import Track
A2 = 112
ST = 64
RX, RG, RGS = 92, 104, 40
def breg(kpos, rt):
    if kpos < 9: return ar(HB + (2 * kpos + rt) * 4)
    n = kpos - 9
    if n < 16: return ar(128 + n * 8 + rt * 4)
    return vr(184 + (n - 16) * 8 + rt * 4) if n < 25 else vr(48 + (n - 25) * 8 + rt * 4)
def bloads(kpos):
    n = kpos - 9
    c, p = divmod(n, 3)
    it = [f"buffer_load_dwordx4 {breg(kpos, rt)}, v1, s[8:11], s{42+p} offen offset:{(c%2)*2048 + rt*1024} sc1" for rt in range(2)]
    if c % 2 == 1: it.append(f"s_add_u32 s{42+p}, s{42+p}, 0x1000")
    return it
def flag_st(v): return [f"v_mov_b32 v19, {v}", "buffer_store_dword v19, v18, s[8:11], s46 offen sc1"]

ORDER = list(range(217)) + [k * 7 + t for t in (6, 0, 1, 2, 3, 4, 5) for k in range(31, 36)] + list(range(252, 324))
def decode(idx):
    if idx < 252: return idx % 7, idx // 7
    return 7 + (idx - 252) % 2, (idx - 252) // 2

def epi_send(rel):
    it = []
    if rel == 3:
        d = ST + 24
        for rt in range(2):
            c = A2 + (12 + rt) * 4
            for i in range(2): it.append(f"v_cvt_pk_bf16_f32 v{d+2*rt+i}, v{c+2*i}, v{c+2*i+1}")
        return it + [f"buffer_store_dwordx4 {vr(d)}, v1, s[8:11], s35 offen sc1"]
    for rt in range(2):
        d = ST + (rel * 2 + rt) * 4
        for e in range(2):
            c = A2 + (2 * (2 * rel + e) + rt) * 4
            for i in range(2): it.append(f"v_cvt_pk_bf16_f32 v{d+e*2+i}, v{c+2*i}, v{c+2*i+1}")
        it.append(f"buffer_store_dwordx4 {vr(d)}, v1, s[8:11], s{32+rel} offen offset:{rt*1024} sc1")
    return it

def reduce_prefetch():
    return [f"buffer_load_dwordx4 {vr(RX)}, v1, s[8:11], s55 offen",
            f"s_add_u32 s55, s55, {18*1024}",
            f"buffer_load_dwordx4 {vr(RX+4)}, v1, s[8:11], s55 offen",
            f"buffer_load_dwordx2 {vr(RX+8,2)}, v1, s[8:11], s57 offen",
            f"s_add_u32 s57, s57, {18*1024}",
            f"buffer_load_dwordx2 {vr(RX+10,2)}, v1, s[8:11], s57 offen",
            f"buffer_load_dwordx4 {vr(RG)}, v26, s[8:11], s58 offen",
            f"buffer_load_dwordx4 {vr(RG+4)}, v26, s[8:11], s58 offen offset:16",
            f"buffer_load_dwordx4 {vr(RGS)}, v26, s[8:11], s59 offen"]
RFLAG_LD = "buffer_load_dwordx4 v[20:23], v24, s[8:11], s60 offen sc1"

def phase2(pre):
    out = []
    first_use = {}
    for pos, idx in enumerate(ORDER):
        first_use.setdefault(decode(idx)[1], pos // 36)
    vm = Track()
    def account(lines, i):
        for l in lines:
            if not l.startswith("buffer_"): continue
            tag = ("o", i)
            for kpos in range(9, 36):
                if any(l == x for x in bloads(kpos)): tag = ("b", first_use[kpos])
            if l == FLAG_LD[0]: tag = ("f",)
            vm.issue(tag)
    early = []
    LOADAT = {2: range(24, 28), 3: range(28, 32), 4: range(32, 36)}
    out += early
    account(pre + early, 0)
    for i in range(9):
        ss = 18 + i
        def basefn(t):
            idx = ORDER[36 * i + t]
            return BASE[(18 + idx // 36 + 2) % 4], (idx % 36) * 1024
        mf = []
        for t in range(36):
            tt, kpos = decode(ORDER[36 * i + t])
            for rt in range(2):
                pre_ = []; post = []
                last = (i == 8)
                if rt == 0 and t % 2 == 0:
                    pre_ = [f"s_waitcnt lgkmcnt({min(PF - 2, max(0, 36 - t - 2)) if last else PF - 2})"]
                if rt == 0 and not (last and t + PF >= 36): post = [rd(t + PF, basefn, 36)]
                mf.append((mfma(A2 + (2 * tt + rt) * 4, ar(FR + (t % NR) * 4), breg(kpos, rt), kpos == 0), pre_, post))
        fill = []
        if ss + 3 <= 26:
            fill += spread(dma_items(((ss + 3) % 4) * SS), 1, 66) + [(67, x) for x in ADV]
        bl = sum((bloads(k) for k in LOADAT.get(i, [])), [])
        if i == 0: fill = fix_m0(merge(fill, [(0, x) for x in flag_st(8)], spread(epi1(ACC[1]), 4, 66)))
        fill = merge(fill, spread(bl, 3, 64))
        if i == 2: fill = merge([(0, x) for x in flag_st(9)], fill)
        if i in (1, 3): fill = merge([(0, x) for x in FLAG_LD], fill)
        if i == 5: fill = merge(fill, spread(reduce_prefetch(), 3, 60))
        if i == 6:
            fill = merge(fill, spread(epi_send(3), 18, 26), spread(epi_send(0), 38, 50), spread(epi_send(1), 58, 70))
        if i == 7:
            fill = merge(fill, spread(epi_send(2), 5, 14), [(WAITGAP, ["v_mov_b32 v45, 1", "s_waitcnt vmcnt(0)", "buffer_store_dword v45, v18, s[8:11], s61 offen sc1"])])
        if i == 8:
            fill = merge(fill, [(POLLGAP, RFLAG_LD)])
        body = flat(interleave(mf, fix_m0(fill)))
        account(body, i)
        out += body
        if i <= 6:
            ns = [vm.need(t_) for t_ in [("o", i - 1), ("b", i + 1), ("f",)]]
            ns = [n for n in ns if n is not None]
            n = min(ns) if ns else nvm(body)
            out += [f"s_waitcnt vmcnt({n})", "s_barrier"]
        if i == 1: out += check(2, 8)
        if i == 3: out += check(3, 9)
        st = {0: 1, 1: 2, 4: 5, 5: 9, 6: 11, 7: 12}.get(i)
        if st: out += [f"; STAMP {st}"]
    return out
WAITGAP, POLLGAP = 50, 48

def final_reduce():
    RP = 112
    it = ["s_branch K5_rchk", "K5_rpoll:", RFLAG_LD, "K5_rchk:", "s_waitcnt vmcnt(0)",
          "v_min_i32 v25, v20, v21", "v_min3_i32 v25, v22, v23, v25", "v_cmp_gt_i32 vcc, 1, v25",
          "s_cbranch_vccnz K5_rpoll", "; STAMP 10", "s_add_u32 s55, s56, 0x1000"]
    for k in range(6):
        it.append(f"buffer_load_dwordx4 {vr(RP+4*k)}, v1, s[8:11], s{56 if k < 4 else 55} offen offset:{(k%4)*1024} sc1")
    for k in range(4):
        it.append(f"buffer_load_dwordx4 {vr(RP+24+4*k)}, v1, s[8:11], s51 offen offset:{k*1024} sc1")
    def own(rt, j): return A2 + (2 * (7 + j // 4) + rt) * 4 + j % 4
    U, SG = 184, 192
    for k in range(12): it += [f"v_lshlrev_b32 v{208+2*k}, 16, v{RX+k}", f"v_and_b32 v{208+2*k+1}, s23, v{RX+k}"]
    for rel in range(3):
        it.append(f"s_waitcnt vmcnt({8 - 2 * rel})")
        for rt in range(2):
            b = RP + (rel * 2 + rt) * 4
            for k in range(4): it += [f"v_lshlrev_b32 v{U+2*k}, 16, v{b+k}", f"v_and_b32 v{U+2*k+1}, s23, v{b+k}"]
            for k in range(4): it.append(f"v_pk_add_f32 {vr(own(rt,2*k),2)}, {vr(own(rt,2*k),2)}, {vr(U+2*k,2)}")
    for rt in range(2):
        for k in range(4): it.append(f"v_pk_fma_f32 {vr(own(rt,2*k),2)}, {vr(own(rt,2*k),2)}, {vr(RG+2*k,2)}, {vr(208+8*rt+2*k,2)}")
        for k in range(4): it.append(f"v_cvt_pk_bf16_f32 v{ST+4*rt+k}, v{own(rt,2*k)}, v{own(rt,2*k)+1}")
        it.append(f"buffer_store_dwordx4 {vr(ST+4*rt)}, v27, s[64:67], s62 offen")
        if rt == 0: it.append(f"s_add_u32 s62, s62, {16*1152}")
    it += ["s_cmp_lg_u32 s47, 3", "s_cbranch_scc1 K5_end", "s_waitcnt vmcnt(2)"]
    for J in range(4):
        b = RP + 24 + 4 * J
        d = SG if J == 0 else U
        for k in range(4): it += [f"v_lshlrev_b32 v{d+2*k}, 16, v{b+k}", f"v_and_b32 v{d+2*k+1}, s23, v{b+k}"]
        if J:
            for k in range(4): it.append(f"v_pk_add_f32 {vr(SG+2*k,2)}, {vr(SG+2*k,2)}, {vr(U+2*k,2)}")
    for k in range(4): it.append(f"v_pk_fma_f32 {vr(SG+2*k,2)}, {vr(SG+2*k,2)}, {vr(RGS+2*(k%2),2)}, {vr(224+2*k,2)}")
    for k in range(4): it.append(f"v_cvt_pk_bf16_f32 v{ST+8+k}, v{SG+2*k}, v{SG+2*k+1}")
    it += [f"buffer_store_dwordx2 {vr(ST+8,2)}, v27, s[64:67], s63 offen", f"s_add_u32 s63, s63, {16*1152}",
           f"buffer_store_dwordx2 {vr(ST+10,2)}, v27, s[64:67], s63 offen"]
    return it
PROF_VGPR = 47
MAPS = {
 "2x16": """s_and_b32 s4, s2, 7
    s_lshl_b32 s4, s4, 1
    s_bfe_u32 s5, s2, 0x10003
    s_add_u32 s4, s4, s5
    s_lshr_b32 s5, s2, 4""",
 "4x8": """s_and_b32 s4, s2, 3
    s_lshl_b32 s4, s4, 2
    s_bfe_u32 s5, s2, 0x20003
    s_add_u32 s4, s4, s5
    s_bfe_u32 s5, s2, 0x10002
    s_lshl_b32 s5, s5, 3
    s_lshr_b32 s6, s2, 5
    s_add_u32 s5, s5, s6""",
 "8x4": """s_and_b32 s4, s2, 1
    s_lshl_b32 s4, s4, 3
    s_bfe_u32 s5, s2, 0x30003
    s_add_u32 s4, s4, s5
    s_bfe_u32 s5, s2, 0x20001
    s_lshl_b32 s5, s5, 2
    s_lshr_b32 s6, s2, 6
    s_add_u32 s5, s5, s6""",
}
import os
MAP = MAPS[os.environ.get("K5MAP", "8x4")]
def gen():
    a = Asm()
    a(kernel_head(NAME))
    ST = 48
    a(f"""
    s_cmp_ge_u32 s2, {NWG}
    s_cbranch_scc1 K5_end
    s_load_dwordx2 s[8:9], s[0:1], {ARG['ws']}
    s_load_dwordx2 s[64:65], s[0:1], {ARG['out']}
    s_mov_b32 s66, {XBYTES}
    s_mov_b32 s67, 0x20000
    v_lshrrev_b32 v2, 6, v0
    v_and_b32 v0, 63, v0
    v_readfirstlane_b32 s3, v2            ; wave
    v_lshlrev_b32 v1, 4, v0
    s_mov_b32 s10, {WS_SIZE:#x}
    s_mov_b32 s11, 0x20000
    s_mov_b32 s14, {STREAM}
    s_mov_b32 s15, 0x20000
    s_mov_b32 s18, {XBYTES}
    s_mov_b32 s19, 0x20000
    s_mov_b32 s23, 0xffff0000
    {MAP}
    s_lshl_b32 s5, s5, 2
    s_add_u32 s5, s5, s3
    s_mul_i32 s20, s3, 9216
    v_lshrrev_b32 v9, 4, v0               ; g
    v_lshlrev_b32 v10, 3, v0
    s_mul_i32 s6, s5, {32*288}
    s_add_u32 s6, s6, {WS_ST:#x}
    s_add_u32 s7, s6, {16*288}
    s_mul_i32 s34, s4, {STREAM}
    s_add_u32 s34, s34, {WS_WP:#x}
    s_lshr_b32 s47, s4, 2                 ; J
    s_and_b32 s48, s4, 3                  ; q
    s_mul_i32 s35, s47, {XBYTES}
    s_add_u32 s35, s35, {WS_PART:#x}
    s_lshl_b32 s36, s3, 10
    s_add_u32 m0, s36, {LDS_AB}
    s_add_u32 s36, s36, {WS_MOD + 3*2304}
    s_mul_i32 s37, s5, 36864
    s_waitcnt lgkmcnt(0)
    s_add_u32 s12, s8, s34
    s_addc_u32 s13, s9, 0
    s_add_u32 s16, s8, s35
    s_addc_u32 s17, s9, 0
    """)
    a(f"s_add_u32 s36, s37, {WS_O:#x}\ns_lshl_b32 s21, s3, 10")
    def pdma():
        a("s_mov_b32 m0, s21\ns_add_u32 s21, s21, 0x1000\nbuffer_load_dwordx4 v1, s[12:15], m0 offen lds")
    a(f"s_add_u32 s38, s36, {18*1024}")
    def xloads(lo, hi):
        for s_ in range(lo, hi):
            for rt in range(2):
                a(f"buffer_load_dwordx4 {vr(X+(2*s_+rt)*4)}, v1, s[8:11], s{36 if rt == 0 else 38} offen offset:{(s_%4)*1024}")
            if s_ % 4 == 3: a("s_add_u32 s36, s36, 0x1000\ns_add_u32 s38, s38, 0x1000")
            pdma()
    xloads(0, 18)
    for _ in range(9): pdma()
    a(f"""
    v_add_u32 v4, {2*SS}, v1
    v_add_u32 v5, {3*SS}, v1
    v_mov_b32 v6, v1
    v_add_u32 v7, {SS}, v1
    v_lshlrev_b32 v12, 5, v9
    v_add_u32 v12, {LDS_AB}, v12          ; ab lds addr
    s_lshr_b32 s49, s5, 2                 ; i
    s_lshl_b32 s50, s49, 2
    s_add_u32 s50, s50, s47               ; 4i + J
    s_lshl_b32 s45, s50, 2
    s_add_u32 s45, s45, s3
    s_lshl_b32 s45, s45, 7
    s_add_u32 s45, s45, {WS_FLAG:#x}
    s_lshl_b32 s46, s48, 2
    s_add_u32 s46, s46, s45
    s_lshl_b32 s50, s50, 4
    s_add_u32 s50, s50, s3                ; ((4i+J)*4)*4 + w
    s_mul_i32 s50, s50, 20480
    s_add_u32 s50, s50, {WS_HX:#x}
    s_mul_i32 s41, s48, {4*20480}
    s_add_u32 s41, s41, s50
    s_add_u32 s50, s50, 0x800
    s_add_u32 s42, s48, 1
    s_and_b32 s42, s42, 3
    s_mul_i32 s42, s42, {4*20480}
    s_add_u32 s42, s42, s50
    s_add_u32 s43, s48, 2
    s_and_b32 s43, s43, 3
    s_mul_i32 s43, s43, {4*20480}
    s_add_u32 s43, s43, s50
    s_add_u32 s44, s48, 3
    s_and_b32 s44, s44, 3
    s_mul_i32 s44, s44, {4*20480}
    s_add_u32 s44, s44, s50
    v_cmp_eq_u32 vcc, 0, v0
    v_mov_b32 v18, 0x7fffffff
    v_mov_b32 v19, -1
    s_mov_b32 s54, 0x7fff0000
    v_mov_b32 v24, 0
    v_cndmask_b32 v18, v18, v24, vcc
    s_lshr_b32 s50, s48, 1
    s_mul_i32 s50, s50, 9
    s_and_b32 s51, s48, 1
    s_mul_i32 s62, s51, 5
    s_add_u32 s62, s62, s50
    s_add_u32 s62, s62, s47
    s_lshl_b32 s55, s62, 10
    s_add_u32 s55, s55, s37
    s_add_u32 s55, s55, {WS_X1:#x}
    s_lshl_b32 s58, s62, 7
    s_add_u32 s58, s58, {WS_MOD + 5*2304} ; gb
    s_lshl_b32 s62, s62, 6
    s_add_u32 s50, s50, 4
    s_lshl_b32 s57, s50, 10
    s_lshl_b32 s60, s51, 3
    s_add_u32 s57, s57, s60
    s_add_u32 s57, s57, s37
    s_add_u32 s57, s57, {WS_X1:#x}
    s_lshl_b32 s63, s50, 6
    s_add_u32 s63, s63, s60
    s_lshl_b32 s59, s63, 1
    s_add_u32 s59, s59, {WS_MOD + 5*2304}
    s_mul_i32 s60, s5, {32*1152}
    s_add_u32 s63, s63, s60
    s_add_u32 s62, s62, s60
    v_lshlrev_b32 v26, 5, v9              ; g*32 (gb)
    v_and_b32 v27, 15, v0
    v_mul_u32_u24 v27, 1152, v27
    v_lshl_add_u32 v27, v9, 4, v27
    s_lshl_b32 s60, s49, 2
    s_add_u32 s60, s60, s48
    s_lshl_b32 s60, s60, 2
    s_add_u32 s60, s60, s3
    s_lshl_b32 s50, s60, 15
    s_add_u32 s50, s50, {WS_PART:#x}
    s_mul_i32 s56, s47, 6144
    s_add_u32 s56, s56, s50               ; inbox
    s_add_u32 s32, s47, 1
    s_and_b32 s32, s32, 3
    s_mul_i32 s32, s32, 6144
    s_add_u32 s32, s32, s50
    s_add_u32 s33, s47, 2
    s_and_b32 s33, s33, 3
    s_mul_i32 s33, s33, 6144
    s_add_u32 s33, s33, s50
    s_add_u32 s33, s33, 2048
    s_add_u32 s34, s47, 3
    s_and_b32 s34, s34, 3
    s_mul_i32 s34, s34, 6144
    s_add_u32 s34, s34, s50
    s_add_u32 s34, s34, 4096
    s_add_u32 s51, s50, 24576             ; singles
    s_lshl_b32 s35, s47, 10
    s_add_u32 s35, s35, s51
    s_lshl_b32 s60, s60, 7
    s_add_u32 s60, s60, {WS_FLAG + 0x8000}
    s_lshl_b32 s61, s47, 2
    s_add_u32 s61, s61, s60
    s_cmp_eq_u32 s47, 3
    s_cselect_b32 s51, s51, s54
    s_mov_b32 s30, 0
    s_mov_b32 s40, s20
    s_add_u32 s24, s20, {3*SS}
    s_add_u32 s25, s24, 0x1000
    s_add_u32 s26, s24, 0x2000
    ; STAMP 5
    s_waitcnt vmcnt(9)
    s_barrier
    ; STAMP 6
    ; CSTAMP 13
    """)
    for t in range(PF):
        a(f"ds_read_b128 {ar(FR+4*t)}, v6 offset:{t*1024}")
    a("s_branch K5_p1_B\n.p2align 3\nK5_p1_A:")
    for l in chunk(0): a(l)
    a("K5_p1_B:")
    for l in chunk(1): a(l)
    a(f"""
    s_cmp_lt_u32 s30, 56
    s_cbranch_scc1 K5_p1_A
    """)
    for l in ["; STAMP 3"] + check(0, 3) + chunk(0, 7) + ["; STAMP 4"] + check(1, 5) + chunk(1, 8): a(l)
    a("; STAMP 7")
    for l in phase2([]): a(l)
    a("""
    ; STAMP 8
    ; CSTAMP 14
    """)
    for l in final_reduce(): a(l)
    a("""
K5_end:
    s_endpgm
    """)
    return a.text(), kernel_desc(NAME, 512, 72, accum=256)
```

```python
import gen, re, common
t = gen.build(gen.MODS)
names = [m.NAME for m in gen.MODS]
parts = re.split(r"(?m)^(?=\.globl k\d)", t)
out = [parts[0]]
for kid, p in enumerate(parts[1:]):
    sv = gen.MODS[kid].PROF_VGPR
    begin = f"""    s_memrealtime s[96:97]
    s_load_dwordx2 s[98:99], s[0:1], 96
    s_waitcnt lgkmcnt(0)
    s_sub_u32 s98, s98, {kid*512}
    s_subb_u32 s99, s99, 0
    s_not_b32 s100, s96
"""
    end = f"""    s_waitcnt vmcnt(0)
    s_memrealtime s[96:97]
    s_mov_b64 exec, 1
    v_mov_b32 v0, {kid*8}
    v_mov_b32 v1, s100
    s_waitcnt lgkmcnt(0)
    v_mov_b32 v2, s96
    global_atomic_umax v0, v1, s[98:99]
    global_atomic_umax v0, v2, s[98:99] offset:4
    s_endpgm
"""
    body, rest = (p.split("CODE_END:", 1) + [None])[:2] if "CODE_END:" in p else (p, None)
    body = body.replace(f"{names[kid]}:\n", f"{names[kid]}:\n" + begin, 1).replace("    s_endpgm\n", end)
    out.append(body + ("CODE_END:" + rest if rest is not None else ""))
t = "".join(out)
t = re.sub(r"next_free_sgpr \d+", "next_free_sgpr 102", t)
open('v_dbg.s', 'w').write(t)
```

```python
import gen, re, common
t = gen.build(gen.MODS)
names = [m.NAME for m in gen.MODS]
parts = re.split(r"(?m)^(?=\.globl k\d)", t)
out = [parts[0]]
for kid, p in enumerate(parts[1:]):
    sv = gen.MODS[kid].PROF_VGPR
    begin = f"""    s_memrealtime s[96:97]
    s_load_dwordx2 s[98:99], s[0:1], 96
    s_waitcnt lgkmcnt(0)
    s_add_u32 s98, s98, {(len(names)-1-kid)*512}
    s_addc_u32 s99, s99, 0
    s_not_b32 s100, s96
    s_mov_b32 s101, s2
"""
    end = f"""    s_waitcnt vmcnt(0)
    s_memrealtime s[96:97]
    s_mov_b64 exec, 1
    v_mov_b32 v0, {kid*8}
    v_mov_b32 v1, s100
    s_waitcnt lgkmcnt(0)
    v_mov_b32 v2, s96
    s_and_b32 s101, s101, 63
    s_cmp_lg_u32 s101, 5
    s_cbranch_scc1 4
    global_atomic_umax v0, v1, s[98:99]
    global_atomic_umax v0, v2, s[98:99] offset:4
    s_endpgm
"""
    body, rest = (p.split("CODE_END:", 1) + [None])[:2] if "CODE_END:" in p else (p, None)
    body = body.replace(f"{names[kid]}:\n", f"{names[kid]}:\n" + begin, 1).replace("    s_endpgm\n", end)
    out.append(body + ("CODE_END:" + rest if rest is not None else ""))
t = "".join(out)
t = re.sub(r"next_free_sgpr \d+", "next_free_sgpr 102", t)
open('v_dbg.s', 'w').write(t)
```

```python
from common import *
NAME = "k3_attn_kernel"
NWG = 256
LDS_PROG = KV_BYTES + 8192
LDS = LDS_PROG + 64
OS = 1168
LDS_O = 0
LDS_PAR = 8 * OS
RS = 2320
LDS_R1 = LDS_PAR + 8192
assert LDS_R1 + 8 * RS <= 16 * KV_TILE
LDS_R2 = 16 * KV_TILE
W1, W2 = 132, 32
LAUNCH = f"; @launch kernel={NAME} grid=({NWG},1,1) block=(512,1,1) lds={LDS}"
Q1, Q2 = 8, 12
SB = (16, 32)
P, O = 48, 56
KS = (72, 80)
VS = (88, 96)
R, T = 104, 112
WBYTES = 576 * 4608 * 2
WPBYTES = 16 * 972 * 1024

def rdK(t):
    k = KS[t % 2]; o = t * KV_TILE
    return [f"ds_read_b128 {vr(k)}, v1 offset:{o}", f"ds_read_b32 v{k+4}, v2 offset:{o+KV_K2}"]
def rdV(t):
    v = VS[t % 2]; o = t * KV_TILE + KV_V
    return [f"ds_read_b128 {vr(v)}, v3 offset:{o}", f"ds_read_b128 {vr(v+4)}, v3 offset:{o+608}"]
def M1(t): return f"v_mfma_f32_32x32x16_bf16 {vr(SB[t%2],16)}, {vr(KS[t%2])}, {vr(Q1)}, 0"
def M2(t): return f"v_mfma_f32_32x32x8_bf16 {vr(SB[t%2],16)}, {vr(KS[t%2]+4,2)}, {vr(Q2,2)}, {vr(SB[t%2],16)}"
def PV(t, b): return f"v_mfma_f32_32x32x16_bf16 {vr(O,16)}, {vr(VS[t%2]+4*b)}, {vr(P+4*b)}, {vr(O,16)}"

import os
STEP = os.environ.get("K3STEP", "F")
def step(t, extra=()):
    s = SB[t % 2]
    e = [f"v_exp_f32 v{s+i}, v{s+i}" for i in range(16)]
    c = [f"v_cvt_pk_bf16_f32 v{P+i}, v{s+2*i}, v{s+2*i+1}" for i in range(8)]
    rk = rdK(t + 2); rv = rdV(t + 1)
    if STEP == "A":
        L = ["s_waitcnt lgkmcnt(0)", M1(t + 1)] + e[0:4] + [PV(t - 1, 1)] + list(extra) + rk + rv
        L += e[4:8] + c[0:2] + [M2(t + 1)] + c[2:4] + e[8:12] + [PV(t, 0)] + e[12:16] + c[4:8]
    elif STEP == "D":
        L = ["s_waitcnt lgkmcnt(0)", M1(t + 1)] + list(extra) + [rk[0]] + e[0:4] + [PV(t - 1, 1), rv[0]]
        L += e[4:8] + c[0:2] + [M2(t + 1), rv[1]] + c[2:4] + e[8:12] + [PV(t, 0), rk[1]] + e[12:16] + c[4:8]
    else:
        L = [M1(t + 1)] + list(extra) + rk + e[0:4] + [PV(t - 1, 1)] + rv
        L += e[4:8] + c[0:2] + [M2(t + 1)] + c[2:4] + e[8:12] + [PV(t, 0), "s_waitcnt lgkmcnt(0)"] + e[12:16] + c[4:8]
    return L

class _N: n = 0
prep_setup = _N
STREAM = 972 * 1024
def magic(d): return (1 << 32) // d + 1
def prep_init(a0, n):
    a = lambda t: a0(t.replace('K3_pi_', f'K3_pi{n}_'))
    a(f"""
    s_lshl_b32 s33, s39, 2                      ; T0
    v_bfe_u32 v104, v0, 2, 2
    v_lshrrev_b32 v105, 4, v0
    s_cmp_ge_u32 s33, 5184
    s_cbranch_scc1 K3_pi_down
    s_cmp_ge_u32 s33, 2592
    s_cselect_b32 s16, s26, s24
    s_cselect_b32 s17, s27, s25
    s_cselect_b32 s35, 2592, 0
    s_cselect_b32 s37, 2048, 0
    s_sub_u32 s33, s33, s35
    s_mul_hi_u32 s34, s33, {magic(144)}         ; s
    s_mul_i32 s35, s34, 144
    s_sub_u32 s33, s33, s35                     ; Pg0
    s_lshl_b32 s35, s34, 12
    s_add_u32 s37, s37, s35                     ; + s*4096
    s_mul_i32 s34, s34, {32*9216}
    s_lshl_b32 s35, s33, 6
    s_add_u32 s34, s34, s35
    s_mov_b32 s36, {4*9216}
    v_and_b32 v4, 15, v0
    v_lshlrev_b32 v4, 4, v4
    v_mul_u32_u24 v106, 9216, v105
    v_add_u32 v4, v4, v106
    v_add_u32 v105, s33, v105                   ; Pg
    s_mov_b32 s35, {magic(9)}
    v_mul_hi_u32 v106, v105, s35                ; j
    v_mul_u32_u24 v107, 9, v106
    v_sub_u32 v105, v105, v107                  ; P
    s_mov_b32 s35, {STREAM}
    v_mul_lo_u32 v106, v106, s35
    v_mul_u32_u24 v105, {72*1024}, v105
    s_branch K3_pi_end
K3_pi_down:
    s_sub_u32 s33, s33, 5184
    s_mov_b32 s16, s28
    s_mov_b32 s17, s29
    s_mov_b32 s34, 0
    s_mov_b32 s37, {648*1024}
    s_movk_i32 s36, {4*1152}
    s_mov_b32 s35, {magic(18)}
    v_add_u32 v104, s33, v104                   ; T (source)
    v_mul_hi_u32 v106, v104, s35                ; kb
    v_mul_u32_u24 v107, 18, v106
    v_sub_u32 v104, v104, v107                  ; P'
    v_lshl_add_u32 v106, v106, 5, v105
    v_mul_u32_u24 v106, 1152, v106
    v_lshl_add_u32 v106, v104, 6, v106
    v_and_b32 v4, 3, v0
    v_lshl_add_u32 v4, v4, 4, v106
    v_add_u32 v105, s33, v105                   ; T (dest)
    v_mul_hi_u32 v106, v105, s35                ; kb
    v_mul_u32_u24 v107, 18, v106
    v_sub_u32 v105, v105, v107                  ; P'
    s_mov_b32 s35, {magic(9)}
    v_mul_hi_u32 v107, v106, s35                ; j
    v_mul_u32_u24 v104, 9, v107
    v_sub_u32 v104, v106, v104                  ; c
    v_cmp_le_u32 vcc, 9, v105
    v_subrev_u32 v108, 9, v105
    v_mov_b32 v109, 0
    v_cndmask_b32 v105, v105, v108, vcc         ; b9
    v_cndmask_b32 v109, v109, 2, vcc            ; 2*qq
    s_mov_b32 s35, {STREAM}
    v_and_b32 v120, 15, v0
    v_lshlrev_b32 v120, 4, v120
    """)
    for e, dst in ((1, 129), (0, 120)):
        a(f"""
    v_mov_b32 v119, {252+e}
    v_lshl_add_u32 v110, v105, 1, {e}
    v_cmp_le_u32 vcc, 9, v110
    v_subrev_u32 v111, 10, v110
    v_min_u32 v111, 8, v111
    v_addc_co_u32 v112, s[44:45], 0, v109, vcc  ; q
    v_cndmask_b32 v110, v110, v111, vcc         ; t
    v_sub_u32 v113, v107, v112
    v_and_b32 v113, 3, v113                     ; p = (j - q) & 3
    v_mul_u32_u24 v114, 3, v104
    v_add3_u32 v114, v114, v113, 8              ; 9 + 3c + p - 1
    v_cmp_eq_u32 vcc, 0, v113
    v_and_b32 v115, 0xfc, v107
    v_add_u32 v115, v115, v112                  ; stream = 4J + q
    v_cndmask_b32 v114, v114, v104, vcc         ; kpos
    v_lshrrev_b32 v116, 2, v107                 ; J
    v_lshrrev_b32 v117, 1, v110                 ; pair
    v_sub_u32 v116, v117, v116
    v_subrev_u32 v116, 1, v116
    v_and_b32 v116, 3, v116                     ; rel
    v_lshl_add_u32 v117, v116, 1, {e}           ; 2*rel+e
    v_cmp_eq_u32 vcc, 8, v110
    v_mul_u32_u24 v118, 7, v114
    v_lshl_add_u32 v114, v114, 1, v119          ; 252 + e + 2*kpos
    v_cndmask_b32 v117, v117, 6, vcc
    v_cndmask_b32 v116, v116, 0, vcc
    v_add_u32 v118, v118, v117
    v_cmp_eq_u32 vcc, 3, v116
    s_nop 1
    v_cndmask_b32 v114, v118, v114, vcc
    v_lshlrev_b32 v114, 10, v114
    v_mul_lo_u32 v115, v115, s35
    v_add3_u32 v{dst}, v120, v114, v115
    """)
    a(f"""
    s_branch K3_pi_done
K3_pi_end:
    v_and_b32 v120, 15, v0
    v_lshlrev_b32 v120, 4, v120
    v_add3_u32 v120, v120, v105, v106
    v_add_u32 v129, 0x400, v120
K3_pi_done:
    """)
RA = 248
CTX = {"A": (14, 130, 131, 52, 53, RA), "B": (4, 120, 129, 34, 37, R)}
def p_loads(c):
    va, _, _, ss, _, r = CTX[c]
    return [f"buffer_load_dwordx4 {vr(r)}, v{va}, s[16:19], s{ss} offen", f"s_add_u32 s{ss}, s{ss}, s36",
            f"buffer_load_dwordx4 {vr(r+4)}, v{va}, s[16:19], s{ss} offen", f"s_add_u32 s{ss}, s{ss}, s36"]
def p_stage(c):
    r = CTX[c][5]
    return [f"ds_write_b128 v5, {vr(r)}", f"ds_read_b64_tr_b16 {vr(T,2)}, v6", f"ds_read_b64_tr_b16 {vr(T+4,2)}, v6 offset:8",
            f"ds_write_b128 v5, {vr(r+4)}", f"ds_read_b64_tr_b16 {vr(T+2,2)}, v6", f"ds_read_b64_tr_b16 {vr(T+6,2)}, v6 offset:8"]
def p_store(c):
    _, d0, d1, _, sd, _ = CTX[c]
    return [f"buffer_store_dwordx4 {vr(T)}, v{d0}, s[20:23], s{sd} offen sc1", f"buffer_store_dwordx4 {vr(T+4)}, v{d1}, s[20:23], s{sd} offen sc1",
            f"s_add_u32 s{sd}, s{sd}, 256"]
_lab = [0]
def only_old(L):
    _lab[0] += 1
    return ["s_cmp_ge_u32 s3, 4", f"s_cbranch_scc1 K3_oo{_lab[0]}"] + L + [f"K3_oo{_lab[0]}:"]

PROF_VGPR = 15
def wreg(f):
    return W1 + 4 * f if f < 31 else W2 + 4 * (f - 31)
def wo_load(f, reg):
    L = [f"buffer_load_dwordx4 {vr(reg)}, v7, s[8:11], s42 offen offset:{(f%4)*1024}"]
    if f % 4 == 3: L.append("s_add_u32 s42, s42, 0x1000")
    return L

class Track:
    def __init__(self, init=(), cap=63): self.q = list(init); self.cap = cap
    def issue(self, tag): self.q.append(tag)
    def need(self, tag):
        if tag not in self.q: return None
        k = len(self.q) - 1 - max(i for i, t in enumerate(self.q) if t == tag)
        k = min(k, self.cap)
        self.q = self.q[len(self.q) - k:] if k else []
        return k

NS = 54
def slot(k): return W1 + 4 * k if k < 31 else (128 if k == 31 else 40 + 4 * (k - 32))
ACCQ = (16, 20, 24, 28, 32, 36)
PX = slot(27)
XLOAD = [f"buffer_load_dwordx4 {vr(PX)}, v2, s[48:51], s6 offen", f"buffer_load_dwordx4 {vr(PX+4)}, v2, s[48:51], s6 offen offset:16"]

def proj1(a):
    vm = Track([("w", 0)] + [("w", f) for f in range(29, NS)])
    lg = Track(cap=15)
    BQ = (8, 24, 28, 32, 36)
    def rdB(i):
        a(f"ds_read_b128 {vr(BQ[i%5])}, v1 offset:{LDS_O + (i%9)*64}"); lg.issue(("b", i))
    for i in range(4): rdB(i)
    for f in range(81):
        tl, s_ = divmod(f, 9)
        acc = ACCQ[tl % 2]
        if f + 4 < 81: rdB(f + 4)
        w = []
        n = vm.need(("w", f))
        if n is not None: w.append(f"vmcnt({n})")
        n = lg.need(("b", f))
        if n is not None: w.append(f"lgkmcnt({n})")
        if w: a("s_waitcnt " + " ".join(w))
        a(f"v_mfma_f32_16x16x32_bf16 {vr(acc)}, {vr(slot(f % NS))}, {vr(BQ[f%5])}, {'0' if s_ == 0 else vr(acc)}")
        for l in wo_load(f + NS, slot(f % NS)): a(l)
        vm.issue(("w", f + NS))
        if s_ == 4 and tl > 0:
            a(f"ds_write_b128 v5, {vr(ACCQ[(tl-1)%2])} offset:{(tl-1)*64}"); lg.issue(("r",))
    a(f"s_nop 7\nds_write_b128 v5, {vr(ACCQ[0])} offset:{8*64}")

def proj2(a, old):
    nt = 6 if old else 3
    lg = Track(cap=15)
    reg = (lambda i: slot((81 + i) % NS)) if old else (lambda i: slot(i))
    breg = (lambda k: 8 if k == 0 else reg(k + 1)) if old else (lambda k: 40 + 4 * k)
    def rdB(k):
        a(f"ds_read_b128 {vr(breg(k))}, v1 offset:{LDS_O + (9 + k)*64}"); lg.issue(("b", k))
    if old: rdB(0)
    else:
        for k in range(9): rdB(k)
    for i in range(9 * nt):
        k, tl = divmod(i, nt)
        n = lg.need(("b", k))
        if n is not None: a(f"s_waitcnt lgkmcnt({n})")
        a(f"v_mfma_f32_16x16x32_bf16 {vr(ACCQ[tl])}, {vr(reg(i))}, {vr(breg(k))}, {'0' if k == 0 else vr(ACCQ[tl])}")
        if old and i == 1:
            for l in XLOAD: a(l)
        if old and 2 <= i <= 9: rdB(i - 1)
    a("s_nop 7")
    for tl in range(nt): a(f"ds_write_b128 v6, {vr(ACCQ[tl])} offset:{tl*64}")

def allreduce(a, r, t):
    for rot in (1, 2, 4, 8):
        a(f"s_nop 1\nv_add_f32_dpp v{r}, v{r}, v{r} row_ror:{rot} row_mask:0xf bank_mask:0xf")
    for op in ("v_permlane16_swap_b32", "v_permlane32_swap_b32"):
        a(f"v_mov_b32 v{t}, v{r}\ns_nop 1\n{op} v{r}, v{t}\nv_add_f32 v{r}, v{r}, v{t}")

def tail(a):
    a("""
    s_cmp_ge_u32 s3, 4
    s_cbranch_scc1 K3_projy
    """)
    proj2(a, True)
    a("s_branch K3_ln\nK3_projy:")
    proj2(a, False)
    Y, U, Z, Y2, PG, PA, PB = 168, 48, 64, 80, 152, 112, 136
    PXr = [PX + k for k in range(8)]
    a(f"""
K3_ln:
    ; STAMP 2
    s_mul_i32 s33, s3, {RS}
    v_lshl_add_u32 v4, v0, 6, s33
    v_lshlrev_b32 v5, 6, v0
    s_mov_b64 exec, s[46:47]
    """)
    for k in range(4): a(f"ds_read_b128 {vr(PG+4*k)}, v5 offset:{LDS_PAR + 16*k}")
    for k in range(4): a(f"ds_read_b128 {vr(PB+4*k)}, v5 offset:{LDS_PAR + 2304 + 16*k}")
    for k in range(4): a(f"ds_read_b128 {vr(PA+4*k)}, v5 offset:{LDS_PAR + 4608 + 16*k}")
    for k in range(4): a(f"ds_read_b128 {vr(Y2+4*k)}, v4 offset:{LDS_R1 + 16*k}")
    a(f"""
    s_lshr_b32 s5, s4, 4
    s_mul_i32 s5, s5, {72*256}
    s_and_b32 s6, s4, 15
    s_lshl_b32 s6, s6, 4
    s_add_u32 s5, s5, s6
    s_add_u32 s6, s5, {WS_X1:#x}
    s_add_u32 s5, s5, {WS_O:#x}
    v_lshlrev_b32 v6, 9, v0
    s_mov_b32 s33, 0xffff0000
    s_waitcnt vmcnt(0)
    """)
    for k in range(8): a(f"v_lshlrev_b32 v{U+2*k}, 16, v{PXr[k]}\nv_and_b32 v{U+2*k+1}, s33, v{PXr[k]}")
    a(f"""
    s_mov_b64 exec, -1
    v_mov_b32 v8, 0
    v_mov_b32 v9, 0
    v_mov_b32 v10, 0
    v_mov_b32 v11, 0
    s_mov_b64 exec, s[46:47]
    ; STAMP 9
    s_waitcnt lgkmcnt(0)
    s_barrier
    ; STAMP 10
    """)
    for k in range(4): a(f"ds_read_b128 {vr(Y+4*k)}, v4 offset:{LDS_R2 + 16*k}")
    for k in range(8): a(f"v_pk_fma_f32 {vr(U+2*k,2)}, {vr(Y2+2*k,2)}, {vr(PG+2*k,2)}, {vr(U+2*k,2)}")
    a("s_waitcnt lgkmcnt(0)")
    for k in range(8): a(f"v_pk_fma_f32 {vr(Y+2*k,2)}, {vr(Y+2*k,2)}, {vr(PG+2*k,2)}, {vr(U+2*k,2)}")
    for k in range(8): a(f"v_cvt_pk_bf16_f32 v{Z+k}, v{Y+2*k}, v{Y+2*k+1}")
    a(f"""
    buffer_store_dwordx4 {vr(Z)}, v6, s[8:11], s6 offen
    buffer_store_dwordx4 {vr(Z+4)}, v6, s[8:11], s6 offen offset:256
    """)
    for k in range(8): a(f"v_lshlrev_b32 v{Y+2*k}, 16, v{Z+k}\nv_and_b32 v{Y+2*k+1}, s33, v{Z+k}")
    for k in range(8): a(f"v_pk_add_f32 v[8:9], v[8:9], {vr(Y+2*k,2)}")
    a("v_add_f32 v8, v8, v9\ns_mov_b64 exec, -1")
    allreduce(a, 8, 9)
    a("; STAMP 3")
    a(f"v_mul_f32 v8, {-1.0/576!r}, v8\ns_mov_b64 exec, s[46:47]")
    for k in range(8): a(f"v_pk_add_f32 {vr(Y+2*k,2)}, {vr(Y+2*k,2)}, v[8:9] op_sel_hi:[1,0]")
    for k in range(8): a(f"v_pk_fma_f32 v[10:11], {vr(Y+2*k,2)}, {vr(Y+2*k,2)}, v[10:11]")
    a("v_add_f32 v10, v10, v11\ns_mov_b64 exec, -1")
    allreduce(a, 10, 11)
    a(f"""
    v_mov_b32 v11, 0x3727c5ac
    v_fmac_f32 v11, {1.0/576!r}, v10
    v_rsq_f32 v10, v11
    s_mov_b64 exec, s[46:47]
    """)
    for k in range(8): a(f"v_pk_mul_f32 {vr(Y+2*k,2)}, {vr(Y+2*k,2)}, v[10:11] op_sel_hi:[1,0]")
    for k in range(8): a(f"v_pk_fma_f32 {vr(Y+2*k,2)}, {vr(Y+2*k,2)}, {vr(PA+2*k,2)}, {vr(PB+2*k,2)}")
    for k in range(8): a(f"v_cvt_pk_bf16_f32 v{Z+8+k}, v{Y+2*k}, v{Y+2*k+1}")
    a(f"""
    buffer_store_dwordx4 {vr(Z+8)}, v6, s[8:11], s5 offen
    buffer_store_dwordx4 {vr(Z+12)}, v6, s[8:11], s5 offen offset:256
    ; STAMP 4
    """)

def gen():
    a = Asm()
    a(kernel_head(NAME))
    a(f"""
    s_cmp_ge_u32 s2, {NWG}
    s_cbranch_scc1 K3_end
    s_load_dwordx2 s[8:9], s[0:1], {ARG['ws']}
    s_load_dwordx4 s[24:27], s[0:1], {ARG['wg']}
    s_load_dwordx2 s[28:29], s[0:1], {ARG['wd']}
    s_load_dwordx2 s[48:49], s[0:1], {ARG['x']}
    v_lshrrev_b32 v2, 6, v0
    v_and_b32 v0, 63, v0                  ; lane
    v_readfirstlane_b32 s3, v2            ; wave
    v_lshlrev_b32 v7, 4, v0               ; lane*16
    s_mov_b32 s10, {WS_SIZE:#x}
    s_mov_b32 s11, 0x20000
    s_mov_b32 s14, {KV_BYTES}
    s_mov_b32 s15, 0x20000
    s_mov_b32 s18, {WBYTES}
    s_mov_b32 s19, 0x20000
    s_mov_b32 s22, {WPBYTES}
    s_mov_b32 s23, 0x20000
    s_mov_b32 s50, {XBYTES}
    s_mov_b32 s51, 0x20000
    s_and_b32 s4, s2, 7
    s_lshl_b32 s4, s4, 8
    s_and_b32 s5, s2, 0xf8
    s_add_u32 s4, s4, s5
    s_add_u32 s4, s4, s3
    s_lshl_b32 s5, s3, 10
    s_sub_u32 s43, s4, s3
    s_mul_i32 s43, s43, 1152
    s_mul_i32 s6, s3, 144
    s_add_u32 s43, s43, s6
    s_add_u32 s43, s43, {WS_Q:#x}
    s_mov_b32 s31, 0
    s_mov_b32 s40, 1
K3_restart:
    s_setprio 1
    s_cmp_ge_u32 s3, 4
    s_cbranch_scc1 K3_pr
    s_setprio 2
K3_pr:
    v_lshrrev_b32 v122, 5, v0             ; h
    v_and_b32 v123, 31, v0                ; m / head
    v_and_b32 v5, 7, v0
    v_mul_u32_u24 v5, 1152, v5
    v_lshrrev_b32 v6, 3, v123
    v_mul_u32_u24 v6, 36, v6
    v_add_u32 v5, v5, v6
    v_lshl_add_u32 v6, v122, 4, v5        ; q offset
    v_lshl_add_u32 v5, v122, 30, v5
    s_waitcnt lgkmcnt(0)
    s_add_u32 s12, s8, {WS_KV:#x}
    s_addc_u32 s13, s9, 0
    s_add_u32 s20, s8, {WS_WP:#x}
    s_addc_u32 s21, s9, 0
    buffer_load_dwordx4 {vr(Q1)}, v6, s[8:11], s43 offen
    buffer_load_dword v{Q2}, v5, s[8:11], s43 offen offset:32
    s_mov_b32 m0, s5
    s_nop 0
    """)
    for r in range(3):
        a("buffer_load_dwordx4 v7, s[12:15], m0 offen lds")
        a("s_add_u32 m0, m0, 0x2000\ns_nop 0")
    _lab[0] = 0
    a("s_cmp_ge_u32 s3, 4\ns_cbranch_scc1 K3_noprep\ns_add_u32 s39, s4, s3")
    prep_init(a, 0)
    a("v_mov_b32 v14, v4\nv_mov_b32 v130, v120\nv_mov_b32 v131, v129\ns_mov_b32 s52, s34\ns_mov_b32 s53, s37\ns_add_u32 s39, s39, 1")
    prep_init(a, 1)
    a(f"""
K3_noprep:
    s_add_u32 s7, s5, {KV_BYTES}
    v_add_u32 v5, s7, v7
    ; tr read addr: lane (G,i): row i/4 (256B rows), 64B tile G, 8B chunk 2*(i%4)+e
    v_bfe_u32 v6, v0, 2, 2
    v_lshlrev_b32 v6, 8, v6
    v_lshrrev_b32 v121, 4, v0
    v_lshl_add_u32 v6, v121, 6, v6
    v_and_b32 v121, 3, v0
    v_lshl_add_u32 v6, v121, 4, v6
    v_add_u32 v6, s7, v6
    s_add_u32 s41, s5, {18*8192}
    s_cmp_ge_u32 s3, 4
    s_cselect_b32 s41, 0x30000, s41
    v_mov_b32 v{KS[0]+5}, 0x3f803f80
    v_mov_b32 v{KS[1]+5}, 0x3f803f80
    v_mov_b32 v128, 0x71800000
    v_mul_u32_u24 v124, 19, v122
    v_add_lshl_u32 v124, v124, v123, 4
    v_add_u32 v125, 0x30000, v124
    v_cmp_gt_u32 vcc, 19, v123
    s_lshl_b32 s33, s3, 2
    s_add_u32 s33, s33, {LDS_PROG}
    v_cndmask_b32 v124, v125, v124, vcc
    v_mov_b32 v121, s33
    v_mov_b32 v127, 0
    ds_write_b32 v121, v127
    ds_write_b32 v121, v127 offset:32
    s_mul_i32 s42, s3, {135*1024}
    s_mul_i32 s33, s3, {27*1024}
    s_add_u32 s33, s33, {(540 - 108)*1024}
    s_cmp_ge_u32 s3, 4
    s_cselect_b32 s42, s33, s42
    s_add_u32 s42, s42, {WS_WO:#x}
    s_cmp_eq_u32 s31, 0
    s_cbranch_scc1 K3_go
    s_mov_b32 s37, 0x7fff0000
    s_mov_b32 s53, 0x7fff0000
    s_mov_b32 s33, 15
K3_refill:
    buffer_load_dwordx4 v7, s[12:15], m0 offen lds
    s_add_u32 m0, m0, 0x2000
    s_sub_u32 s33, s33, 1
    s_cmp_lg_u32 s33, 0
    s_cbranch_scc1 K3_refill
    s_mov_b32 m0, s41
    s_nop 0
    buffer_load_dwordx4 v7, s[12:15], m0 offen lds
K3_go:
    ; STAMP 1
    s_waitcnt vmcnt(0) lgkmcnt(0)
    s_barrier
    ; STAMP 2
    v_mov_b32 v1, v7
    v_lshlrev_b32 v2, 2, v123
    v_mov_b32 v{Q2+1}, 0
    v_mov_b32 v126, 0xff800000
K3_maxloop:
    """)
    for l in rdK(0): a(l)
    a(f"""
    v_add_u32 v1, {KV_TILE}, v1
    v_add_u32 v2, {KV_TILE}, v2
    s_sub_u32 s40, s40, 1
    s_cmp_lg_u32 s40, 0
    s_waitcnt lgkmcnt(0)
    {M1(0)}
    {M2(0)}
    s_nop 11
    """)
    for i in range(8):
        a(f"v_max3_f32 v126, v{SB[0]+2*i}, v{SB[0]+2*i+1}, v126")
    a(f"""
    s_cbranch_scc1 K3_maxloop
    v_mov_b32 v127, v126
    v_mov_b32 v1, v7
    v_lshlrev_b32 v2, 2, v123
    v_permlane32_swap_b32 v126, v127
    v_mov_b32 v3, v124
    v_max_f32 v126, v126, v127
    """)
    for l in rdK(0) + rdK(1) + rdV(0): a(l)
    a(f"""
    v_sub_f32 v126, 0, v126               ; -m
    v_cvt_pk_bf16_f32 v127, v126, v126
    v_and_b32 v127, 0xffff0000, v127      ; hi
    v_sub_f32 v126, v126, v127            ; r1
    v_cvt_pk_bf16_f32 v125, v127, v126
    v_and_b32 v127, 0xffff0000, v125      ; mid
    v_sub_f32 v126, v126, v127            ; r2
    v_cvt_pk_bf16_f32 v126, v126, 0       ; (lo, 0)
    v_cmp_gt_u32 vcc, 32, v0
    """)
    for i in range(16): a(f"v_mov_b32 v{O+i}, 0")
    a(f"v_cndmask_b32 v{Q2+1}, v126, v125, vcc")
    for i in range(4): a(f"v_mov_b32 v{P+4+i}, 0\nv_mov_b32 v{VS[1]+4+i}, 0")
    a(f"""
    s_add_u32 s30, s31, 3
    s_cmp_lg_u32 s31, 0
    s_waitcnt lgkmcnt(0)
    {M1(0)}
    {M2(0)}
    s_nop 8
    ; STAMP 3
    ; CSTAMP 13
    s_cbranch_scc0 K3_it0
    s_cmp_lt_u32 s3, 4
    s_cbranch_scc1 K3_loopO
    s_branch K3_loopY
K3_it0:
    """)
    def iteration(kind):
        nr = 3; nw = 0; after_prep = 0
        for t in range(16):
            extra = []
            if kind == 0 and t < 12:
                for _ in range(2 if t % 3 == 0 else 1):
                    if nr == 18: extra += ["s_mov_b32 m0, s41", "s_nop 0"]
                    extra += ["buffer_load_dwordx4 v7, s[12:15], m0 offen lds"]
                    if nr < 17: extra += ["s_add_u32 m0, m0, 0x2000", "s_nop 0"]
                    nr += 1
                if t == 7:
                    extra += [f"s_waitcnt vmcnt({nr - 6})", "s_barrier"]
            if kind == 0:
                if t == 8: extra += only_old(p_loads("B"))
                if t == 12: extra += only_old(p_loads("A"))
                if t == 14: extra = only_old(["s_waitcnt vmcnt(2)"] + p_stage("B"))
                if t == 15: extra = only_old(p_store("B") + p_loads("B"))
            elif kind in (3, 4):
                if t == 6: extra = [f"s_waitcnt vmcnt({4 + nw})"] + p_stage("A")
                if t == 7: extra = p_store("A") + p_loads("A"); nwA = nw
                if t == 14: extra = [f"s_waitcnt vmcnt({4 + nw})"] + p_stage("B")
                if t == 15: extra = p_store("B") + (p_loads("B") if kind == 3 else [])
                if kind == 4:
                    for _ in range(2):
                        if nw < 29:
                            extra = extra + wo_load(nw, slot(nw)); nw += 1
                    iteration.afterA = 2 + nw - (nwA if t >= 7 else 0)
            for l in step(t, extra): a(l)
        assert kind != 0 or nr == 19
        a(f"""
        v_add_u32 v1, {16*KV_TILE}, v1
        v_add_u32 v2, {16*KV_TILE}, v2
        v_add_u32 v3, {16*KV_TILE}, v3
        """)
    iteration(0)
    a(f"""
K3_barB:
    ; STAMP 4
    s_cmp_lt_u32 s3, 4
    s_cbranch_scc1 K3_bw
    s_waitcnt vmcnt(0)
K3_bw:
    s_barrier
    ; STAMP 5
    s_cmp_lt_u32 s3, 4
    s_cbranch_scc1 K3_loopO
    """)
    a(f"""
    s_lshl_b32 s33, s3, 11
    s_sub_u32 s33, s33, {8192 - LDS_PAR}
    s_mov_b32 m0, s33
    s_add_u32 s33, s33, {WS_MOD + 2*2304 - LDS_PAR}
    buffer_load_dwordx4 v7, s[8:11], s33 offen lds
    buffer_load_dwordx4 v7, s[8:11], s33 offen offset:1024 lds
    s_cmp_lg_u32 s31, 0
    s_cbranch_scc1 K3_loopY
    """)
    for f in range(27):
        for l in wo_load(f, slot(f)): a(l)
    a(f"""
    v_lshlrev_b32 v4, 5, v0
    s_mul_i32 s6, s4, 1152
    buffer_load_dwordx4 {vr(PX)}, v4, s[48:51], s6 offen
    buffer_load_dwordx4 {vr(PX+4)}, v4, s[48:51], s6 offen offset:16
    """)
    a("; STAMP 11\n.p2align 3\nK3_loopY:")
    iteration(2)
    a(f"""
    s_sub_u32 s30, s30, 1
    s_cmp_eq_u32 s30, 3
    s_cbranch_scc1 K3_barB
    s_cmp_lg_u32 s30, 0
    s_cbranch_scc1 K3_loopY
    s_branch K3_done
.p2align 3
K3_loopO:
    """)
    iteration(3)
    a(f"""
    s_sub_u32 s30, s30, 1
    s_cmp_eq_u32 s30, 3
    s_cbranch_scc1 K3_barB
    s_cmp_lg_u32 s30, 1
    s_cbranch_scc1 K3_loopO
    """)
    iteration(4)
    for l in [f"s_waitcnt vmcnt({iteration.afterA})"] + p_stage("A") + ["s_waitcnt lgkmcnt(0)"] + p_store("A"): a(l)
    a(f"""
K3_done:
    {PV(15, 1)}
    ; STAMP 6
    ; CSTAMP 14
    s_nop 0
    v_and_b32 v1, 7, v0
    v_mul_u32_u24 v1, {OS}, v1
    v_lshrrev_b32 v2, 3, v123
    s_lshr_b32 s33, s3, 2
    s_mul_i32 s33, s33, 576
    s_and_b32 s34, s3, 3
    s_lshl_b32 s35, s34, 7
    s_add_u32 s35, s35, s33
    v_lshl_add_u32 v16, v2, 5, v1
    v_lshl_add_u32 v16, v122, 4, v16
    v_add_u32 v16, s35, v16
    s_lshl_b32 s35, s34, 4
    s_add_u32 s35, s35, s33
    v_lshl_add_u32 v17, v2, 2, v1
    v_mul_u32_u24 v3, 0x30000, v122
    v_add3_u32 v17, v17, v3, s35
    v_and_b32 v2, 15, v0                  ; n16
    v_lshrrev_b32 v3, 4, v0               ; g
    v_lshl_add_u32 v1, v3, 4, v1
    v_mov_b32 v18, v{O+10}
    v_mov_b32 v19, v{O+10}
    v_mul_f32 v20, 0, v{O}
    """)
    for i in range(1, 10): a(f"v_fmac_f32 v20, 0, v{O+i}")
    a(f"""
    v_permlane32_swap_b32 v18, v19
    v_add_f32 v20, v20, v18
    v_rcp_f32 v18, v18
    v_cmp_nlt_f32 vcc, v20, v128
    s_cbranch_vccz K3_fin
    v_mov_b32 v19, 1
    ds_write_b32 v121, v19 offset:32
K3_fin:
    """)
    for i in range(10): a(f"v_mul_f32 v{O+i}, v18, v{O+i}")
    for i in range(5): a(f"v_cvt_pk_bf16_f32 v{24+i}, v{O+2*i}, v{O+2*i+1}")
    a(f"""
    ds_write_b128 v16, v[24:27] offset:{LDS_O}
    ds_write_b32 v17, v28 offset:{LDS_O + 512}
    v_mov_b32 v4, {LDS_PROG}
    v_mul_u32_u24 v5, {RS}, v2
    v_lshl_add_u32 v5, v3, 4, v5
    v_lshrrev_b32 v6, 3, v2
    v_mul_u32_u24 v6, 0x28000, v6
    v_add_u32 v5, v5, v6
    s_mul_i32 s33, s3, 384
    s_mul_i32 s34, s3, 192
    s_add_u32 s34, s34, {24*64 - 4*192}
    s_cmp_ge_u32 s3, 4
    s_cselect_b32 s33, s34, s33
    s_add_u32 s33, s33, {LDS_R2}
    v_add_u32 v6, s33, v5
    v_lshlrev_b32 v2, 5, v0               ; x offset
    v_cmp_gt_u32 vcc, 36, v0
    v_mov_b32 v3, 0x3fff0000
    s_mul_i32 s6, s4, 1152
    v_cndmask_b32 v2, v3, v2, vcc
    s_mov_b64 s[46:47], vcc
    s_cmp_ge_u32 s3, 4
    s_cbranch_scc1 K3_join
    v_mov_b32 v3, 1
    s_mov_b64 exec, 1
    ds_add_u32 v4, v3
    s_mov_b64 exec, -1
    s_mul_i32 s33, s3, 576
    s_add_u32 s33, s33, {LDS_R1}
    v_add_u32 v5, s33, v5
    """)
    a("buffer_load_dword v12, v2, s[48:51], s6 offen")
    for f in range(29, NS):
        for l in wo_load(f, slot(f)): a(l)
    a(f"""
K3_poll:
    ds_read_b32 v8, v4
    s_waitcnt lgkmcnt(0)
    v_cmp_gt_u32 vcc, 4, v8
    s_cbranch_vccz K3_pollok
    s_sleep 2
    s_branch K3_poll
K3_pollok:
    """)
    proj1(a)
    a(f"""
K3_join:
    ; STAMP 7
    s_waitcnt vmcnt(0) lgkmcnt(0)
    s_barrier
    ; STAMP 8
    ds_read_b128 v[16:19], v4 offset:32
    ds_read_b128 v[20:23], v4 offset:48
    s_waitcnt lgkmcnt(0)
    v_or3_b32 v16, v16, v17, v18
    v_or3_b32 v16, v16, v19, v20
    v_or3_b32 v16, v16, v21, v22
    v_or_b32 v16, v16, v23
    v_cmp_ne_u32 vcc, 0, v16
    s_cmp_lg_u32 s31, 0
    s_cbranch_scc1 K3_proj
    s_cbranch_vccz K3_proj
    s_mov_b32 s31, 1
    s_mov_b32 s40, 64
    s_waitcnt vmcnt(0)
    s_barrier
    s_branch K3_restart
K3_proj:
    ; STAMP 1
    """)
    tail(a)
    a("""
K3_end:
    s_endpgm
    """)
    return a.text(), kernel_desc(NAME, 256, 56)
```

```python
from common import *
import os
N_MOD, N_LN, N_PACK, N_WARM = 112, 128, 342, int(os.environ.get("NWARM", "16"))
NWG = N_MOD + N_LN + N_PACK + N_WARM
NAME = "k1_prep_kernel"
LAUNCH = f"; @launch kernel={NAME} grid=({NWG},1,1) block=(256,1,1) lds=2048"

PROF_VGPR = 100
WSH = int(os.environ.get('WSH', '20'))
def gen():
    a = Asm()
    a(kernel_head(NAME))
    a(f"""
    s_load_dwordx2 s[20:21], s[0:1], {ARG['ws']}
    s_mov_b32 s18, 0xffff0000
    s_cmp_ge_u32 s2, {N_MOD}
    s_cbranch_scc1 K1_not_mod
    """)
    C, W, A, U, T = 8, 44, 80, 88, 96
    a(f"""
    s_cmp_ge_u32 s2, 108
    s_cbranch_scc1 K1_zero
    s_load_dwordx4 s[4:7], s[0:1], {ARG['c']}
    v_and_b32 v1, 3, v0
    v_lshrrev_b32 v2, 2, v0
    v_lshlrev_b32 v3, 1, v2
    v_mul_u32_u24 v4, 6912, v2
    v_lshl_add_u32 v4, v1, 4, v4
    s_lshl_b32 s10, s2, 6
    s_mov_b32 s14, {576*6912}
    s_mov_b32 s15, 0x20000
    s_mov_b32 s16, {64*6912}
    s_waitcnt lgkmcnt(0)
    s_mov_b32 s12, s6
    s_mov_b32 s13, s7
    """)
    for i in range(9):
        a(f"buffer_load_dwordx4 {vr(W+4*i)}, v4, s[12:15], s10 offen")
        if i < 8: a("s_add_u32 s10, s10, s16")
        a(f"global_load_ushort v{C+4*i}, v3, s[4:5] offset:{128*i}")
    for i in range(8): a(f"v_mov_b32 v{A+i}, 0")
    a(f"""
    v_lshrrev_b32 v5, 4, v0
    v_lshlrev_b32 v5, 7, v5
    v_lshl_add_u32 v5, v1, 5, v5
    s_mov_b32 s11, 0
    s_waitcnt vmcnt(0)
    ; STAMP 1
K1_mod_loop:
    s_set_gpr_idx_on s11, gpr_idx(SRC1)
    v_lshlrev_b32 v{T}, 16, v{C}
    """)
    for j in range(4):
        a(f"v_lshlrev_b32 v{U+2*j}, 16, v{W+j}\nv_and_b32 v{U+2*j+1}, s18, v{W+j}")
    a(f"""
    s_set_gpr_idx_off
    v_mul_f32 v{T+2}, 0xbfb8aa3b, v{T}
    v_exp_f32 v{T+2}, v{T+2}
    s_add_u32 s11, s11, 4
    v_add_f32 v{T+2}, 1.0, v{T+2}
    v_rcp_f32 v{T+2}, v{T+2}
    s_cmp_lt_u32 s11, 36
    v_mul_f32 v{T+2}, v{T+2}, v{T}
    v_cvt_pk_bf16_f32 v{T+2}, v{T+2}, v{T+2}
    v_and_b32 v{T+2}, s18, v{T+2}
    """)
    for j in range(4):
        a(f"v_pk_fma_f32 {vr(A+2*j,2)}, {vr(U+2*j,2)}, {vr(T+2,2)}, {vr(A+2*j,2)} op_sel_hi:[1,0,1]")
    a("s_cbranch_scc1 K1_mod_loop")
    for rot in (4, 8):
        for j in range(8):
            a(f"v_add_f32_dpp v{A+j}, v{A+j}, v{A+j} row_ror:{rot} row_mask:0xf bank_mask:0xf")
    a(f"""
    ds_write_b128 v5, {vr(A)}
    ds_write_b128 v5, {vr(A+4)} offset:16
    v_and_b32 v6, 31, v0
    v_bfe_u32 v7, v0, 5, 1
    v_lshlrev_b32 v7, 10, v7
    v_lshl_add_u32 v7, v6, 2, v7
    s_mov_b32 s17, 0
    s_sub_u32 s3, s2, 18
    s_cmp_lt_u32 s3, 18
    s_cselect_b32 s17, 1.0, s17
    s_sub_u32 s3, s2, 72
    s_cmp_lt_u32 s3, 18
    s_cselect_b32 s17, 1.0, s17
    s_lshl_b32 s3, s2, 7
    v_lshl_add_u32 v6, v6, 2, s3
    s_waitcnt lgkmcnt(0)
    s_barrier
    ds_read2_b32 v[8:9], v7 offset0:0 offset1:32
    ds_read2_b32 v[10:11], v7 offset0:64 offset1:96
    ds_read2_b32 v[12:13], v7 offset0:128 offset1:160
    ds_read2_b32 v[14:15], v7 offset0:192 offset1:224
    v_cmp_gt_u32 vcc, 32, v0
    s_waitcnt lgkmcnt(0)
    v_pk_add_f32 v[8:9], v[8:9], v[10:11]
    v_pk_add_f32 v[12:13], v[12:13], v[14:15]
    v_pk_add_f32 v[8:9], v[8:9], v[12:13]
    v_add_f32 v8, v8, v9
    v_mov_b32 v9, v8
    s_nop 1
    v_permlane32_swap_b32 v8, v9
    v_add_f32 v8, v8, v9
    v_cvt_pk_bf16_f32 v8, v8, v8
    v_and_b32 v8, s18, v8
    v_add_f32 v8, s17, v8
    v_cvt_pk_bf16_f32 v8, v8, v8
    v_and_b32 v8, s18, v8
    s_and_saveexec_b64 s[22:23], vcc
    s_cbranch_execz K1_end
    global_store_dword v6, v8, s[20:21]
    s_endpgm
K1_not_mod:
    s_cmp_ge_u32 s2, {N_MOD+N_LN}
    s_cbranch_scc1 K1_pack
    """)
    X, Y = 8, 28
    a(f"""
    s_load_dwordx2 s[4:5], s[0:1], {ARG['x']}
    s_sub_u32 s3, s2, {N_MOD}
    s_and_b32 s6, s3, 7
    s_lshl_b32 s6, s6, 4
    s_lshr_b32 s3, s3, 3
    s_add_u32 s3, s3, s6
    v_lshrrev_b32 v1, 4, v0
    v_lshl_add_u32 v1, s3, 4, v1          ; row
    v_and_b32 v2, 15, v0                  ; c
    v_mul_u32_u24 v3, 1152, v1
    v_lshl_add_u32 v3, v2, 3, v3
    v_mov_b32 v7, 0x3f803f80
    v_mov_b32 v4, 0
    s_waitcnt lgkmcnt(0)
    """)
    for i in range(9):
        a(f"global_load_dwordx2 {vr(X+2*i,2)}, v3, s[4:5] offset:{128*i}")
    a(f"""
    v_lshrrev_b32 v5, 5, v1
    v_mul_u32_u24 v5, 36864, v5
    v_and_b32 v6, 31, v1
    v_lshl_add_u32 v5, v6, 4, v5
    v_lshrrev_b32 v6, 1, v2
    v_lshl_add_u32 v5, v6, 9, v5
    v_and_b32 v6, 1, v2
    v_lshl_add_u32 v5, v6, 3, v5
    v_add_u32 v5, {WS_XN:#x}, v5
    s_movk_i32 s16, 0x1000
    s_waitcnt vmcnt(0)
    ; STAMP 1
    """)
    for i in range(18):
        a(f"v_dot2c_f32_bf16 v4, v{X+i}, v7")
    for i in range(18):
        a(f"v_lshlrev_b32 v{Y+2*i}, 16, v{X+i}\nv_and_b32 v{Y+2*i+1}, s18, v{X+i}")
    for rot in (1, 2, 4, 8):
        a(f"v_add_f32_dpp v4, v4, v4 row_ror:{rot} row_mask:0xf bank_mask:0xf\ns_nop 1")
    a(f"v_mul_f32 v4, {-1.0/576!r}, v4\nv_mov_b32 v64, 0\nv_mov_b32 v65, 0")
    for i in range(18):
        a(f"v_pk_add_f32 {vr(Y+2*i,2)}, {vr(Y+2*i,2)}, v[4:5] op_sel_hi:[1,0]")
    for i in range(18):
        a(f"v_pk_fma_f32 v[64:65], {vr(Y+2*i,2)}, {vr(Y+2*i,2)}, v[64:65]")
    a("v_add_f32 v64, v64, v65\ns_nop 1")
    for rot in (1, 2, 4, 8):
        a(f"v_add_f32_dpp v64, v64, v64 row_ror:{rot} row_mask:0xf bank_mask:0xf\ns_nop 1")
    a(f"""
    v_mov_b32 v65, 0x3727c5ac
    v_fmac_f32 v65, {1.0/576!r}, v64
    v_rsq_f32 v64, v65
    s_nop 0
    """)
    for i in range(9):
        a(f"v_pk_mul_f32 {vr(Y+4*i,2)}, {vr(Y+4*i,2)}, v[64:65] op_sel_hi:[1,0]")
        a(f"v_pk_mul_f32 {vr(Y+4*i+2,2)}, {vr(Y+4*i+2,2)}, v[64:65] op_sel_hi:[1,0]")
        a(f"v_cvt_pk_bf16_f32 v{X+2*i}, v{Y+4*i}, v{Y+4*i+1}")
        a(f"v_cvt_pk_bf16_f32 v{X+2*i+1}, v{Y+4*i+2}, v{Y+4*i+3}")
        a(f"global_store_dwordx2 v5, {vr(X+2*i,2)}, s[20:21]")
        if i < 8: a("v_add_u32 v5, s16, v5")
    a("s_endpgm")
    a(f"""
K1_pack:
    s_cmp_ge_u32 s2, {N_MOD+N_LN+N_PACK}
    s_cbranch_scc1 K1_warm
    s_load_dwordx8 s[4:11], s[0:1], {ARG['wq']}
    v_lshrrev_b32 v1, 6, v0
    v_and_b32 v2, 63, v0
    v_readfirstlane_b32 s3, v1
    s_sub_u32 s12, s2, {N_MOD+N_LN}
    s_lshl_b32 s12, s12, 2
    v_and_b32 v3, 31, v2                 ; m
    v_lshrrev_b32 v4, 5, v2              ; h
    s_add_u32 s12, s12, s3
    s_mul_hi_u32 s13, s12, {(1<<32)//36+1}   ; tile
    s_mul_i32 s14, s13, 36
    s_sub_u32 s14, s12, s14              ; s
    v_and_b32 v5, 0x13, v3
    v_bfe_u32 v6, v3, 2, 1
    v_lshl_add_u32 v5, v6, 3, v5
    v_bfe_u32 v6, v3, 3, 1
    v_lshl_add_u32 v5, v6, 2, v5
    s_waitcnt lgkmcnt(0)
    s_mov_b32 s24, s4
    s_mov_b32 s25, s5
    s_mov_b32 s26, {576*1152}
    s_mov_b32 s27, 0x20000
    s_movk_i32 s28, 1152                 ; stride
    s_lshl_b32 s29, s14, 4
    s_mov_b32 s30, 8                     ; h multiplier
    s_movk_i32 s31, 2304                 ; A
    s_lshl_b32 s15, s13, 6
    s_mov_b32 s16, 32
    s_cmp_lt_u32 s13, 18
    s_cbranch_scc1 K1_pack_go
    s_cmp_ge_u32 s13, 20
    s_cbranch_scc1 K1_pack_wo
    s_cmp_eq_u32 s13, 18
    s_cselect_b32 s24, s6, s8
    s_cselect_b32 s25, s7, s9
    s_movk_i32 s26, {576*36}
    s_mov_b32 s28, 36
    s_movk_i32 s31, 72
    s_mov_b32 s15, 0
    s_mov_b32 s16, 18
    s_branch K1_pack_go
K1_pack_wo:
    ; 16x32 fragments: f' = f-720 -> (ct = f'/18, s = f'%18); lane (g, m16)
    s_mov_b32 s24, s10
    s_mov_b32 s25, s11
    s_sub_u32 s12, s12, 720
    s_mul_hi_u32 s13, s12, {(1<<32)//18+1}   ; ct
    s_mul_i32 s14, s13, 18
    s_sub_u32 s14, s12, s14                  ; s
    s_lshl_b32 s15, s13, 5
    v_and_b32 v5, 15, v2
    s_mul_hi_u32 s12, s13, {(1<<32)//9+1}
    s_mul_i32 s12, s12, 54
    s_mul_i32 s17, s13, 9
    s_add_u32 s12, s12, s17
    s_add_u32 s12, s12, s14                  ; half 0
    s_mov_b32 s29, 0
    s_cmp_lt_u32 s14, 9
    s_cbranch_scc1 K1_wo_d
    s_movk_i32 s29, 288
    s_sub_u32 s14, s14, 9                    ; ks
    s_mul_hi_u32 s12, s13, {(1<<32)//6+1}
    s_mul_i32 s12, s12, 129
    s_mul_i32 s17, s14, 6
    s_add_u32 s12, s12, s17
    s_add_u32 s12, s12, s13
    s_add_u32 s12, s12, 81
    s_cmp_lt_u32 s13, 24
    s_cbranch_scc1 K1_wo_d
    s_mul_hi_u32 s12, s13, {(1<<32)//3+1}
    s_mul_i32 s12, s12, 24
    s_mul_i32 s17, s14, 3
    s_add_u32 s12, s12, s17
    s_add_u32 s12, s12, s13
    s_add_u32 s12, s12, {540 - 8*27}
K1_wo_d:
    s_add_u32 s12, s12, 720
    v_lshrrev_b32 v4, 4, v2                  ; g
    s_add_u32 s29, s29, 16
    s_movk_i32 s30, 72
    s_movk_i32 s31, {18*1152}
    s_cmp_eq_u32 s14, 8
    s_cbranch_scc1 K1_pack_go
    s_mul_i32 s17, s14, 36
    s_add_u32 s29, s29, s17
    s_sub_u32 s29, s29, 16
    s_mov_b32 s30, 2
    s_movk_i32 s31, 2304
    v_lshrrev_b32 v6, 1, v4
    v_lshl_add_u32 v4, v4, 2, v6             ; (18*(g>>1) + 8*(g&1))/2 = 4g + (g>>1)
K1_pack_go:
    v_mov_b32 v7, s29
    v_mad_u32_u24 v7, v4, s30, v7        ; row
    v_mul_u32_u24 v7, s28, v7
    v_lshl_add_u32 v7, v5, 1, v7
    v_cmp_gt_u32 vcc, s16, v5
    v_mov_b32 v8, 0x7fffffff
    s_add_u32 s17, s15, s28
    v_cndmask_b32 v7, v8, v7, vcc
    """)
    for jj in range(4):
        a(f"buffer_load_ushort v{10+2*jj}, v7, s[24:27], s15 offen")
        a(f"buffer_load_ushort v{11+2*jj}, v7, s[24:27], s17 offen")
        if jj < 3: a("s_add_u32 s15, s15, s31\ns_add_u32 s17, s17, s31")
    a(f"""
    s_lshl_b32 s12, s12, 10
    s_add_u32 s12, s12, {WS_WQKV:#x}
    v_lshl_add_u32 v9, v2, 4, s12
    s_waitcnt vmcnt(0)
    ; STAMP 1
    v_lshl_or_b32 v20, v11, 16, v10
    v_lshl_or_b32 v21, v13, 16, v12
    v_lshl_or_b32 v22, v15, 16, v14
    v_lshl_or_b32 v23, v17, 16, v16
    global_store_dwordx4 v9, v[20:23], s[20:21]
    s_endpgm
K1_zero:
    s_sub_u32 s3, s2, 108
    s_lshl_b32 s3, s3, 15
    s_add_u32 s3, s3, {WS_FLAG:#x}
    v_lshl_add_u32 v1, v0, 4, s3
    v_mov_b32 v4, 0
    v_mov_b32 v5, 0
    v_mov_b32 v6, 0
    v_mov_b32 v7, 0
    s_mov_b32 s4, 8
    s_waitcnt lgkmcnt(0)
K1_zloop:
    global_store_dwordx4 v1, v[4:7], s[20:21]
    v_add_u32 v1, 0x1000, v1
    s_sub_u32 s4, s4, 1
    s_cmp_lg_u32 s4, 0
    s_cbranch_scc1 K1_zloop
    s_endpgm
K1_warm:
    s_cmp_ge_u32 s2, {NWG}
    s_cbranch_scc1 K1_end
    s_load_dwordx4 s[4:7], s[0:1], {ARG['wg']}
    s_load_dwordx2 s[8:9], s[0:1], {ARG['wd']}
    v_lshlrev_b32 v1, {WSH}, v0
    s_mov_b32 s22, 0x2000000
    s_mov_b32 s23, 0x20000
    s_mov_b32 s10, {576*4608*2}
    s_mov_b32 s11, 0x20000
    s_mov_b32 s14, {576*4608*2}
    s_mov_b32 s15, 0x20000
    s_mov_b32 s18, {576*4608*2}
    s_mov_b32 s19, 0x20000
    s_getpc_b64 s[28:29]
K1_pc:
    s_add_u32 s28, s28, k2_qkv_kernel-K1_pc
    s_addc_u32 s29, s29, 0
    v_lshlrev_b32 v2, 7, v0
    v_min_u32 v2, k5_ffn_kernel-k2_qkv_kernel-4, v2
    global_load_dword v10, v2, s[28:29]
    s_waitcnt lgkmcnt(0)
    s_mov_b32 s12, s4
    s_mov_b32 s13, s5
    s_mov_b32 s16, s6
    s_mov_b32 s17, s7
    buffer_load_dword v7, v1, s[20:23], 0 offen
    buffer_load_dword v4, v1, s[8:11], 0 offen
    buffer_load_dword v5, v1, s[12:15], 0 offen
    buffer_load_dword v6, v1, s[16:19], 0 offen
    s_waitcnt vmcnt(0)
K1_end:
    s_endpgm
    """)
    return a.text(), kernel_desc(NAME, 101, 32)
```

```python
from common import *
NAME = "k3_attn_kernel"
NWG = 256
LDS_PROG = KV_BYTES + 8192
LDS = LDS_PROG + 64
OS = 1168
LDS_O = 0
LDS_PAR = 8 * OS
RS = 2320
LDS_R1 = LDS_PAR + 8192
assert LDS_R1 + 8 * RS <= 16 * KV_TILE
LDS_R2 = 16 * KV_TILE
W1, W2 = 132, 32
LAUNCH = f"; @launch kernel={NAME} grid=({NWG},1,1) block=(512,1,1) lds={LDS}"
Q1, Q2 = 8, 12
SB = (16, 32)
P, O = 48, 56
KS = (72, 80)
VS = (88, 96)
R, T = 104, 112
WBYTES = 576 * 4608 * 2
WPBYTES = 16 * 972 * 1024

def rdK(t):
    k = KS[t % 2]; o = t * KV_TILE
    return [f"ds_read_b128 {vr(k)}, v1 offset:{o}", f"ds_read_b32 v{k+4}, v2 offset:{o+KV_K2}"]
def rdV(t):
    v = VS[t % 2]; o = t * KV_TILE + KV_V
    return [f"ds_read_b128 {vr(v)}, v3 offset:{o}", f"ds_read_b128 {vr(v+4)}, v3 offset:{o+608}"]
def M1(t): return f"v_mfma_f32_32x32x16_bf16 {vr(SB[t%2],16)}, {vr(KS[t%2])}, {vr(Q1)}, 0"
def M2(t): return f"v_mfma_f32_32x32x8_bf16 {vr(SB[t%2],16)}, {vr(KS[t%2]+4,2)}, {vr(Q2,2)}, {vr(SB[t%2],16)}"
def PV(t, b): return f"v_mfma_f32_32x32x16_bf16 {vr(O,16)}, {vr(VS[t%2]+4*b)}, {vr(P+4*b)}, {vr(O,16)}"

import os
STEP = os.environ.get("K3STEP", "F")
def step(t, extra=()):
    s = SB[t % 2]
    e = [f"v_exp_f32 v{s+i}, v{s+i}" for i in range(16)]
    c = [f"v_cvt_pk_bf16_f32 v{P+i}, v{s+2*i}, v{s+2*i+1}" for i in range(8)]
    rk = rdK(t + 2); rv = rdV(t + 1)
    if STEP == "A":
        L = ["s_waitcnt lgkmcnt(0)", M1(t + 1)] + e[0:4] + [PV(t - 1, 1)] + list(extra) + rk + rv
        L += e[4:8] + c[0:2] + [M2(t + 1)] + c[2:4] + e[8:12] + [PV(t, 0)] + e[12:16] + c[4:8]
    elif STEP == "D":
        L = ["s_waitcnt lgkmcnt(0)", M1(t + 1)] + list(extra) + [rk[0]] + e[0:4] + [PV(t - 1, 1), rv[0]]
        L += e[4:8] + c[0:2] + [M2(t + 1), rv[1]] + c[2:4] + e[8:12] + [PV(t, 0), rk[1]] + e[12:16] + c[4:8]
    else:
        L = [M1(t + 1)] + list(extra) + rk + e[0:4] + [PV(t - 1, 1)] + rv
        L += e[4:8] + c[0:2] + [M2(t + 1)] + c[2:4] + e[8:12] + [PV(t, 0), "s_waitcnt lgkmcnt(0)"] + e[12:16] + c[4:8]
    return L

class _N: n = 0
prep_setup = _N
STREAM = 972 * 1024
def magic(d): return (1 << 32) // d + 1
def prep_init(a0, n):
    a = lambda t: a0(t.replace('K3_pi_', f'K3_pi{n}_'))
    a(f"""
    s_lshl_b32 s33, s39, 2                      ; T0
    v_bfe_u32 v104, v0, 2, 2
    v_lshrrev_b32 v105, 4, v0
    s_cmp_ge_u32 s33, 5184
    s_cbranch_scc1 K3_pi_down
    s_cmp_ge_u32 s33, 2592
    s_cselect_b32 s16, s26, s24
    s_cselect_b32 s17, s27, s25
    s_cselect_b32 s35, 2592, 0
    s_cselect_b32 s37, 2048, 0
    s_sub_u32 s33, s33, s35
    s_mul_hi_u32 s34, s33, {magic(144)}         ; s
    s_mul_i32 s35, s34, 144
    s_sub_u32 s33, s33, s35                     ; Pg0
    s_lshl_b32 s35, s34, 12
    s_add_u32 s37, s37, s35                     ; + s*4096
    s_mul_i32 s34, s34, {32*9216}
    s_lshl_b32 s35, s33, 6
    s_add_u32 s34, s34, s35
    s_mov_b32 s36, {4*9216}
    v_and_b32 v4, 15, v0
    v_lshlrev_b32 v4, 4, v4
    v_mul_u32_u24 v106, 9216, v105
    v_add_u32 v4, v4, v106
    v_add_u32 v105, s33, v105                   ; Pg
    s_mov_b32 s35, {magic(9)}
    v_mul_hi_u32 v106, v105, s35                ; j
    v_mul_u32_u24 v107, 9, v106
    v_sub_u32 v105, v105, v107                  ; P
    s_mov_b32 s35, {STREAM}
    v_mul_lo_u32 v106, v106, s35
    v_mul_u32_u24 v105, {72*1024}, v105
    s_branch K3_pi_end
K3_pi_down:
    s_sub_u32 s33, s33, 5184
    s_mov_b32 s16, s28
    s_mov_b32 s17, s29
    s_mov_b32 s34, 0
    s_mov_b32 s37, {648*1024}
    s_movk_i32 s36, {4*1152}
    s_mov_b32 s35, {magic(18)}
    v_add_u32 v104, s33, v104                   ; T (source)
    v_mul_hi_u32 v106, v104, s35                ; kb
    v_mul_u32_u24 v107, 18, v106
    v_sub_u32 v104, v104, v107                  ; P'
    v_lshl_add_u32 v106, v106, 5, v105
    v_mul_u32_u24 v106, 1152, v106
    v_lshl_add_u32 v106, v104, 6, v106
    v_and_b32 v4, 3, v0
    v_lshl_add_u32 v4, v4, 4, v106
    v_add_u32 v105, s33, v105                   ; T (dest)
    v_mul_hi_u32 v106, v105, s35                ; kb
    v_mul_u32_u24 v107, 18, v106
    v_sub_u32 v105, v105, v107                  ; P'
    s_mov_b32 s35, {magic(9)}
    v_mul_hi_u32 v107, v106, s35                ; j
    v_mul_u32_u24 v104, 9, v107
    v_sub_u32 v104, v106, v104                  ; c
    v_cmp_le_u32 vcc, 9, v105
    v_subrev_u32 v108, 9, v105
    v_mov_b32 v109, 0
    v_cndmask_b32 v105, v105, v108, vcc         ; b9
    v_cndmask_b32 v109, v109, 2, vcc            ; 2*qq
    s_mov_b32 s35, {STREAM}
    v_and_b32 v120, 15, v0
    v_lshlrev_b32 v120, 4, v120
    """)
    for e, dst in ((1, 129), (0, 120)):
        a(f"""
    v_mov_b32 v119, {252+e}
    v_lshl_add_u32 v110, v105, 1, {e}
    v_cmp_le_u32 vcc, 9, v110
    v_subrev_u32 v111, 10, v110
    v_min_u32 v111, 8, v111
    v_addc_co_u32 v112, s[44:45], 0, v109, vcc  ; q
    v_cndmask_b32 v110, v110, v111, vcc         ; t
    v_sub_u32 v113, v107, v112
    v_and_b32 v113, 3, v113                     ; p = (j - q) & 3
    v_mul_u32_u24 v114, 3, v104
    v_add3_u32 v114, v114, v113, 8              ; 9 + 3c + p - 1
    v_cmp_eq_u32 vcc, 0, v113
    v_and_b32 v115, 0xfc, v107
    v_add_u32 v115, v115, v112                  ; stream = 4J + q
    v_cndmask_b32 v114, v114, v104, vcc         ; kpos
    v_lshrrev_b32 v116, 2, v107                 ; J
    v_lshrrev_b32 v117, 1, v110                 ; pair
    v_sub_u32 v116, v117, v116
    v_subrev_u32 v116, 1, v116
    v_and_b32 v116, 3, v116                     ; rel
    v_lshl_add_u32 v117, v116, 1, {e}           ; 2*rel+e
    v_cmp_eq_u32 vcc, 8, v110
    v_mul_u32_u24 v118, 7, v114
    v_lshl_add_u32 v114, v114, 1, v119          ; 252 + e + 2*kpos
    v_cndmask_b32 v117, v117, 6, vcc
    v_cndmask_b32 v116, v116, 0, vcc
    v_add_u32 v118, v118, v117
    v_cmp_eq_u32 vcc, 3, v116
    s_nop 1
    v_cndmask_b32 v114, v118, v114, vcc
    v_lshlrev_b32 v114, 10, v114
    v_mul_lo_u32 v115, v115, s35
    v_add3_u32 v{dst}, v120, v114, v115
    """)
    a(f"""
    s_branch K3_pi_done
K3_pi_end:
    v_and_b32 v120, 15, v0
    v_lshlrev_b32 v120, 4, v120
    v_add3_u32 v120, v120, v105, v106
    v_add_u32 v129, 0x400, v120
K3_pi_done:
    """)
RA = 248
CTX = {"A": (14, 130, 131, 52, 53, RA), "B": (4, 120, 129, 34, 37, R)}
def p_loads(c):
    va, _, _, ss, _, r = CTX[c]
    return [f"buffer_load_dwordx4 {vr(r)}, v{va}, s[16:19], s{ss} offen", f"s_add_u32 s{ss}, s{ss}, s36",
            f"buffer_load_dwordx4 {vr(r+4)}, v{va}, s[16:19], s{ss} offen", f"s_add_u32 s{ss}, s{ss}, s36"]
def p_stage(c):
    r = CTX[c][5]
    return [f"ds_write_b128 v5, {vr(r)}", f"ds_read_b64_tr_b16 {vr(T,2)}, v6", f"ds_read_b64_tr_b16 {vr(T+4,2)}, v6 offset:8",
            f"ds_write_b128 v5, {vr(r+4)}", f"ds_read_b64_tr_b16 {vr(T+2,2)}, v6", f"ds_read_b64_tr_b16 {vr(T+6,2)}, v6 offset:8"]
def p_store(c):
    _, d0, d1, _, sd, _ = CTX[c]
    return [f"buffer_store_dwordx4 {vr(T)}, v{d0}, s[20:23], s{sd} offen sc1", f"buffer_store_dwordx4 {vr(T+4)}, v{d1}, s[20:23], s{sd} offen sc1",
            f"s_add_u32 s{sd}, s{sd}, 256"]
_lab = [0]
def only_old(L):
    _lab[0] += 1
    return ["s_cmp_ge_u32 s3, 4", f"s_cbranch_scc1 K3_oo{_lab[0]}"] + L + [f"K3_oo{_lab[0]}:"]

PROF_VGPR = 15
def wreg(f):
    return W1 + 4 * f if f < 31 else W2 + 4 * (f - 31)
def wo_load(f, reg):
    L = [f"buffer_load_dwordx4 {vr(reg)}, v7, s[8:11], s42 offen offset:{(f%4)*1024}"]
    if f % 4 == 3: L.append("s_add_u32 s42, s42, 0x1000")
    return L

class Track:
    def __init__(self, init=(), cap=63): self.q = list(init); self.cap = cap
    def issue(self, tag): self.q.append(tag)
    def need(self, tag):
        if tag not in self.q: return None
        k = len(self.q) - 1 - max(i for i, t in enumerate(self.q) if t == tag)
        k = min(k, self.cap)
        self.q = self.q[len(self.q) - k:] if k else []
        return k

NS = 54
def slot(k): return W1 + 4 * k if k < 31 else (128 if k == 31 else 40 + 4 * (k - 32))
ACCQ = (16, 20, 24, 28, 32, 36)
PX = slot(27)
XLOAD = [f"buffer_load_dwordx4 {vr(PX)}, v2, s[48:51], s6 offen", f"buffer_load_dwordx4 {vr(PX+4)}, v2, s[48:51], s6 offen offset:16"]

def proj1(a):
    vm = Track([("w", 0)] + [("w", f) for f in range(29, NS)])
    lg = Track(cap=15)
    BQ = (8, 24, 28, 32, 36)
    def rdB(i):
        a(f"ds_read_b128 {vr(BQ[i%5])}, v1 offset:{LDS_O + (i%9)*64}"); lg.issue(("b", i))
    for i in range(4): rdB(i)
    for f in range(81):
        tl, s_ = divmod(f, 9)
        acc = ACCQ[tl % 2]
        if f + 4 < 81: rdB(f + 4)
        w = []
        n = vm.need(("w", f))
        if n is not None: w.append(f"vmcnt({n})")
        n = lg.need(("b", f))
        if n is not None: w.append(f"lgkmcnt({n})")
        if w: a("s_waitcnt " + " ".join(w))
        a(f"v_mfma_f32_16x16x32_bf16 {vr(acc)}, {vr(slot(f % NS))}, {vr(BQ[f%5])}, {'0' if s_ == 0 else vr(acc)}")
        for l in wo_load(f + NS, slot(f % NS)): a(l)
        vm.issue(("w", f + NS))
        if s_ == 4 and tl > 0:
            a(f"ds_write_b128 v5, {vr(ACCQ[(tl-1)%2])} offset:{(tl-1)*64}"); lg.issue(("r",))
    a(f"s_nop 7\nds_write_b128 v5, {vr(ACCQ[0])} offset:{8*64}")

def proj2(a, old):
    nt = 6 if old else 3
    lg = Track(cap=15)
    reg = (lambda i: slot((81 + i) % NS)) if old else (lambda i: slot(i))
    breg = (lambda k: 8 if k == 0 else reg(k + 1)) if old else (lambda k: 40 + 4 * k)
    def rdB(k):
        a(f"ds_read_b128 {vr(breg(k))}, v1 offset:{LDS_O + (9 + k)*64}"); lg.issue(("b", k))
    if old: rdB(0)
    else:
        for k in range(9): rdB(k)
    for i in range(9 * nt):
        k, tl = divmod(i, nt)
        n = lg.need(("b", k))
        if n is not None: a(f"s_waitcnt lgkmcnt({n})")
        a(f"v_mfma_f32_16x16x32_bf16 {vr(ACCQ[tl])}, {vr(reg(i))}, {vr(breg(k))}, {'0' if k == 0 else vr(ACCQ[tl])}")
        if old and i == 1:
            for l in XLOAD: a(l)
        if old and 2 <= i <= 9: rdB(i - 1)
    a("s_nop 7")
    for tl in range(nt): a(f"ds_write_b128 v6, {vr(ACCQ[tl])} offset:{tl*64}")

def allreduce(a, r, t):
    for rot in (1, 2, 4, 8):
        a(f"s_nop 1\nv_add_f32_dpp v{r}, v{r}, v{r} row_ror:{rot} row_mask:0xf bank_mask:0xf")
    for op in ("v_permlane16_swap_b32", "v_permlane32_swap_b32"):
        a(f"v_mov_b32 v{t}, v{r}\ns_nop 1\n{op} v{r}, v{t}\nv_add_f32 v{r}, v{r}, v{t}")

def tail(a):
    a("""
    s_cmp_ge_u32 s3, 4
    s_cbranch_scc1 K3_projy
    """)
    proj2(a, True)
    a("s_branch K3_ln\nK3_projy:")
    proj2(a, False)
    Y, U, Z, Y2, PG, PA, PB = 168, 48, 64, 80, 152, 112, 136
    PXr = [PX + k for k in range(8)]
    a(f"""
K3_ln:
    ; STAMP 2
    s_mul_i32 s33, s3, {RS}
    v_lshl_add_u32 v4, v0, 6, s33
    v_lshlrev_b32 v5, 6, v0
    s_mov_b64 exec, s[46:47]
    """)
    for k in range(4): a(f"ds_read_b128 {vr(PG+4*k)}, v5 offset:{LDS_PAR + 16*k}")
    for k in range(4): a(f"ds_read_b128 {vr(PB+4*k)}, v5 offset:{LDS_PAR + 2304 + 16*k}")
    for k in range(4): a(f"ds_read_b128 {vr(PA+4*k)}, v5 offset:{LDS_PAR + 4608 + 16*k}")
    for k in range(4): a(f"ds_read_b128 {vr(Y2+4*k)}, v4 offset:{LDS_R1 + 16*k}")
    a(f"""
    s_lshr_b32 s5, s4, 4
    s_mul_i32 s5, s5, {72*256}
    s_and_b32 s6, s4, 15
    s_lshl_b32 s6, s6, 4
    s_add_u32 s5, s5, s6
    s_add_u32 s6, s5, {WS_X1:#x}
    s_add_u32 s5, s5, {WS_O:#x}
    v_lshlrev_b32 v6, 9, v0
    s_mov_b32 s33, 0xffff0000
    s_waitcnt vmcnt(0)
    """)
    for k in range(8): a(f"v_lshlrev_b32 v{U+2*k}, 16, v{PXr[k]}\nv_and_b32 v{U+2*k+1}, s33, v{PXr[k]}")
    a(f"""
    s_mov_b64 exec, -1
    v_mov_b32 v8, 0
    v_mov_b32 v9, 0
    v_mov_b32 v10, 0
    v_mov_b32 v11, 0
    s_mov_b64 exec, s[46:47]
    ; STAMP 9
    s_waitcnt lgkmcnt(0)
    s_barrier
    ; STAMP 10
    """)
    for k in range(4): a(f"ds_read_b128 {vr(Y+4*k)}, v4 offset:{LDS_R2 + 16*k}")
    for k in range(8): a(f"v_pk_fma_f32 {vr(U+2*k,2)}, {vr(Y2+2*k,2)}, {vr(PG+2*k,2)}, {vr(U+2*k,2)}")
    a("s_waitcnt lgkmcnt(0)")
    for k in range(8): a(f"v_pk_fma_f32 {vr(Y+2*k,2)}, {vr(Y+2*k,2)}, {vr(PG+2*k,2)}, {vr(U+2*k,2)}")
    for k in range(8): a(f"v_cvt_pk_bf16_f32 v{Z+k}, v{Y+2*k}, v{Y+2*k+1}")
    a(f"""
    buffer_store_dwordx4 {vr(Z)}, v6, s[8:11], s6 offen
    buffer_store_dwordx4 {vr(Z+4)}, v6, s[8:11], s6 offen offset:256
    """)
    for k in range(8): a(f"v_lshlrev_b32 v{Y+2*k}, 16, v{Z+k}\nv_and_b32 v{Y+2*k+1}, s33, v{Z+k}")
    for k in range(8): a(f"v_pk_add_f32 v[8:9], v[8:9], {vr(Y+2*k,2)}")
    a("v_add_f32 v8, v8, v9\ns_mov_b64 exec, -1")
    allreduce(a, 8, 9)
    a("; STAMP 3")
    a(f"v_mul_f32 v8, {-1.0/576!r}, v8\ns_mov_b64 exec, s[46:47]")
    for k in range(8): a(f"v_pk_add_f32 {vr(Y+2*k,2)}, {vr(Y+2*k,2)}, v[8:9] op_sel_hi:[1,0]")
    for k in range(8): a(f"v_pk_fma_f32 v[10:11], {vr(Y+2*k,2)}, {vr(Y+2*k,2)}, v[10:11]")
    a("v_add_f32 v10, v10, v11\ns_mov_b64 exec, -1")
    allreduce(a, 10, 11)
    a(f"""
    v_mov_b32 v11, 0x3727c5ac
    v_fmac_f32 v11, {1.0/576!r}, v10
    v_rsq_f32 v10, v11
    s_mov_b64 exec, s[46:47]
    """)
    for k in range(8): a(f"v_pk_mul_f32 {vr(Y+2*k,2)}, {vr(Y+2*k,2)}, v[10:11] op_sel_hi:[1,0]")
    for k in range(8): a(f"v_pk_fma_f32 {vr(Y+2*k,2)}, {vr(Y+2*k,2)}, {vr(PA+2*k,2)}, {vr(PB+2*k,2)}")
    for k in range(8): a(f"v_cvt_pk_bf16_f32 v{Z+8+k}, v{Y+2*k}, v{Y+2*k+1}")
    a(f"""
    buffer_store_dwordx4 {vr(Z+8)}, v6, s[8:11], s5 offen
    buffer_store_dwordx4 {vr(Z+12)}, v6, s[8:11], s5 offen offset:256
    ; STAMP 4
    """)

def gen():
    a = Asm()
    a(kernel_head(NAME))
    a(f"""
    s_cmp_ge_u32 s2, {NWG}
    s_cbranch_scc1 K3_end
    s_load_dwordx2 s[8:9], s[0:1], {ARG['ws']}
    s_load_dwordx4 s[24:27], s[0:1], {ARG['wg']}
    s_load_dwordx2 s[28:29], s[0:1], {ARG['wd']}
    s_load_dwordx2 s[48:49], s[0:1], {ARG['x']}
    v_lshrrev_b32 v2, 6, v0
    v_and_b32 v0, 63, v0                  ; lane
    v_readfirstlane_b32 s3, v2            ; wave
    v_lshlrev_b32 v7, 4, v0               ; lane*16
    s_mov_b32 s10, {WS_SIZE:#x}
    s_mov_b32 s11, 0x20000
    s_mov_b32 s14, {KV_BYTES}
    s_mov_b32 s15, 0x20000
    s_mov_b32 s18, {WBYTES}
    s_mov_b32 s19, 0x20000
    s_mov_b32 s22, {WPBYTES}
    s_mov_b32 s23, 0x20000
    s_mov_b32 s50, {XBYTES}
    s_mov_b32 s51, 0x20000
    s_and_b32 s4, s2, 7
    s_lshl_b32 s4, s4, 8
    s_and_b32 s5, s2, 0xf8
    s_add_u32 s4, s4, s5
    s_add_u32 s4, s4, s3
    s_lshl_b32 s5, s3, 10
    s_sub_u32 s43, s4, s3
    s_mul_i32 s43, s43, 1152
    s_mul_i32 s6, s3, 144
    s_add_u32 s43, s43, s6
    s_add_u32 s43, s43, {WS_Q:#x}
    s_mov_b32 s31, 0
    s_mov_b32 s40, 1
K3_restart:
    s_setprio 1
    s_cmp_ge_u32 s3, 4
    s_cbranch_scc1 K3_pr
    s_setprio 2
K3_pr:
    v_lshrrev_b32 v122, 5, v0             ; h
    v_and_b32 v123, 31, v0                ; m / head
    v_and_b32 v5, 7, v0
    v_mul_u32_u24 v5, 1152, v5
    v_lshrrev_b32 v6, 3, v123
    v_mul_u32_u24 v6, 36, v6
    v_add_u32 v5, v5, v6
    v_lshl_add_u32 v6, v122, 4, v5        ; q offset
    v_lshl_add_u32 v5, v122, 30, v5
    s_waitcnt lgkmcnt(0)
    s_add_u32 s12, s8, {WS_KV:#x}
    s_addc_u32 s13, s9, 0
    s_add_u32 s20, s8, {WS_WP:#x}
    s_addc_u32 s21, s9, 0
    buffer_load_dwordx4 {vr(Q1)}, v6, s[8:11], s43 offen
    buffer_load_dword v{Q2}, v5, s[8:11], s43 offen offset:32
    s_mov_b32 m0, s5
    s_nop 0
    """)
    for r in range(3):
        a("buffer_load_dwordx4 v7, s[12:15], m0 offen lds")
        a("s_add_u32 m0, m0, 0x2000\ns_nop 0")
    _lab[0] = 0
    a("s_cmp_ge_u32 s3, 4\ns_cbranch_scc1 K3_noprep\ns_add_u32 s39, s4, s3")
    prep_init(a, 0)
    a("v_mov_b32 v14, v4\nv_mov_b32 v130, v120\nv_mov_b32 v131, v129\ns_mov_b32 s52, s34\ns_mov_b32 s53, s37\ns_add_u32 s39, s39, 1")
    prep_init(a, 1)
    a(f"""
K3_noprep:
    s_add_u32 s7, s5, {KV_BYTES}
    v_add_u32 v5, s7, v7
    ; tr read addr: lane (G,i): row i/4 (256B rows), 64B tile G, 8B chunk 2*(i%4)+e
    v_bfe_u32 v6, v0, 2, 2
    v_lshlrev_b32 v6, 8, v6
    v_lshrrev_b32 v121, 4, v0
    v_lshl_add_u32 v6, v121, 6, v6
    v_and_b32 v121, 3, v0
    v_lshl_add_u32 v6, v121, 4, v6
    v_add_u32 v6, s7, v6
    s_add_u32 s41, s5, {18*8192}
    s_cmp_ge_u32 s3, 4
    s_cselect_b32 s41, 0x30000, s41
    v_mov_b32 v{KS[0]+5}, 0x3f803f80
    v_mov_b32 v{KS[1]+5}, 0x3f803f80
    v_mov_b32 v128, 0x71800000
    v_mul_u32_u24 v124, 19, v122
    v_add_lshl_u32 v124, v124, v123, 4
    v_add_u32 v125, 0x30000, v124
    v_cmp_gt_u32 vcc, 19, v123
    s_lshl_b32 s33, s3, 2
    s_add_u32 s33, s33, {LDS_PROG}
    v_cndmask_b32 v124, v125, v124, vcc
    v_mov_b32 v121, s33
    v_mov_b32 v127, 0
    ds_write_b32 v121, v127
    ds_write_b32 v121, v127 offset:32
    s_mul_i32 s42, s3, {135*1024}
    s_mul_i32 s33, s3, {27*1024}
    s_add_u32 s33, s33, {(540 - 108)*1024}
    s_cmp_ge_u32 s3, 4
    s_cselect_b32 s42, s33, s42
    s_add_u32 s42, s42, {WS_WO:#x}
    s_cmp_eq_u32 s31, 0
    s_cbranch_scc1 K3_go
    s_mov_b32 s37, 0x7fff0000
    s_mov_b32 s53, 0x7fff0000
    s_mov_b32 s33, 15
K3_refill:
    buffer_load_dwordx4 v7, s[12:15], m0 offen lds
    s_add_u32 m0, m0, 0x2000
    s_sub_u32 s33, s33, 1
    s_cmp_lg_u32 s33, 0
    s_cbranch_scc1 K3_refill
    s_mov_b32 m0, s41
    s_nop 0
    buffer_load_dwordx4 v7, s[12:15], m0 offen lds
K3_go:
    ; STAMP 1
    s_waitcnt vmcnt(0) lgkmcnt(0)
    s_barrier
    ; STAMP 2
    v_mov_b32 v1, v7
    v_lshlrev_b32 v2, 2, v123
    v_mov_b32 v{Q2+1}, 0
    v_mov_b32 v126, 0xff800000
K3_maxloop:
    """)
    for l in rdK(0): a(l)
    a(f"""
    v_add_u32 v1, {KV_TILE}, v1
    v_add_u32 v2, {KV_TILE}, v2
    s_sub_u32 s40, s40, 1
    s_cmp_lg_u32 s40, 0
    s_waitcnt lgkmcnt(0)
    {M1(0)}
    {M2(0)}
    s_nop 11
    """)
    for i in range(8):
        a(f"v_max3_f32 v126, v{SB[0]+2*i}, v{SB[0]+2*i+1}, v126")
    a(f"""
    s_cbranch_scc1 K3_maxloop
    v_mov_b32 v127, v126
    v_mov_b32 v1, v7
    v_lshlrev_b32 v2, 2, v123
    v_permlane32_swap_b32 v126, v127
    v_mov_b32 v3, v124
    v_max_f32 v126, v126, v127
    """)
    for l in rdK(0) + rdK(1) + rdV(0): a(l)
    a(f"""
    v_sub_f32 v126, 0, v126               ; -m
    v_cvt_pk_bf16_f32 v127, v126, v126
    v_and_b32 v127, 0xffff0000, v127      ; hi
    v_sub_f32 v126, v126, v127            ; r1
    v_cvt_pk_bf16_f32 v125, v127, v126
    v_and_b32 v127, 0xffff0000, v125      ; mid
    v_sub_f32 v126, v126, v127            ; r2
    v_cvt_pk_bf16_f32 v126, v126, 0       ; (lo, 0)
    v_cmp_gt_u32 vcc, 32, v0
    """)
    for i in range(16): a(f"v_mov_b32 v{O+i}, 0")
    a(f"v_cndmask_b32 v{Q2+1}, v126, v125, vcc")
    for i in range(4): a(f"v_mov_b32 v{P+4+i}, 0\nv_mov_b32 v{VS[1]+4+i}, 0")
    a(f"""
    s_add_u32 s30, s31, 3
    s_cmp_lg_u32 s31, 0
    s_waitcnt lgkmcnt(0)
    {M1(0)}
    {M2(0)}
    s_nop 8
    ; STAMP 3
    ; CSTAMP 13
    s_cbranch_scc0 K3_it0
    s_cmp_lt_u32 s3, 4
    s_cbranch_scc1 K3_loopO
    s_branch K3_loopY
K3_it0:
    """)
    def iteration(kind):
        nr = 3; nw = 0; after_prep = 0
        for t in range(16):
            extra = []
            if kind == 0 and t < 12:
                for _ in range(2 if t % 3 == 0 else 1):
                    if nr == 18: extra += ["s_mov_b32 m0, s41", "s_nop 0"]
                    extra += ["buffer_load_dwordx4 v7, s[12:15], m0 offen lds"]
                    if nr < 17: extra += ["s_add_u32 m0, m0, 0x2000", "s_nop 0"]
                    nr += 1
                if t == 7:
                    extra += [f"s_waitcnt vmcnt({nr - 6})", "s_barrier"]
            if kind == 0:
                if t == 8: extra += only_old(p_loads("B"))
                if t == 12: extra += only_old(p_loads("A"))
                if t == 14: extra = only_old(["s_waitcnt vmcnt(2)"] + p_stage("B"))
                if t == 15: extra = only_old(p_store("B") + p_loads("B"))
            elif kind in (3, 4):
                if t == 6: extra = [f"s_waitcnt vmcnt({4 + nw})"] + p_stage("A")
                if t == 7: extra = p_store("A") + p_loads("A"); nwA = nw
                if t == 14: extra = [f"s_waitcnt vmcnt({4 + nw})"] + p_stage("B")
                if t == 15: extra = p_store("B") + (p_loads("B") if kind == 3 else [])
                if kind == 4:
                    for _ in range(2):
                        if nw < 29:
                            extra = extra + wo_load(nw, slot(nw)); nw += 1
                    iteration.afterA = 2 + nw - (nwA if t >= 7 else 0)
            for l in step(t, extra): a(l)
        assert kind != 0 or nr == 19
        a(f"""
        v_add_u32 v1, {16*KV_TILE}, v1
        v_add_u32 v2, {16*KV_TILE}, v2
        v_add_u32 v3, {16*KV_TILE}, v3
        """)
    iteration(0)
    a(f"""
K3_barB:
    ; STAMP 4
    s_cmp_lt_u32 s3, 4
    s_cbranch_scc1 K3_bw
    s_waitcnt vmcnt(0)
K3_bw:
    s_barrier
    ; STAMP 5
    s_cmp_lt_u32 s3, 4
    s_cbranch_scc1 K3_loopO
    """)
    a(f"""
    s_lshl_b32 s33, s3, 11
    s_sub_u32 s33, s33, {8192 - LDS_PAR}
    s_mov_b32 m0, s33
    s_add_u32 s33, s33, {WS_MOD + 2*2304 - LDS_PAR}
    buffer_load_dwordx4 v7, s[8:11], s33 offen lds
    buffer_load_dwordx4 v7, s[8:11], s33 offen offset:1024 lds
    s_cmp_lg_u32 s31, 0
    s_cbranch_scc1 K3_loopY
    """)
    for f in range(27):
        for l in wo_load(f, slot(f)): a(l)
    a(f"""
    v_lshlrev_b32 v4, 5, v0
    s_mul_i32 s6, s4, 1152
    buffer_load_dwordx4 {vr(PX)}, v4, s[48:51], s6 offen
    buffer_load_dwordx4 {vr(PX+4)}, v4, s[48:51], s6 offen offset:16
    s_cmp_ge_u32 s2, 16
    s_cbranch_scc1 K3_nowarm
    s_load_dwordx2 s[56:57], s[0:1], {ARG['out']}
    s_mov_b32 s58, {XBYTES}
    s_mov_b32 s59, 0x20000
    s_getpc_b64 s[60:61]
K3_pc:
    s_add_u32 s60, s60, k5_ffn_kernel-K3_pc
    s_addc_u32 s61, s61, 0
    s_sub_u32 s33, s3, 4
    s_lshl_b32 s33, s33, 6
    v_add_u32 v4, s33, v0
    v_lshlrev_b32 v104, 7, v4
    v_min_u32 v104, CODE_END-k5_ffn_kernel-4, v104
    global_load_dword v105, v104, s[60:61]
    v_lshlrev_b32 v104, 18, v4
    v_min_u32 v104, 0x2500000, v104
    s_mov_b32 s33, 0x2000000
    buffer_load_dword v106, v104, s[8:11], s33 offen
    s_waitcnt lgkmcnt(0)
    buffer_load_dword v107, v104, s[56:59], 0 offen
K3_nowarm:
    """)
    a("; STAMP 11\n.p2align 3\nK3_loopY:")
    iteration(2)
    a(f"""
    s_sub_u32 s30, s30, 1
    s_cmp_eq_u32 s30, 3
    s_cbranch_scc1 K3_barB
    s_cmp_lg_u32 s30, 0
    s_cbranch_scc1 K3_loopY
    s_branch K3_done
.p2align 3
K3_loopO:
    """)
    iteration(3)
    a(f"""
    s_sub_u32 s30, s30, 1
    s_cmp_eq_u32 s30, 3
    s_cbranch_scc1 K3_barB
    s_cmp_lg_u32 s30, 1
    s_cbranch_scc1 K3_loopO
    """)
    iteration(4)
    for l in [f"s_waitcnt vmcnt({iteration.afterA})"] + p_stage("A") + ["s_waitcnt lgkmcnt(0)"] + p_store("A"): a(l)
    a(f"""
K3_done:
    {PV(15, 1)}
    ; STAMP 6
    ; CSTAMP 14
    s_nop 0
    v_and_b32 v1, 7, v0
    v_mul_u32_u24 v1, {OS}, v1
    v_lshrrev_b32 v2, 3, v123
    s_lshr_b32 s33, s3, 2
    s_mul_i32 s33, s33, 576
    s_and_b32 s34, s3, 3
    s_lshl_b32 s35, s34, 7
    s_add_u32 s35, s35, s33
    v_lshl_add_u32 v16, v2, 5, v1
    v_lshl_add_u32 v16, v122, 4, v16
    v_add_u32 v16, s35, v16
    s_lshl_b32 s35, s34, 4
    s_add_u32 s35, s35, s33
    v_lshl_add_u32 v17, v2, 2, v1
    v_mul_u32_u24 v3, 0x30000, v122
    v_add3_u32 v17, v17, v3, s35
    v_and_b32 v2, 15, v0                  ; n16
    v_lshrrev_b32 v3, 4, v0               ; g
    v_lshl_add_u32 v1, v3, 4, v1
    v_mov_b32 v18, v{O+10}
    v_mov_b32 v19, v{O+10}
    v_mul_f32 v20, 0, v{O}
    """)
    for i in range(1, 10): a(f"v_fmac_f32 v20, 0, v{O+i}")
    a(f"""
    v_permlane32_swap_b32 v18, v19
    v_add_f32 v20, v20, v18
    v_rcp_f32 v18, v18
    v_cmp_nlt_f32 vcc, v20, v128
    s_cbranch_vccz K3_fin
    v_mov_b32 v19, 1
    ds_write_b32 v121, v19 offset:32
K3_fin:
    """)
    for i in range(10): a(f"v_mul_f32 v{O+i}, v18, v{O+i}")
    for i in range(5): a(f"v_cvt_pk_bf16_f32 v{24+i}, v{O+2*i}, v{O+2*i+1}")
    a(f"""
    ds_write_b128 v16, v[24:27] offset:{LDS_O}
    ds_write_b32 v17, v28 offset:{LDS_O + 512}
    v_mov_b32 v4, {LDS_PROG}
    v_mul_u32_u24 v5, {RS}, v2
    v_lshl_add_u32 v5, v3, 4, v5
    v_lshrrev_b32 v6, 3, v2
    v_mul_u32_u24 v6, 0x28000, v6
    v_add_u32 v5, v5, v6
    s_mul_i32 s33, s3, 384
    s_mul_i32 s34, s3, 192
    s_add_u32 s34, s34, {24*64 - 4*192}
    s_cmp_ge_u32 s3, 4
    s_cselect_b32 s33, s34, s33
    s_add_u32 s33, s33, {LDS_R2}
    v_add_u32 v6, s33, v5
    v_lshlrev_b32 v2, 5, v0               ; x offset
    v_cmp_gt_u32 vcc, 36, v0
    v_mov_b32 v3, 0x3fff0000
    s_mul_i32 s6, s4, 1152
    v_cndmask_b32 v2, v3, v2, vcc
    s_mov_b64 s[46:47], vcc
    s_cmp_ge_u32 s3, 4
    s_cbranch_scc1 K3_join
    v_mov_b32 v3, 1
    s_mov_b64 exec, 1
    ds_add_u32 v4, v3
    s_mov_b64 exec, -1
    s_mul_i32 s33, s3, 576
    s_add_u32 s33, s33, {LDS_R1}
    v_add_u32 v5, s33, v5
    """)
    a("buffer_load_dword v12, v2, s[48:51], s6 offen")
    for f in range(29, NS):
        for l in wo_load(f, slot(f)): a(l)
    a(f"""
K3_poll:
    ds_read_b32 v8, v4
    s_waitcnt lgkmcnt(0)
    v_cmp_gt_u32 vcc, 4, v8
    s_cbranch_vccz K3_pollok
    s_sleep 2
    s_branch K3_poll
K3_pollok:
    """)
    proj1(a)
    a(f"""
K3_join:
    ; STAMP 7
    s_waitcnt vmcnt(0) lgkmcnt(0)
    s_barrier
    ; STAMP 8
    ds_read_b128 v[16:19], v4 offset:32
    ds_read_b128 v[20:23], v4 offset:48
    s_waitcnt lgkmcnt(0)
    v_or3_b32 v16, v16, v17, v18
    v_or3_b32 v16, v16, v19, v20
    v_or3_b32 v16, v16, v21, v22
    v_or_b32 v16, v16, v23
    v_cmp_ne_u32 vcc, 0, v16
    s_cmp_lg_u32 s31, 0
    s_cbranch_scc1 K3_proj
    s_cbranch_vccz K3_proj
    s_mov_b32 s31, 1
    s_mov_b32 s40, 64
    s_waitcnt vmcnt(0)
    s_barrier
    s_branch K3_restart
K3_proj:
    ; STAMP 1
    """)
    tail(a)
    a("""
K3_end:
    s_endpgm
    """)
    return a.text(), kernel_desc(NAME, 256, 64)
```

```python
from common import *
NAME = "k3_attn_kernel"
NWG = 256
LDS_PROG = KV_BYTES + 8192
LDS = LDS_PROG + 64
OS = 1168
LDS_O = 0
LDS_PAR = 8 * OS
RS = 2320
LDS_R1 = LDS_PAR + 8192
assert LDS_R1 + 8 * RS <= 16 * KV_TILE
LDS_R2 = 16 * KV_TILE
W1, W2 = 132, 32
LAUNCH = f"; @launch kernel={NAME} grid=({NWG},1,1) block=(512,1,1) lds={LDS}"
Q1, Q2 = 8, 12
SB = (16, 32)
P, O = 48, 56
KS = (72, 80)
VS = (88, 96)
R, T = 104, 112
WBYTES = 576 * 4608 * 2
WPBYTES = 16 * 972 * 1024

def rdK(t):
    k = KS[t % 2]; o = t * KV_TILE
    return [f"ds_read_b128 {vr(k)}, v1 offset:{o}", f"ds_read_b32 v{k+4}, v2 offset:{o+KV_K2}"]
def rdV(t):
    v = VS[t % 2]; o = t * KV_TILE + KV_V
    return [f"ds_read_b128 {vr(v)}, v3 offset:{o}", f"ds_read_b128 {vr(v+4)}, v3 offset:{o+608}"]
def M1(t): return f"v_mfma_f32_32x32x16_bf16 {vr(SB[t%2],16)}, {vr(KS[t%2])}, {vr(Q1)}, 0"
def M2(t): return f"v_mfma_f32_32x32x8_bf16 {vr(SB[t%2],16)}, {vr(KS[t%2]+4,2)}, {vr(Q2,2)}, {vr(SB[t%2],16)}"
def PV(t, b): return f"v_mfma_f32_32x32x16_bf16 {vr(O,16)}, {vr(VS[t%2]+4*b)}, {vr(P+4*b)}, {vr(O,16)}"

import os
STEP = os.environ.get("K3STEP", "F")
def step(t, extra=()):
    s = SB[t % 2]
    e = [f"v_exp_f32 v{s+i}, v{s+i}" for i in range(16)]
    c = [f"v_cvt_pk_bf16_f32 v{P+i}, v{s+2*i}, v{s+2*i+1}" for i in range(8)]
    rk = rdK(t + 2); rv = rdV(t + 1)
    if STEP == "A":
        L = ["s_waitcnt lgkmcnt(0)", M1(t + 1)] + e[0:4] + [PV(t - 1, 1)] + list(extra) + rk + rv
        L += e[4:8] + c[0:2] + [M2(t + 1)] + c[2:4] + e[8:12] + [PV(t, 0)] + e[12:16] + c[4:8]
    elif STEP == "D":
        L = ["s_waitcnt lgkmcnt(0)", M1(t + 1)] + list(extra) + [rk[0]] + e[0:4] + [PV(t - 1, 1), rv[0]]
        L += e[4:8] + c[0:2] + [M2(t + 1), rv[1]] + c[2:4] + e[8:12] + [PV(t, 0), rk[1]] + e[12:16] + c[4:8]
    else:
        L = [M1(t + 1)] + list(extra) + rk + e[0:4] + [PV(t - 1, 1)] + rv
        L += e[4:8] + c[0:2] + [M2(t + 1)] + c[2:4] + e[8:12] + [PV(t, 0), "s_waitcnt lgkmcnt(0)"] + e[12:16] + c[4:8]
    return L

class _N: n = 0
prep_setup = _N
STREAM = 972 * 1024
def magic(d): return (1 << 32) // d + 1
def prep_init(a0, n):
    a = lambda t: a0(t.replace('K3_pi_', f'K3_pi{n}_'))
    a(f"""
    s_lshl_b32 s33, s39, 2                      ; T0
    v_bfe_u32 v104, v0, 2, 2
    v_lshrrev_b32 v105, 4, v0
    s_cmp_ge_u32 s33, 5184
    s_cbranch_scc1 K3_pi_down
    s_cmp_ge_u32 s33, 2592
    s_cselect_b32 s16, s26, s24
    s_cselect_b32 s17, s27, s25
    s_cselect_b32 s35, 2592, 0
    s_cselect_b32 s37, 2048, 0
    s_sub_u32 s33, s33, s35
    s_mul_hi_u32 s34, s33, {magic(144)}         ; s
    s_mul_i32 s35, s34, 144
    s_sub_u32 s33, s33, s35                     ; Pg0
    s_lshl_b32 s35, s34, 12
    s_add_u32 s37, s37, s35                     ; + s*4096
    s_mul_i32 s34, s34, {32*9216}
    s_lshl_b32 s35, s33, 6
    s_add_u32 s34, s34, s35
    s_mov_b32 s36, {4*9216}
    v_and_b32 v4, 15, v0
    v_lshlrev_b32 v4, 4, v4
    v_mul_u32_u24 v106, 9216, v105
    v_add_u32 v4, v4, v106
    v_add_u32 v105, s33, v105                   ; Pg
    s_mov_b32 s35, {magic(9)}
    v_mul_hi_u32 v106, v105, s35                ; j
    v_mul_u32_u24 v107, 9, v106
    v_sub_u32 v105, v105, v107                  ; P
    s_mov_b32 s35, {STREAM}
    v_mul_lo_u32 v106, v106, s35
    v_mul_u32_u24 v105, {72*1024}, v105
    s_branch K3_pi_end
K3_pi_down:
    s_sub_u32 s33, s33, 5184
    s_mov_b32 s16, s28
    s_mov_b32 s17, s29
    s_mov_b32 s34, 0
    s_mov_b32 s37, {648*1024}
    s_movk_i32 s36, {4*1152}
    s_mov_b32 s35, {magic(18)}
    v_add_u32 v104, s33, v104                   ; T (source)
    v_mul_hi_u32 v106, v104, s35                ; kb
    v_mul_u32_u24 v107, 18, v106
    v_sub_u32 v104, v104, v107                  ; P'
    v_lshl_add_u32 v106, v106, 5, v105
    v_mul_u32_u24 v106, 1152, v106
    v_lshl_add_u32 v106, v104, 6, v106
    v_and_b32 v4, 3, v0
    v_lshl_add_u32 v4, v4, 4, v106
    v_add_u32 v105, s33, v105                   ; T (dest)
    v_mul_hi_u32 v106, v105, s35                ; kb
    v_mul_u32_u24 v107, 18, v106
    v_sub_u32 v105, v105, v107                  ; P'
    s_mov_b32 s35, {magic(9)}
    v_mul_hi_u32 v107, v106, s35                ; j
    v_mul_u32_u24 v104, 9, v107
    v_sub_u32 v104, v106, v104                  ; c
    v_cmp_le_u32 vcc, 9, v105
    v_subrev_u32 v108, 9, v105
    v_mov_b32 v109, 0
    v_cndmask_b32 v105, v105, v108, vcc         ; b9
    v_cndmask_b32 v109, v109, 2, vcc            ; 2*qq
    s_mov_b32 s35, {STREAM}
    v_and_b32 v120, 15, v0
    v_lshlrev_b32 v120, 4, v120
    """)
    for e, dst in ((1, 129), (0, 120)):
        a(f"""
    v_mov_b32 v119, {252+e}
    v_lshl_add_u32 v110, v105, 1, {e}
    v_cmp_le_u32 vcc, 9, v110
    v_subrev_u32 v111, 10, v110
    v_min_u32 v111, 8, v111
    v_addc_co_u32 v112, s[44:45], 0, v109, vcc  ; q
    v_cndmask_b32 v110, v110, v111, vcc         ; t
    v_sub_u32 v113, v107, v112
    v_and_b32 v113, 3, v113                     ; p = (j - q) & 3
    v_mul_u32_u24 v114, 3, v104
    v_add3_u32 v114, v114, v113, 8              ; 9 + 3c + p - 1
    v_cmp_eq_u32 vcc, 0, v113
    v_and_b32 v115, 0xfc, v107
    v_add_u32 v115, v115, v112                  ; stream = 4J + q
    v_cndmask_b32 v114, v114, v104, vcc         ; kpos
    v_lshrrev_b32 v116, 2, v107                 ; J
    v_lshrrev_b32 v117, 1, v110                 ; pair
    v_sub_u32 v116, v117, v116
    v_subrev_u32 v116, 1, v116
    v_and_b32 v116, 3, v116                     ; rel
    v_lshl_add_u32 v117, v116, 1, {e}           ; 2*rel+e
    v_cmp_eq_u32 vcc, 8, v110
    v_mul_u32_u24 v118, 7, v114
    v_lshl_add_u32 v114, v114, 1, v119          ; 252 + e + 2*kpos
    v_cndmask_b32 v117, v117, 6, vcc
    v_cndmask_b32 v116, v116, 0, vcc
    v_add_u32 v118, v118, v117
    v_cmp_eq_u32 vcc, 3, v116
    s_nop 1
    v_cndmask_b32 v114, v118, v114, vcc
    v_lshlrev_b32 v114, 10, v114
    v_mul_lo_u32 v115, v115, s35
    v_add3_u32 v{dst}, v120, v114, v115
    """)
    a(f"""
    s_branch K3_pi_done
K3_pi_end:
    v_and_b32 v120, 15, v0
    v_lshlrev_b32 v120, 4, v120
    v_add3_u32 v120, v120, v105, v106
    v_add_u32 v129, 0x400, v120
K3_pi_done:
    """)
RA = 248
CTX = {"A": (14, 130, 131, 52, 53, RA), "B": (4, 120, 129, 34, 37, R)}
def p_loads(c):
    va, _, _, ss, _, r = CTX[c]
    return [f"buffer_load_dwordx4 {vr(r)}, v{va}, s[16:19], s{ss} offen", f"s_add_u32 s{ss}, s{ss}, s36",
            f"buffer_load_dwordx4 {vr(r+4)}, v{va}, s[16:19], s{ss} offen", f"s_add_u32 s{ss}, s{ss}, s36"]
def p_stage(c):
    r = CTX[c][5]
    return [f"ds_write_b128 v5, {vr(r)}", f"ds_read_b64_tr_b16 {vr(T,2)}, v6", f"ds_read_b64_tr_b16 {vr(T+4,2)}, v6 offset:8",
            f"ds_write_b128 v5, {vr(r+4)}", f"ds_read_b64_tr_b16 {vr(T+2,2)}, v6", f"ds_read_b64_tr_b16 {vr(T+6,2)}, v6 offset:8"]
def p_store(c):
    _, d0, d1, _, sd, _ = CTX[c]
    return [f"buffer_store_dwordx4 {vr(T)}, v{d0}, s[20:23], s{sd} offen sc1", f"buffer_store_dwordx4 {vr(T+4)}, v{d1}, s[20:23], s{sd} offen sc1",
            f"s_add_u32 s{sd}, s{sd}, 256"]
_lab = [0]
def only_old(L):
    _lab[0] += 1
    return ["s_cmp_ge_u32 s3, 4", f"s_cbranch_scc1 K3_oo{_lab[0]}"] + L + [f"K3_oo{_lab[0]}:"]

PROF_VGPR = 15
def wreg(f):
    return W1 + 4 * f if f < 31 else W2 + 4 * (f - 31)
def wo_load(f, reg):
    L = [f"buffer_load_dwordx4 {vr(reg)}, v7, s[8:11], s42 offen offset:{(f%4)*1024}"]
    if f % 4 == 3: L.append("s_add_u32 s42, s42, 0x1000")
    return L

class Track:
    def __init__(self, init=(), cap=63): self.q = list(init); self.cap = cap
    def issue(self, tag): self.q.append(tag)
    def need(self, tag):
        if tag not in self.q: return None
        k = len(self.q) - 1 - max(i for i, t in enumerate(self.q) if t == tag)
        k = min(k, self.cap)
        self.q = self.q[len(self.q) - k:] if k else []
        return k

NS = 54
def slot(k): return W1 + 4 * k if k < 31 else (128 if k == 31 else 40 + 4 * (k - 32))
ACCQ = (16, 20, 24, 28, 32, 36)
PX = slot(27)
XLOAD = [f"buffer_load_dwordx4 {vr(PX)}, v2, s[48:51], s6 offen", f"buffer_load_dwordx4 {vr(PX+4)}, v2, s[48:51], s6 offen offset:16"]

def proj1(a):
    vm = Track([("w", 0)] + [("w", f) for f in range(29, NS)])
    lg = Track(cap=15)
    BQ = (8, 24, 28, 32, 36)
    def rdB(i):
        a(f"ds_read_b128 {vr(BQ[i%5])}, v1 offset:{LDS_O + (i%9)*64}"); lg.issue(("b", i))
    for i in range(4): rdB(i)
    for f in range(81):
        tl, s_ = divmod(f, 9)
        acc = ACCQ[tl % 2]
        if f + 4 < 81: rdB(f + 4)
        w = []
        n = vm.need(("w", f))
        if n is not None: w.append(f"vmcnt({n})")
        n = lg.need(("b", f))
        if n is not None: w.append(f"lgkmcnt({n})")
        if w: a("s_waitcnt " + " ".join(w))
        a(f"v_mfma_f32_16x16x32_bf16 {vr(acc)}, {vr(slot(f % NS))}, {vr(BQ[f%5])}, {'0' if s_ == 0 else vr(acc)}")
        for l in wo_load(f + NS, slot(f % NS)): a(l)
        vm.issue(("w", f + NS))
        if s_ == 4 and tl > 0:
            a(f"ds_write_b128 v5, {vr(ACCQ[(tl-1)%2])} offset:{(tl-1)*64}"); lg.issue(("r",))
    a(f"s_nop 7\nds_write_b128 v5, {vr(ACCQ[0])} offset:{8*64}")

def proj2(a, old):
    nt = 6 if old else 3
    lg = Track(cap=15)
    reg = (lambda i: slot((81 + i) % NS)) if old else (lambda i: slot(i))
    breg = (lambda k: 8 if k == 0 else reg(k + 1)) if old else (lambda k: 40 + 4 * k)
    def rdB(k):
        a(f"ds_read_b128 {vr(breg(k))}, v1 offset:{LDS_O + (9 + k)*64}"); lg.issue(("b", k))
    if old: rdB(0)
    else:
        for k in range(9): rdB(k)
    for i in range(9 * nt):
        k, tl = divmod(i, nt)
        n = lg.need(("b", k))
        if n is not None: a(f"s_waitcnt lgkmcnt({n})")
        a(f"v_mfma_f32_16x16x32_bf16 {vr(ACCQ[tl])}, {vr(reg(i))}, {vr(breg(k))}, {'0' if k == 0 else vr(ACCQ[tl])}")
        if old and i == 1:
            for l in XLOAD: a(l)
        if old and 2 <= i <= 9: rdB(i - 1)
    a("s_nop 7")
    for tl in range(nt): a(f"ds_write_b128 v6, {vr(ACCQ[tl])} offset:{tl*64}")

def allreduce2(a, r0, r1, t0, t1):
    for rot in (1, 2, 4, 8):
        a(f"v_add_f32_dpp v{r0}, v{r0}, v{r0} row_ror:{rot} row_mask:0xf bank_mask:0xf")
        a(f"v_add_f32_dpp v{r1}, v{r1}, v{r1} row_ror:{rot} row_mask:0xf bank_mask:0xf\ns_nop 0")
    for op in ("v_permlane16_swap_b32", "v_permlane32_swap_b32"):
        a(f"v_mov_b32 v{t0}, v{r0}\nv_mov_b32 v{t1}, v{r1}\ns_nop 0\n{op} v{r0}, v{t0}\n{op} v{r1}, v{t1}\nv_add_f32 v{r0}, v{r0}, v{t0}\nv_add_f32 v{r1}, v{r1}, v{t1}")

PG, PA, U = 76, 92, 108
Y2Q = (124, 128, 248, 252)
def ln_setup(a):
    a(f"""
    s_mul_i32 s33, s3, {RS}
    v_lshl_add_u32 v4, v0, 6, s33
    v_lshlrev_b32 v5, 6, v0
    v_mov_b32 v12, 0
    v_mov_b32 v13, 0
    v_mov_b32 v2, 0
    v_mov_b32 v3, 0
    s_mov_b64 exec, s[46:47]
    """)
    for k in range(4): a(f"ds_read_b128 {vr(PG+4*k)}, v5 offset:{LDS_PAR + 16*k}")
    for k in range(4): a(f"ds_read_b128 {vr(Y2Q[k])}, v4 offset:{LDS_R1 + 16*k}")
    for k in range(4): a(f"ds_read_b128 {vr(PA+4*k)}, v5 offset:{LDS_PAR + 4608 + 16*k}")
    a(f"""
    s_lshr_b32 s5, s4, 4
    s_mul_i32 s5, s5, {72*256}
    s_and_b32 s7, s4, 15
    s_lshl_b32 s7, s7, 4
    s_add_u32 s5, s5, s7
    s_add_u32 s7, s5, {WS_X1:#x}
    s_add_u32 s5, s5, {WS_O:#x}
    v_lshlrev_b32 v14, 9, v0
    s_mov_b32 s33, 0xffff0000
    s_waitcnt vmcnt(0)
    """)
    for k in range(8): a(f"v_lshlrev_b32 v{U+2*k}, 16, v{PX+k}\nv_and_b32 v{U+2*k+1}, s33, v{PX+k}")
    a("s_waitcnt lgkmcnt(4)")
    for k in range(8): a(f"v_pk_fma_f32 {vr(U+2*k,2)}, {vr(Y2Q[k//2]+2*(k%2),2)}, {vr(PG+2*k,2)}, {vr(U+2*k,2)}")
    a("s_mov_b64 exec, -1")

def tail(a):
    a("""
    s_cmp_ge_u32 s3, 4
    s_cbranch_scc1 K3_projy
    """)
    proj2(a, True)
    a("; STAMP 2")
    ln_setup(a)
    a("s_branch K3_ln\nK3_projy:")
    ln_setup(a)
    proj2(a, False)
    Y, Z, PB = 168, 48, 136
    a(f"""
    ; STAMP 2
K3_ln:
    s_mov_b64 exec, s[46:47]
    ; STAMP 9
    s_waitcnt lgkmcnt(0)
    s_barrier
    ; STAMP 10
    """)
    for k in range(4): a(f"ds_read_b128 {vr(Y+4*k)}, v4 offset:{LDS_R2 + 16*k}")
    for k in range(4): a(f"ds_read_b128 {vr(PB+4*k)}, v5 offset:{LDS_PAR + 2304 + 16*k}")
    for k in range(8):
        if k % 2 == 0: a(f"s_waitcnt lgkmcnt({7 - k//2})")
        a(f"v_pk_fma_f32 {vr(Y+2*k,2)}, {vr(Y+2*k,2)}, {vr(PG+2*k,2)}, {vr(U+2*k,2)}")
    a(f"v_readfirstlane_b32 s34, v{Y}")
    for k in range(8): a(f"v_cvt_pk_bf16_f32 v{Z+k}, v{Y+2*k}, v{Y+2*k+1}")
    a(f"""
    v_mov_b32 v8, s34
    buffer_store_dwordx4 {vr(Z)}, v14, s[8:11], s7 offen
    buffer_store_dwordx4 {vr(Z+4)}, v14, s[8:11], s7 offen offset:256
    """)
    for k in range(8): a(f"v_pk_add_f32 {vr(Y+2*k,2)}, {vr(Y+2*k,2)}, v[8:9] op_sel_hi:[1,0] neg_lo:[0,1] neg_hi:[0,1]")
    for k in range(8):
        a(f"v_pk_add_f32 v[12:13], v[12:13], {vr(Y+2*k,2)}")
        a(f"v_pk_fma_f32 v[2:3], {vr(Y+2*k,2)}, {vr(Y+2*k,2)}, v[2:3]")
    a("v_add_f32 v12, v12, v13\nv_add_f32 v2, v2, v3\ns_mov_b64 exec, -1\ns_nop 0")
    allreduce2(a, 12, 2, 13, 3)
    a(f"""
    ; STAMP 3
    v_mul_f32 v12, {-1.0/576!r}, v12      ; -mean(d)
    v_mov_b32 v3, 0x3727c5ac
    v_fmac_f32 v3, {1.0/576!r}, v2
    v_fma_f32 v3, -v12, v12, v3
    v_max_f32 v3, 0x3727c5ac, v3
    v_rsq_f32 v10, v3
    s_mov_b64 exec, s[46:47]
    v_mul_f32 v11, v12, v10
    s_waitcnt lgkmcnt(0)
    """)
    for k in range(8): a(f"v_pk_fma_f32 {vr(Y+2*k,2)}, {vr(Y+2*k,2)}, v[10:11], v[10:11] op_sel:[0,0,1] op_sel_hi:[1,0,1]")
    for k in range(8): a(f"v_pk_fma_f32 {vr(Y+2*k,2)}, {vr(Y+2*k,2)}, {vr(PA+2*k,2)}, {vr(PB+2*k,2)}")
    for k in range(8): a(f"v_cvt_pk_bf16_f32 v{Z+8+k}, v{Y+2*k}, v{Y+2*k+1}")
    a(f"""
    buffer_store_dwordx4 {vr(Z+8)}, v14, s[8:11], s5 offen
    buffer_store_dwordx4 {vr(Z+12)}, v14, s[8:11], s5 offen offset:256
    ; STAMP 4
    """)

def gen():
    a = Asm()
    a(kernel_head(NAME))
    a(f"""
    s_cmp_ge_u32 s2, {NWG}
    s_cbranch_scc1 K3_end
    s_load_dwordx2 s[8:9], s[0:1], {ARG['ws']}
    s_load_dwordx4 s[24:27], s[0:1], {ARG['wg']}
    s_load_dwordx2 s[28:29], s[0:1], {ARG['wd']}
    s_load_dwordx2 s[48:49], s[0:1], {ARG['x']}
    v_lshrrev_b32 v2, 6, v0
    v_and_b32 v0, 63, v0                  ; lane
    v_readfirstlane_b32 s3, v2            ; wave
    v_lshlrev_b32 v7, 4, v0               ; lane*16
    s_mov_b32 s10, {WS_SIZE:#x}
    s_mov_b32 s11, 0x20000
    s_mov_b32 s14, {KV_BYTES}
    s_mov_b32 s15, 0x20000
    s_mov_b32 s18, {WBYTES}
    s_mov_b32 s19, 0x20000
    s_mov_b32 s22, {WPBYTES}
    s_mov_b32 s23, 0x20000
    s_mov_b32 s50, {XBYTES}
    s_mov_b32 s51, 0x20000
    s_and_b32 s4, s2, 7
    s_lshl_b32 s4, s4, 8
    s_and_b32 s5, s2, 0xf8
    s_add_u32 s4, s4, s5
    s_add_u32 s4, s4, s3
    s_lshl_b32 s5, s3, 10
    s_sub_u32 s43, s4, s3
    s_mul_i32 s43, s43, 1152
    s_mul_i32 s6, s3, 144
    s_add_u32 s43, s43, s6
    s_add_u32 s43, s43, {WS_Q:#x}
    s_mov_b32 s31, 0
    s_mov_b32 s40, 1
K3_restart:
    s_setprio 1
    s_cmp_ge_u32 s3, 4
    s_cbranch_scc1 K3_pr
    s_setprio 2
K3_pr:
    v_lshrrev_b32 v122, 5, v0             ; h
    v_and_b32 v123, 31, v0                ; m / head
    v_and_b32 v5, 7, v0
    v_mul_u32_u24 v5, 1152, v5
    v_lshrrev_b32 v6, 3, v123
    v_mul_u32_u24 v6, 36, v6
    v_add_u32 v5, v5, v6
    v_lshl_add_u32 v6, v122, 4, v5        ; q offset
    v_lshl_add_u32 v5, v122, 30, v5
    s_waitcnt lgkmcnt(0)
    s_add_u32 s12, s8, {WS_KV:#x}
    s_addc_u32 s13, s9, 0
    s_add_u32 s20, s8, {WS_WP:#x}
    s_addc_u32 s21, s9, 0
    buffer_load_dwordx4 {vr(Q1)}, v6, s[8:11], s43 offen
    buffer_load_dword v{Q2}, v5, s[8:11], s43 offen offset:32
    s_mov_b32 m0, s5
    s_nop 0
    """)
    for r in range(3):
        a("buffer_load_dwordx4 v7, s[12:15], m0 offen lds")
        a("s_add_u32 m0, m0, 0x2000\ns_nop 0")
    _lab[0] = 0
    a("s_cmp_ge_u32 s3, 4\ns_cbranch_scc1 K3_noprep\ns_add_u32 s39, s4, s3")
    prep_init(a, 0)
    a("v_mov_b32 v14, v4\nv_mov_b32 v130, v120\nv_mov_b32 v131, v129\ns_mov_b32 s52, s34\ns_mov_b32 s53, s37\ns_add_u32 s39, s39, 1")
    prep_init(a, 1)
    a(f"""
K3_noprep:
    s_add_u32 s7, s5, {KV_BYTES}
    v_add_u32 v5, s7, v7
    ; tr read addr: lane (G,i): row i/4 (256B rows), 64B tile G, 8B chunk 2*(i%4)+e
    v_bfe_u32 v6, v0, 2, 2
    v_lshlrev_b32 v6, 8, v6
    v_lshrrev_b32 v121, 4, v0
    v_lshl_add_u32 v6, v121, 6, v6
    v_and_b32 v121, 3, v0
    v_lshl_add_u32 v6, v121, 4, v6
    v_add_u32 v6, s7, v6
    s_add_u32 s41, s5, {18*8192}
    s_cmp_ge_u32 s3, 4
    s_cselect_b32 s41, 0x30000, s41
    v_mov_b32 v{KS[0]+5}, 0x3f803f80
    v_mov_b32 v{KS[1]+5}, 0x3f803f80
    v_mov_b32 v128, 0x71800000
    v_mul_u32_u24 v124, 19, v122
    v_add_lshl_u32 v124, v124, v123, 4
    v_add_u32 v125, 0x30000, v124
    v_cmp_gt_u32 vcc, 19, v123
    s_lshl_b32 s33, s3, 2
    s_add_u32 s33, s33, {LDS_PROG}
    v_cndmask_b32 v124, v125, v124, vcc
    v_mov_b32 v121, s33
    v_mov_b32 v127, 0
    ds_write_b32 v121, v127
    ds_write_b32 v121, v127 offset:32
    s_mul_i32 s42, s3, {135*1024}
    s_mul_i32 s33, s3, {27*1024}
    s_add_u32 s33, s33, {(540 - 108)*1024}
    s_cmp_ge_u32 s3, 4
    s_cselect_b32 s42, s33, s42
    s_add_u32 s42, s42, {WS_WO:#x}
    s_cmp_eq_u32 s31, 0
    s_cbranch_scc1 K3_go
    s_mov_b32 s37, 0x7fff0000
    s_mov_b32 s53, 0x7fff0000
    s_mov_b32 s33, 15
K3_refill:
    buffer_load_dwordx4 v7, s[12:15], m0 offen lds
    s_add_u32 m0, m0, 0x2000
    s_sub_u32 s33, s33, 1
    s_cmp_lg_u32 s33, 0
    s_cbranch_scc1 K3_refill
    s_mov_b32 m0, s41
    s_nop 0
    buffer_load_dwordx4 v7, s[12:15], m0 offen lds
K3_go:
    ; STAMP 1
    s_waitcnt vmcnt(0) lgkmcnt(0)
    s_barrier
    ; STAMP 2
    v_mov_b32 v1, v7
    v_lshlrev_b32 v2, 2, v123
    v_mov_b32 v{Q2+1}, 0
    v_mov_b32 v126, 0xff800000
K3_maxloop:
    """)
    for l in rdK(0): a(l)
    a(f"""
    v_add_u32 v1, {KV_TILE}, v1
    v_add_u32 v2, {KV_TILE}, v2
    s_sub_u32 s40, s40, 1
    s_cmp_lg_u32 s40, 0
    s_waitcnt lgkmcnt(0)
    {M1(0)}
    {M2(0)}
    s_nop 11
    """)
    for i in range(8):
        a(f"v_max3_f32 v126, v{SB[0]+2*i}, v{SB[0]+2*i+1}, v126")
    a(f"""
    s_cbranch_scc1 K3_maxloop
    v_mov_b32 v127, v126
    v_mov_b32 v1, v7
    v_lshlrev_b32 v2, 2, v123
    v_permlane32_swap_b32 v126, v127
    v_mov_b32 v3, v124
    v_max_f32 v126, v126, v127
    """)
    for l in rdK(0) + rdK(1) + rdV(0): a(l)
    a(f"""
    v_sub_f32 v126, 0, v126               ; -m
    v_cvt_pk_bf16_f32 v127, v126, v126
    v_and_b32 v127, 0xffff0000, v127      ; hi
    v_sub_f32 v126, v126, v127            ; r1
    v_cvt_pk_bf16_f32 v125, v127, v126
    v_and_b32 v127, 0xffff0000, v125      ; mid
    v_sub_f32 v126, v126, v127            ; r2
    v_cvt_pk_bf16_f32 v126, v126, 0       ; (lo, 0)
    v_cmp_gt_u32 vcc, 32, v0
    """)
    for i in range(16): a(f"v_mov_b32 v{O+i}, 0")
    a(f"v_cndmask_b32 v{Q2+1}, v126, v125, vcc")
    for i in range(4): a(f"v_mov_b32 v{P+4+i}, 0\nv_mov_b32 v{VS[1]+4+i}, 0")
    a(f"""
    s_add_u32 s30, s31, 3
    s_cmp_lg_u32 s31, 0
    s_waitcnt lgkmcnt(0)
    {M1(0)}
    {M2(0)}
    s_nop 8
    ; STAMP 3
    ; CSTAMP 13
    s_cbranch_scc0 K3_it0
    s_cmp_lt_u32 s3, 4
    s_cbranch_scc1 K3_loopO
    s_branch K3_loopY
K3_it0:
    """)
    def iteration(kind):
        nr = 3; nw = 0; after_prep = 0
        for t in range(16):
            extra = []
            if kind == 0 and t < 12:
                for _ in range(2 if t % 3 == 0 else 1):
                    if nr == 18: extra += ["s_mov_b32 m0, s41", "s_nop 0"]
                    extra += ["buffer_load_dwordx4 v7, s[12:15], m0 offen lds"]
                    if nr < 17: extra += ["s_add_u32 m0, m0, 0x2000", "s_nop 0"]
                    nr += 1
                if t == 7:
                    extra += [f"s_waitcnt vmcnt({nr - 6})", "s_barrier"]
            if kind == 0:
                if t == 8: extra += only_old(p_loads("B"))
                if t == 12: extra += only_old(p_loads("A"))
                if t == 14: extra = only_old(["s_waitcnt vmcnt(2)"] + p_stage("B"))
                if t == 15: extra = only_old(p_store("B") + p_loads("B"))
            elif kind in (3, 4):
                if t == 6: extra = [f"s_waitcnt vmcnt({4 + nw})"] + p_stage("A")
                if t == 7: extra = p_store("A") + p_loads("A"); nwA = nw
                if t == 14: extra = [f"s_waitcnt vmcnt({4 + nw})"] + p_stage("B")
                if t == 15: extra = p_store("B") + (p_loads("B") if kind == 3 else [])
                if kind == 4:
                    for _ in range(2):
                        if nw < 29:
                            extra = extra + wo_load(nw, slot(nw)); nw += 1
                    iteration.afterA = 2 + nw - (nwA if t >= 7 else 0)
            for l in step(t, extra): a(l)
        assert kind != 0 or nr == 19
        a(f"""
        v_add_u32 v1, {16*KV_TILE}, v1
        v_add_u32 v2, {16*KV_TILE}, v2
        v_add_u32 v3, {16*KV_TILE}, v3
        """)
    iteration(0)
    a(f"""
K3_barB:
    ; STAMP 4
    s_cmp_lt_u32 s3, 4
    s_cbranch_scc1 K3_bw
    s_waitcnt vmcnt(0)
K3_bw:
    s_barrier
    ; STAMP 5
    s_cmp_lt_u32 s3, 4
    s_cbranch_scc1 K3_loopO
    """)
    a(f"""
    s_lshl_b32 s33, s3, 11
    s_sub_u32 s33, s33, {8192 - LDS_PAR}
    s_mov_b32 m0, s33
    s_add_u32 s33, s33, {WS_MOD + 2*2304 - LDS_PAR}
    buffer_load_dwordx4 v7, s[8:11], s33 offen lds
    buffer_load_dwordx4 v7, s[8:11], s33 offen offset:1024 lds
    s_cmp_lg_u32 s31, 0
    s_cbranch_scc1 K3_loopY
    """)
    for f in range(27):
        for l in wo_load(f, slot(f)): a(l)
    a(f"""
    v_lshlrev_b32 v4, 5, v0
    s_mul_i32 s6, s4, 1152
    buffer_load_dwordx4 {vr(PX)}, v4, s[48:51], s6 offen
    buffer_load_dwordx4 {vr(PX+4)}, v4, s[48:51], s6 offen offset:16
    s_cmp_ge_u32 s2, 16
    s_cbranch_scc1 K3_nowarm
    s_load_dwordx2 s[56:57], s[0:1], {ARG['out']}
    s_mov_b32 s58, {XBYTES}
    s_mov_b32 s59, 0x20000
    s_getpc_b64 s[60:61]
K3_pc:
    s_add_u32 s60, s60, k5_ffn_kernel-K3_pc
    s_addc_u32 s61, s61, 0
    s_sub_u32 s33, s3, 4
    s_lshl_b32 s33, s33, 6
    v_add_u32 v4, s33, v0
    v_lshlrev_b32 v104, 7, v4
    v_min_u32 v104, CODE_END-k5_ffn_kernel-4, v104
    global_load_dword v105, v104, s[60:61]
    v_lshlrev_b32 v104, 18, v4
    v_min_u32 v104, 0x2500000, v104
    s_mov_b32 s33, 0x2000000
    buffer_load_dword v106, v104, s[8:11], s33 offen
    s_waitcnt lgkmcnt(0)
    buffer_load_dword v107, v104, s[56:59], 0 offen
K3_nowarm:
    """)
    a("; STAMP 11\n.p2align 3\nK3_loopY:")
    iteration(2)
    a(f"""
    s_sub_u32 s30, s30, 1
    s_cmp_eq_u32 s30, 3
    s_cbranch_scc1 K3_barB
    s_cmp_lg_u32 s30, 0
    s_cbranch_scc1 K3_loopY
    s_branch K3_done
.p2align 3
K3_loopO:
    """)
    iteration(3)
    a(f"""
    s_sub_u32 s30, s30, 1
    s_cmp_eq_u32 s30, 3
    s_cbranch_scc1 K3_barB
    s_cmp_lg_u32 s30, 1
    s_cbranch_scc1 K3_loopO
    """)
    iteration(4)
    for l in [f"s_waitcnt vmcnt({iteration.afterA})"] + p_stage("A") + ["s_waitcnt lgkmcnt(0)"] + p_store("A"): a(l)
    a(f"""
K3_done:
    {PV(15, 1)}
    ; STAMP 6
    ; CSTAMP 14
    s_nop 0
    v_and_b32 v1, 7, v0
    v_mul_u32_u24 v1, {OS}, v1
    v_lshrrev_b32 v2, 3, v123
    s_lshr_b32 s33, s3, 2
    s_mul_i32 s33, s33, 576
    s_and_b32 s34, s3, 3
    s_lshl_b32 s35, s34, 7
    s_add_u32 s35, s35, s33
    v_lshl_add_u32 v16, v2, 5, v1
    v_lshl_add_u32 v16, v122, 4, v16
    v_add_u32 v16, s35, v16
    s_lshl_b32 s35, s34, 4
    s_add_u32 s35, s35, s33
    v_lshl_add_u32 v17, v2, 2, v1
    v_mul_u32_u24 v3, 0x30000, v122
    v_add3_u32 v17, v17, v3, s35
    v_and_b32 v2, 15, v0                  ; n16
    v_lshrrev_b32 v3, 4, v0               ; g
    v_lshl_add_u32 v1, v3, 4, v1
    v_mov_b32 v18, v{O+10}
    v_mov_b32 v19, v{O+10}
    v_mul_f32 v20, 0, v{O}
    """)
    for i in range(1, 10): a(f"v_fmac_f32 v20, 0, v{O+i}")
    a(f"""
    v_permlane32_swap_b32 v18, v19
    v_add_f32 v20, v20, v18
    v_rcp_f32 v18, v18
    v_cmp_nlt_f32 vcc, v20, v128
    s_cbranch_vccz K3_fin
    v_mov_b32 v19, 1
    ds_write_b32 v121, v19 offset:32
K3_fin:
    """)
    for i in range(10): a(f"v_mul_f32 v{O+i}, v18, v{O+i}")
    for i in range(5): a(f"v_cvt_pk_bf16_f32 v{24+i}, v{O+2*i}, v{O+2*i+1}")
    a(f"""
    ds_write_b128 v16, v[24:27] offset:{LDS_O}
    ds_write_b32 v17, v28 offset:{LDS_O + 512}
    v_mov_b32 v4, {LDS_PROG}
    v_mul_u32_u24 v5, {RS}, v2
    v_lshl_add_u32 v5, v3, 4, v5
    v_lshrrev_b32 v6, 3, v2
    v_mul_u32_u24 v6, 0x28000, v6
    v_add_u32 v5, v5, v6
    s_mul_i32 s33, s3, 384
    s_mul_i32 s34, s3, 192
    s_add_u32 s34, s34, {24*64 - 4*192}
    s_cmp_ge_u32 s3, 4
    s_cselect_b32 s33, s34, s33
    s_add_u32 s33, s33, {LDS_R2}
    v_add_u32 v6, s33, v5
    v_lshlrev_b32 v2, 5, v0               ; x offset
    v_cmp_gt_u32 vcc, 36, v0
    v_mov_b32 v3, 0x3fff0000
    s_mul_i32 s6, s4, 1152
    v_cndmask_b32 v2, v3, v2, vcc
    s_mov_b64 s[46:47], vcc
    s_cmp_ge_u32 s3, 4
    s_cbranch_scc1 K3_join
    v_mov_b32 v3, 1
    s_mov_b64 exec, 1
    ds_add_u32 v4, v3
    s_mov_b64 exec, -1
    s_mul_i32 s33, s3, 576
    s_add_u32 s33, s33, {LDS_R1}
    v_add_u32 v5, s33, v5
    """)
    a("buffer_load_dword v12, v2, s[48:51], s6 offen")
    for f in range(29, NS):
        for l in wo_load(f, slot(f)): a(l)
    a(f"""
K3_poll:
    ds_read_b32 v8, v4
    s_waitcnt lgkmcnt(0)
    v_cmp_gt_u32 vcc, 4, v8
    s_cbranch_vccz K3_pollok
    s_sleep 2
    s_branch K3_poll
K3_pollok:
    """)
    proj1(a)
    a(f"""
K3_join:
    ; STAMP 7
    s_waitcnt vmcnt(0) lgkmcnt(0)
    s_barrier
    ; STAMP 8
    ds_read_b128 v[16:19], v4 offset:32
    ds_read_b128 v[20:23], v4 offset:48
    s_waitcnt lgkmcnt(0)
    v_or3_b32 v16, v16, v17, v18
    v_or3_b32 v16, v16, v19, v20
    v_or3_b32 v16, v16, v21, v22
    v_or_b32 v16, v16, v23
    v_cmp_ne_u32 vcc, 0, v16
    s_cmp_lg_u32 s31, 0
    s_cbranch_scc1 K3_proj
    s_cbranch_vccz K3_proj
    s_mov_b32 s31, 1
    s_mov_b32 s40, 64
    s_waitcnt vmcnt(0)
    s_barrier
    s_branch K3_restart
K3_proj:
    ; STAMP 1
    """)
    tail(a)
    a("""
K3_end:
    s_endpgm
    """)
    return a.text(), kernel_desc(NAME, 256, 64)
```

```python
from common import *
NAME = "k5_ffn_kernel"
NWG = 256
SS = 36864
LDS_AB = 4 * SS
LDS = LDS_AB
LAUNCH = f"; @launch kernel={NAME} grid=({NWG},1,1) block=(256,1,1) lds={LDS}"
X = 112
ACC = (48, 80)
HB = 8
FR = 80
NR = 12
PF = 8
BASE = (4, 5, 6, 7)
TMP = 8
STREAM = 972 * 1024
import os
OPT = os.environ.get('K5OPT', 'wm')

def mfma(acc, a_, b_, first):
    return f"v_mfma_f32_16x16x32_bf16 {vr(acc)}, {a_}, {b_}, {'0' if first else vr(acc)}"

def interleave(mf, fill, maxper=2):
    n = len(mf)
    out = []
    gaps = [[] for _ in range(n)]
    cnt = [len(mf[(i + 1) % n][1]) if i + 1 < n else 0 for i in range(n)]
    for i in range(n): cnt[i] += len(mf[i][2])
    g = 0
    for (lo, item) in fill:
        g = max(g, lo)
        while g < n - 1 and cnt[g] >= maxper: g += 1
        gaps[g].append(item); cnt[g] += len(item) if isinstance(item, list) else 1
    for i in range(n):
        out += mf[i][1] + [mf[i][0]] + mf[i][2] + gaps[i]
    return out

def rd(t, basefn, per):
    r = FR + (t % NR) * 4
    b, off = basefn(t)
    return f"ds_read_b128 {ar(r)}, v{b} offset:{off}"

def dma_items(pos_imm, dyn=False):
    it = []
    for k in range(9):
        g = k // 4
        if 'm' not in OPT or k % 4 == 0: it.append(f"s_add_u32 m0, s20, {pos_imm + g*4096}")
        it.append(f"buffer_load_dwordx4 v1, s[12:15], s{24+g} offen offset:{(k%4)*1024} lds")
    return it
ADV = [f"s_add_u32 s{24+g}, s{24+g}, {SS}" for g in range(3)]

def epi1(acc):
    it = []
    for rt in range(2):
        for e in range(2):
            g = acc + ((0 * 2 + e) * 2 + rt) * 4; u = acc + ((1 * 2 + e) * 2 + rt) * 4
            for i in range(4): it.append(f"v_max_f32 v{g+i}, 0, v{g+i}")
            for i in range(4): it.append(f"v_mul_f32 v{g+i}, v{g+i}, v{u+i}")
            for i in range(2): it.append(f"v_cvt_pk_bf16_f32 v{TMP+rt*4+e*2+i}, v{g+2*i}, v{g+2*i+1}")
        it.append(f"buffer_store_dwordx4 {vr(TMP+rt*4)}, v1, s[8:11], s41 offen offset:{rt*1024}{'' if 's' in OPT else ' sc1'}")
    for q in range(4):
        it.append(["s_set_gpr_idx_on s30, gpr_idx(DST)", f"v_accvgpr_write_b32 a{2*q}, v{TMP+2*q}", f"v_accvgpr_write_b32 a{2*q+1}, v{TMP+2*q+1}", "s_set_gpr_idx_off"])
    it += ["s_add_u32 s30, s30, 8", "s_add_u32 s41, s41, 0x800"]
    return it
FLAG_ST = ["v_mov_b32 v19, 9", "buffer_store_dword v19, v18, s[8:11], s46 offen sc1"]
FLAG_LD = ["buffer_load_dwordx4 v[20:23], v24, s[8:11], s45 offen sc1"]
def nvm(lines): return sum(1 for l in lines if l.startswith(("buffer_", "global_")))
def check(n, need):
    return [f"K5_chk{n}:", "v_min_i32 v25, v20, v21", "v_min3_i32 v25, v22, v23, v25", f"v_cmp_gt_i32 vcc, {need}, v25",
            f"s_cbranch_vccz K5_ok{n}", "s_sleep 2"] + FLAG_LD + ["s_waitcnt vmcnt(0)", f"s_branch K5_chk{n}", f"K5_ok{n}:"]

def flat(L):
    o = []
    for x in L:
        if isinstance(x, list): o += x
        else: o.append(x)
    return o

def spread(items, lo, hi):
    n = len(items)
    return [(lo + (hi - lo) * i // max(n, 1), it) for i, it in enumerate(items)]

def merge(*ls):
    return sorted(sum(ls, []), key=lambda x: x[0])

DEND = 50 if 'm' in OPT else 66
def epi1_sched(acc):
    e = epi1(acc)
    if 'm' not in OPT: return spread(e, 6, 70)
    k = [i for i, x in enumerate(e) if isinstance(x, list)][0]
    return spread(e[:k], 5, 56) + spread(e[k:], 57, 71)
def chunk(half, peel=None):
    acc = ACC[half]
    def basefn(t):
        t %= 144
        t2 = (half * 72 + t) % 144
        return BASE[t2 // 36], (t2 % 36) * 1024
    out = []
    for sub in range(2):
        pos = 2 * half + sub
        mf = []
        for ks in range(9):
            s = sub * 9 + ks
            for f in range(4):
                t = s * 4 + f
                for rt in range(2):
                    pre = []; post = []
                    if 'w' in OPT:
                        if rt == 0 and f == 0: pre = [f"s_waitcnt lgkmcnt({PF-4})"]
                    elif rt == 0 and f % 2 == 0: pre = [f"s_waitcnt lgkmcnt({PF-2})"]
                    if rt == 0: post = [rd(t + PF, basefn, 72)]
                    mf.append((mfma(acc + (f * 2 + rt) * 4, ar(FR + (t % NR) * 4), vr(X + (2 * s + rt) * 4), s == 0), pre, post))
        d = dma_items(((pos + 1) % 4) * SS)
        fill = spread(d, 1, DEND) + [(DEND + 1, x) for x in ADV]
        if sub == 0:
            fill = merge(fill, epi1_sched(ACC[1 - half]))
            if peel is None:
                if half == 1:
                    fill = [(0, ["s_cmp_eq_u32 s30, 32", "s_cselect_b32 s52, s46, s54", "buffer_store_dword v19, v18, s[8:11], s52 offen sc1"])] + fill
                else:
                    fill = [(0, ["s_cmp_eq_u32 s30, 40", "s_cselect_b32 s53, s45, s54", "buffer_load_dwordx4 v[20:23], v24, s[8:11], s53 offen sc1"])] + fill
            if peel == 6: fill = merge([(0, x) for x in flag_st(5)], fill)
            if peel == 7: fill = merge([(0, x) for x in FLAG_LD], fill)
        if peel is not None:
            ks = PEEL_K[(peel, sub)]
            bl = sum((bloads(k) for k in ks), [])
            if 'n' in OPT: bl = []
            fill = merge(fill, spread(bl, 52, 71) if 't' in OPT else spread(bl, 3, 64))
        fill = fix_m0(fill)
        body = flat(interleave(mf, fill))
        n = nvm(body)
        if peel is not None and 't' in OPT:
            n += chunk.carry
            k = max(i for i, l in enumerate(body) if l.endswith(' lds') or 'store' in l or l == FLAG_LD[0])
            chunk.carry = nvm(body[k + 1:])
        out += body + [f"s_waitcnt vmcnt({n})", "s_barrier"]
    return out

chunk.carry = 0
PEEL_K = {(6, 0): range(9, 11), (6, 1): range(11, 14), (7, 0): range(14, 16), (7, 1): range(16, 18), (8, 0): range(18, 21), (8, 1): range(21, 24)}
def xload(s_):
    it = [f"buffer_load_dwordx4 {vr(X+(2*s_+rt)*4)}, v1, s[8:11], s{36 if rt == 0 else 38} offen offset:{(s_%4)*1024}" for rt in range(2)]
    if s_ % 4 == 3: it += ["s_add_u32 s36, s36, 0x1000", "s_add_u32 s38, s38, 0x1000"]
    return it
def chunk0(vm):
    acc = ACC[1]
    out = []
    for sub in range(2):
        base = BASE[2 + sub]
        basefn = lambda t: (base, (t % 36) * 1024)
        out += [rd(36 * sub + t, basefn, 0) for t in range(PF)]
        mf = []
        for tl in range(36):
            t = 36 * sub + tl
            s_, f = divmod(t, 4)
            for rt in range(2):
                pre = []; post = []
                if rt == 0 and f == 0: pre = [f"s_waitcnt lgkmcnt({min(PF - 4, 36 - tl - 4)})"]
                if rt == 0 and tl + PF < 36: post = [rd(t + PF, basefn, 0)]
                mf.append((mfma(acc + (f * 2 + rt) * 4, ar(FR + (t % NR) * 4), vr(X + (2 * s_ + rt) * 4), s_ == 0), pre, post))
        if sub == 0:
            fill = merge(spread(sum((xload(k) for k in range(4, 13)), []), 0, 50), spread(dma_items(SS) + ADV, 6, 40), spread(dma_items(2 * SS) + ADV, 42, 71))
        else:
            fill = merge(spread(sum((xload(k) for k in range(13, 18)), []), 0, 16), spread(dma_items(3 * SS) + ADV, 4, 34), spread(dma_items(0) + ADV, 36, 66))
        body = []
        nd = 0
        for l in flat(interleave(mf, fill)):
            if l.startswith("buffer_"):
                if l.endswith(" lds"):
                    vm.issue(("d", 1 + 2 * sub + nd // 9)); nd += 1
                else: vm.issue(("x", l.split()[1].rstrip(',')))
            if l.startswith("v_mfma"):
                n = vm.need(("x", l.split(", ")[2]))
                if n is not None: body.append(f"s_waitcnt vmcnt({n})")
            body.append(l)
        n = vm.need(("d", 1 + 2 * sub))
        out += body + ([f"s_waitcnt vmcnt({n})"] if n is not None else []) + ["s_barrier"]
    out += [f"ds_read_b128 {ar(FR+4*t)}, v{BASE[0]} offset:{t*1024}" for t in range(PF)]
    return out
NPRE = 24
def fix_m0(fill):
    res = []; pend = []; inpair = False
    for lo, it in fill:
        if isinstance(it, list) and inpair:
            pend.append((lo, it)); continue
        res.append((lo, it))
        if isinstance(it, str) and ' m0, ' in it: inpair = True
        if isinstance(it, str) and it.endswith(' lds'):
            inpair = False
            res += pend; pend = []
    return res

from k3 import Track
A2 = 112
ST = 64
RX, RG, RGS = 92, 104, 40
def breg(kpos, rt):
    if kpos < 9: return ar(HB + (2 * kpos + rt) * 4)
    n = kpos - 9
    if n < 16: return ar(128 + n * 8 + rt * 4)
    return vr(184 + (n - 16) * 8 + rt * 4) if n < 25 else vr(48 + (n - 25) * 8 + rt * 4)
def bloads(kpos):
    n = kpos - 9
    c, p = divmod(n, 3)
    it = [f"buffer_load_dwordx4 {breg(kpos, rt)}, v1, s[8:11], s{42+p} offen offset:{(c%2)*2048 + rt*1024}{'' if 'q' in OPT else (' nt' if 'r' in OPT else ' sc1')}" for rt in range(2)]
    if c % 2 == 1: it.append(f"s_add_u32 s{42+p}, s{42+p}, 0x1000")
    return it
def flag_st(v): return [f"v_mov_b32 v19, {v}", "buffer_store_dword v19, v18, s[8:11], s46 offen sc1"]

ORDER = list(range(217)) + [k * 7 + t for t in (6, 0, 1, 2, 3, 4, 5) for k in range(31, 36)] + list(range(252, 324))
def decode(idx):
    if idx < 252: return idx % 7, idx // 7
    return 7 + (idx - 252) % 2, (idx - 252) // 2

def epi_send(rel):
    it = []
    if rel == 3:
        d = ST + 24
        for rt in range(2):
            c = A2 + (12 + rt) * 4
            for i in range(2): it.append(f"v_cvt_pk_bf16_f32 v{d+2*rt+i}, v{c+2*i}, v{c+2*i+1}")
        return it + [f"buffer_store_dwordx4 {vr(d)}, v1, s[8:11], s35 offen sc1"]
    for rt in range(2):
        d = ST + (rel * 2 + rt) * 4
        for e in range(2):
            c = A2 + (2 * (2 * rel + e) + rt) * 4
            for i in range(2): it.append(f"v_cvt_pk_bf16_f32 v{d+e*2+i}, v{c+2*i}, v{c+2*i+1}")
        it.append(f"buffer_store_dwordx4 {vr(d)}, v1, s[8:11], s{32+rel} offen offset:{rt*1024} sc1")
    return it

def reduce_prefetch():
    return [f"buffer_load_dwordx4 {vr(RX)}, v1, s[8:11], s55 offen",
            f"s_add_u32 s55, s55, {18*1024}",
            f"buffer_load_dwordx4 {vr(RX+4)}, v1, s[8:11], s55 offen",
            f"buffer_load_dwordx2 {vr(RX+8,2)}, v1, s[8:11], s57 offen",
            f"s_add_u32 s57, s57, {18*1024}",
            f"buffer_load_dwordx2 {vr(RX+10,2)}, v1, s[8:11], s57 offen",
            f"buffer_load_dwordx4 {vr(RG)}, v26, s[8:11], s58 offen",
            f"buffer_load_dwordx4 {vr(RG+4)}, v26, s[8:11], s58 offen offset:16",
            f"buffer_load_dwordx4 {vr(RGS)}, v26, s[8:11], s59 offen"]
RFLAG_LD = "buffer_load_dwordx4 v[20:23], v24, s[8:11], s60 offen sc1"

def phase2(pre):
    out = []
    first_use = {}
    for pos, idx in enumerate(ORDER):
        first_use.setdefault(decode(idx)[1], pos // 36)
    vm = Track()
    def account(lines, i):
        for l in lines:
            if not l.startswith("buffer_"): continue
            tag = ("o", i)
            for kpos in range(9, 36):
                if any(l == x for x in bloads(kpos)): tag = ("b", first_use[kpos])
            if l == FLAG_LD[0]: tag = ("f",)
            vm.issue(tag)
    early = []
    LOADAT = {2: range(24, 28), 3: range(28, 32), 4: range(32, 36)}
    out += early
    account(pre + early, 0)
    for i in range(9):
        ss = 18 + i
        def basefn(t):
            idx = ORDER[36 * i + t]
            return BASE[(18 + idx // 36 + 2) % 4], (idx % 36) * 1024
        mf = []
        for t in range(36):
            tt, kpos = decode(ORDER[36 * i + t])
            for rt in range(2):
                pre_ = []; post = []
                last = (i == 8)
                G = 4 if 'w' in OPT else 2
                if rt == 0 and t % G == 0:
                    pre_ = [f"s_waitcnt lgkmcnt({min(PF - G, max(0, 36 - t - G)) if last else PF - G})"]
                if rt == 0 and not (last and t + PF >= 36): post = [rd(t + PF, basefn, 36)]
                mf.append((mfma(A2 + (2 * tt + rt) * 4, ar(FR + (t % NR) * 4), breg(kpos, rt), kpos == 0), pre_, post))
        fill = []
        if ss + 3 <= 26:
            fill += spread(dma_items(((ss + 3) % 4) * SS), 1, DEND) + [(DEND + 1, x) for x in ADV]
        bl = sum((bloads(k) for k in LOADAT.get(i, [])), [])
        if i == 0: fill = merge(fill, [(0, x) for x in flag_st(8)], epi1_sched(ACC[1]))
        fill = merge(fill, spread(bl, 52, 71) if 't' in OPT else spread(bl, 3, 64))
        if i == 2: fill = merge([(0, x) for x in flag_st(9)], fill)
        if i in (1, 3): fill = merge([(0, x) for x in FLAG_LD], fill)
        if i == 5: fill = merge(fill, spread(reduce_prefetch(), 3, 60))
        if i == 6:
            fill = merge(fill, spread(epi_send(3), 18, 26), spread(epi_send(0), 38, 50), spread(epi_send(1), 58, 70))
        if i == 7:
            fill = merge(fill, spread(epi_send(2), 5, 14), [(WAITGAP, ["v_mov_b32 v45, 1", "s_waitcnt vmcnt(0)", "buffer_store_dword v45, v18, s[8:11], s61 offen sc1"])])
        if i == 8:
            fill = merge(fill, [(POLLGAP, RFLAG_LD)])
        body = flat(interleave(mf, fix_m0(fill)))
        account(body, i)
        out += body
        if i <= 6:
            ns = [vm.need(t_) for t_ in [("o", i - 1), ("b", i + 1), ("f",)]]
            ns = [n for n in ns if n is not None]
            n = min(ns) if ns else nvm(body) + chunk.carry
            out += [f"s_waitcnt vmcnt({n})", "s_barrier"]
        if i == 1: out += check(2, 8)
        if i == 3: out += check(3, 9)
        st = {0: 1, 1: 2, 4: 5, 5: 9, 6: 11, 7: 12}.get(i)
        if st: out += [f"; STAMP {st}"]
    return out
WAITGAP, POLLGAP = 50, 48

def final_reduce():
    RP = 112
    it = ["s_branch K5_rchk", "K5_rpoll:", RFLAG_LD, "K5_rchk:", "s_waitcnt vmcnt(0)",
          "v_min_i32 v25, v20, v21", "v_min3_i32 v25, v22, v23, v25", "v_cmp_gt_i32 vcc, 1, v25",
          "s_cbranch_vccnz K5_rpoll", "; STAMP 10", "s_add_u32 s55, s56, 0x1000"]
    for k in range(6):
        it.append(f"buffer_load_dwordx4 {vr(RP+4*k)}, v1, s[8:11], s{56 if k < 4 else 55} offen offset:{(k%4)*1024} sc1")
    for k in range(4):
        it.append(f"buffer_load_dwordx4 {vr(RP+24+4*k)}, v1, s[8:11], s51 offen offset:{k*1024} sc1")
    def own(rt, j): return A2 + (2 * (7 + j // 4) + rt) * 4 + j % 4
    U, SG = 184, 192
    for k in range(12): it += [f"v_lshlrev_b32 v{208+2*k}, 16, v{RX+k}", f"v_and_b32 v{208+2*k+1}, s23, v{RX+k}"]
    for rel in range(3):
        it.append(f"s_waitcnt vmcnt({8 - 2 * rel})")
        for rt in range(2):
            b = RP + (rel * 2 + rt) * 4
            for k in range(4): it += [f"v_lshlrev_b32 v{U+2*k}, 16, v{b+k}", f"v_and_b32 v{U+2*k+1}, s23, v{b+k}"]
            for k in range(4): it.append(f"v_pk_add_f32 {vr(own(rt,2*k),2)}, {vr(own(rt,2*k),2)}, {vr(U+2*k,2)}")
    for rt in range(2):
        for k in range(4): it.append(f"v_pk_fma_f32 {vr(own(rt,2*k),2)}, {vr(own(rt,2*k),2)}, {vr(RG+2*k,2)}, {vr(208+8*rt+2*k,2)}")
        for k in range(4): it.append(f"v_cvt_pk_bf16_f32 v{ST+4*rt+k}, v{own(rt,2*k)}, v{own(rt,2*k)+1}")
        it.append(f"buffer_store_dwordx4 {vr(ST+4*rt)}, v27, s[64:67], s62 offen")
        if rt == 0: it.append(f"s_add_u32 s62, s62, {16*1152}")
    it += ["s_cmp_lg_u32 s47, 3", "s_cbranch_scc1 K5_end", "s_waitcnt vmcnt(2)"]
    for J in range(4):
        b = RP + 24 + 4 * J
        d = SG if J == 0 else U
        for k in range(4): it += [f"v_lshlrev_b32 v{d+2*k}, 16, v{b+k}", f"v_and_b32 v{d+2*k+1}, s23, v{b+k}"]
        if J:
            for k in range(4): it.append(f"v_pk_add_f32 {vr(SG+2*k,2)}, {vr(SG+2*k,2)}, {vr(U+2*k,2)}")
    for k in range(4): it.append(f"v_pk_fma_f32 {vr(SG+2*k,2)}, {vr(SG+2*k,2)}, {vr(RGS+2*(k%2),2)}, {vr(224+2*k,2)}")
    for k in range(4): it.append(f"v_cvt_pk_bf16_f32 v{ST+8+k}, v{SG+2*k}, v{SG+2*k+1}")
    it += [f"buffer_store_dwordx2 {vr(ST+8,2)}, v27, s[64:67], s63 offen", f"s_add_u32 s63, s63, {16*1152}",
           f"buffer_store_dwordx2 {vr(ST+10,2)}, v27, s[64:67], s63 offen"]
    return it
PROF_VGPR = 47
MAPS = {
 "2x16": """s_and_b32 s4, s2, 7
    s_lshl_b32 s4, s4, 1
    s_bfe_u32 s5, s2, 0x10003
    s_add_u32 s4, s4, s5
    s_lshr_b32 s5, s2, 4""",
 "4x8": """s_and_b32 s4, s2, 3
    s_lshl_b32 s4, s4, 2
    s_bfe_u32 s5, s2, 0x20003
    s_add_u32 s4, s4, s5
    s_bfe_u32 s5, s2, 0x10002
    s_lshl_b32 s5, s5, 3
    s_lshr_b32 s6, s2, 5
    s_add_u32 s5, s5, s6""",
 "8x4": """s_and_b32 s4, s2, 1
    s_lshl_b32 s4, s4, 3
    s_bfe_u32 s5, s2, 0x30003
    s_add_u32 s4, s4, s5
    s_bfe_u32 s5, s2, 0x20001
    s_lshl_b32 s5, s5, 2
    s_lshr_b32 s6, s2, 6
    s_add_u32 s5, s5, s6""",
}
import os
MAP = MAPS[os.environ.get("K5MAP", "4x8")]
def gen():
    a = Asm()
    a(kernel_head(NAME))
    ST = 48
    a(f"""
    s_cmp_ge_u32 s2, {NWG}
    s_cbranch_scc1 K5_end
    s_load_dwordx2 s[8:9], s[0:1], {ARG['ws']}
    s_load_dwordx2 s[64:65], s[0:1], {ARG['out']}
    s_mov_b32 s66, {XBYTES}
    s_mov_b32 s67, 0x20000
    v_lshrrev_b32 v2, 6, v0
    v_and_b32 v0, 63, v0
    v_readfirstlane_b32 s3, v2            ; wave
    v_lshlrev_b32 v1, 4, v0
    s_mov_b32 s10, {WS_SIZE:#x}
    s_mov_b32 s11, 0x20000
    s_mov_b32 s14, {STREAM}
    s_mov_b32 s15, 0x20000
    s_mov_b32 s18, {XBYTES}
    s_mov_b32 s19, 0x20000
    s_mov_b32 s23, 0xffff0000
    {MAP}
    s_lshl_b32 s5, s5, 2
    s_add_u32 s5, s5, s3
    s_mul_i32 s20, s3, 9216
    v_lshrrev_b32 v9, 4, v0               ; g
    v_lshlrev_b32 v10, 3, v0
    s_mul_i32 s6, s5, {32*288}
    s_add_u32 s6, s6, {WS_ST:#x}
    s_add_u32 s7, s6, {16*288}
    s_mul_i32 s34, s4, {STREAM}
    s_add_u32 s34, s34, {WS_WP:#x}
    s_lshr_b32 s47, s4, 2                 ; J
    s_and_b32 s48, s4, 3                  ; q
    s_mul_i32 s35, s47, {XBYTES}
    s_add_u32 s35, s35, {WS_PART:#x}
    s_lshl_b32 s36, s3, 10
    s_add_u32 m0, s36, {LDS_AB}
    s_add_u32 s36, s36, {WS_MOD + 3*2304}
    s_mul_i32 s37, s5, 36864
    s_waitcnt lgkmcnt(0)
    s_add_u32 s12, s8, s34
    s_addc_u32 s13, s9, 0
    s_add_u32 s16, s8, s35
    s_addc_u32 s17, s9, 0
    """)
    a(f"s_add_u32 s36, s37, {WS_O:#x}\ns_add_u32 s38, s36, {18*1024}\ns_mov_b32 s24, s20\ns_add_u32 s25, s20, 0x1000\ns_add_u32 s26, s20, 0x2000")
    vm0 = Track()
    for l in dma_items(0):
        a(l + ("\ns_nop 0" if " m0, " in l else ""))
    for l in ADV: a(l)
    for k in range(4):
        for l in xload(k):
            a(l)
            if l.startswith("buffer_"): vm0.issue(("x", l.split()[1].rstrip(',')))
    a(f"""
    v_add_u32 v4, {2*SS}, v1
    v_add_u32 v5, {3*SS}, v1
    v_mov_b32 v6, v1
    v_add_u32 v7, {SS}, v1
    v_lshlrev_b32 v12, 5, v9
    v_add_u32 v12, {LDS_AB}, v12          ; ab lds addr
    s_lshr_b32 s49, s5, 2                 ; i
    s_lshl_b32 s50, s49, 2
    s_add_u32 s50, s50, s47               ; 4i + J
    s_lshl_b32 s45, s50, 2
    s_add_u32 s45, s45, s3
    s_lshl_b32 s45, s45, 7
    s_add_u32 s45, s45, {WS_FLAG:#x}
    s_lshl_b32 s46, s48, 2
    s_add_u32 s46, s46, s45
    s_lshl_b32 s50, s50, 4
    s_add_u32 s50, s50, s3                ; ((4i+J)*4)*4 + w
    s_mul_i32 s50, s50, 20480
    s_add_u32 s50, s50, {WS_HX:#x}
    s_mul_i32 s41, s48, {4*20480}
    s_add_u32 s41, s41, s50
    s_add_u32 s50, s50, 0x800
    s_add_u32 s42, s48, 1
    s_and_b32 s42, s42, 3
    s_mul_i32 s42, s42, {4*20480}
    s_add_u32 s42, s42, s50
    s_add_u32 s43, s48, 2
    s_and_b32 s43, s43, 3
    s_mul_i32 s43, s43, {4*20480}
    s_add_u32 s43, s43, s50
    s_add_u32 s44, s48, 3
    s_and_b32 s44, s44, 3
    s_mul_i32 s44, s44, {4*20480}
    s_add_u32 s44, s44, s50
    v_cmp_eq_u32 vcc, 0, v0
    v_mov_b32 v18, 0x7fffffff
    v_mov_b32 v19, 3
    s_mov_b32 s54, 0x7fff0000
    v_mov_b32 v24, 0
    v_cndmask_b32 v18, v18, v24, vcc
    s_lshr_b32 s50, s48, 1
    s_mul_i32 s50, s50, 9
    s_and_b32 s51, s48, 1
    s_mul_i32 s62, s51, 5
    s_add_u32 s62, s62, s50
    s_add_u32 s62, s62, s47
    s_lshl_b32 s55, s62, 10
    s_add_u32 s55, s55, s37
    s_add_u32 s55, s55, {WS_X1:#x}
    s_lshl_b32 s58, s62, 7
    s_add_u32 s58, s58, {WS_MOD + 5*2304} ; gb
    s_lshl_b32 s62, s62, 6
    s_add_u32 s50, s50, 4
    s_lshl_b32 s57, s50, 10
    s_lshl_b32 s60, s51, 3
    s_add_u32 s57, s57, s60
    s_add_u32 s57, s57, s37
    s_add_u32 s57, s57, {WS_X1:#x}
    s_lshl_b32 s63, s50, 6
    s_add_u32 s63, s63, s60
    s_lshl_b32 s59, s63, 1
    s_add_u32 s59, s59, {WS_MOD + 5*2304}
    s_mul_i32 s60, s5, {32*1152}
    s_add_u32 s63, s63, s60
    s_add_u32 s62, s62, s60
    v_lshlrev_b32 v26, 5, v9              ; g*32 (gb)
    v_and_b32 v27, 15, v0
    v_mul_u32_u24 v27, 1152, v27
    v_lshl_add_u32 v27, v9, 4, v27
    s_lshl_b32 s60, s49, 2
    s_add_u32 s60, s60, s48
    s_lshl_b32 s60, s60, 2
    s_add_u32 s60, s60, s3
    s_lshl_b32 s50, s60, 15
    s_add_u32 s50, s50, {WS_PART:#x}
    s_mul_i32 s56, s47, 6144
    s_add_u32 s56, s56, s50               ; inbox
    s_add_u32 s32, s47, 1
    s_and_b32 s32, s32, 3
    s_mul_i32 s32, s32, 6144
    s_add_u32 s32, s32, s50
    s_add_u32 s33, s47, 2
    s_and_b32 s33, s33, 3
    s_mul_i32 s33, s33, 6144
    s_add_u32 s33, s33, s50
    s_add_u32 s33, s33, 2048
    s_add_u32 s34, s47, 3
    s_and_b32 s34, s34, 3
    s_mul_i32 s34, s34, 6144
    s_add_u32 s34, s34, s50
    s_add_u32 s34, s34, 4096
    s_add_u32 s51, s50, 24576             ; singles
    s_lshl_b32 s35, s47, 10
    s_add_u32 s35, s35, s51
    s_lshl_b32 s60, s60, 7
    s_add_u32 s60, s60, {WS_FLAG + 0x8000}
    s_lshl_b32 s61, s47, 2
    s_add_u32 s61, s61, s60
    s_cmp_eq_u32 s47, 3
    s_cselect_b32 s51, s51, s54
    s_mov_b32 s30, 8
    s_add_u32 s41, s41, 0x800
    ; STAMP 5
    s_waitcnt vmcnt(8)
    s_barrier
    ; STAMP 6
    ; CSTAMP 13
    """)
    for l in chunk0(vm0): a(l)
    a("; STAMP 3\n.p2align 3\nK5_p1_A:")
    for l in chunk(0): a(l)
    a("s_cmp_eq_u32 s30, 48\ns_cbranch_scc1 K5_p1_x")
    for l in chunk(1): a(l)
    a("s_branch K5_p1_A\nK5_p1_x:")
    chunk.carry = 0
    for l in ["; STAMP 4"] + check(0, 3) + chunk(1, 6) + chunk(0, 7) + check(1, 5) + chunk(1, 8): a(l)
    a("; STAMP 7")
    for l in phase2([]): a(l)
    a("""
    ; STAMP 8
    ; CSTAMP 14
    """)
    for l in final_reduce(): a(l)
    a("""
K5_end:
    s_endpgm
    """)
    return a.text(), kernel_desc(NAME, 512, 72, accum=256)
```

```python
import sys
def wrap(name, desc, body, threads, iters, div, lds=0, pre="", nv=128, grid=256):
    s = f"""; desc: {desc}
; @launch grid=({grid},1,1) block=({threads},1,1) lds={lds}
.amdgcn_target "amdgcn-amd-amdhsa--gfx950"
.text
.globl mb_kernel
.p2align 8
.type mb_kernel,@function
mb_kernel:
    s_load_dwordx4 s[4:7], s[0:1], 0
    s_load_dwordx2 s[8:9], s[0:1], 16
    v_lshrrev_b32 v1, 6, v0
    s_nop 0
    v_readfirstlane_b32 s10, v1
    s_mul_i32 s11, s2, {threads//64}
    s_add_u32 s11, s11, s10
    s_lshl_b32 s11, s11, 2
    v_and_b32 v2, 63, v0
    v_lshlrev_b32 v3, 4, v2
"""
    for i in range(4, nv):
        s += f"    v_mov_b32 v{i}, 0.5\n"
    s += pre
    s += f"""    s_waitcnt lgkmcnt(0)
    s_barrier
    s_memtime s[12:13]
    s_memrealtime s[18:19]
    s_movk_i32 s16, {iters}
    s_waitcnt lgkmcnt(0)
.p2align 6
L_loop:
{body}
    s_sub_u32 s16, s16, 1
    s_cmp_lg_u32 s16, 0
    s_cbranch_scc1 L_loop
    s_nop 15
    s_nop 15
    s_memtime s[14:15]
    s_memrealtime s[16:17]
    s_waitcnt lgkmcnt(0)
    s_sub_u32 s14, s14, s12
    s_sub_u32 s16, s16, s18
    v_mov_b32 v1, s14
    v_mov_b32 v2, s11
    v_mov_b32 v3, s16
    s_mov_b64 exec, 1
    global_store_dword v2, v1, s[6:7]
    global_store_dword v2, v3, s[8:9]
    s_endpgm
.section .rodata,"a"
.p2align 6
.amdhsa_kernel mb_kernel
  .amdhsa_next_free_vgpr {nv}
  .amdhsa_next_free_sgpr 32
  .amdhsa_accum_offset {nv}
  .amdhsa_group_segment_fixed_size 0
  .amdhsa_kernarg_size 24
  .amdhsa_user_sgpr_count 2
  .amdhsa_user_sgpr_kernarg_segment_ptr 1
  .amdhsa_system_sgpr_workgroup_id_x 1
.end_amdhsa_kernel
"""
    open(name, "w").write(s)
    return name

if __name__ == "__main__":
    files = []
    IT = 200
    def rep(fmt, n, base=8, stride=1):
        return "\n".join("    " + fmt.format(d=base + i * stride, d1=base + i * stride + 1, a=base + 40 + i, b=base + 41 + i) for i in range(n))
    tests = {
     "exp": rep("v_exp_f32 v{d}, v{a}", 32),
     "add": rep("v_add_f32 v{d}, v{a}, v{b}", 32),
     "fma": rep("v_fma_f32 v{d}, v{a}, v{b}, v{a}", 32),
     "cvt": rep("v_cvt_pk_bf16_f32 v{d}, v{a}, v{b}", 32),
     "perm": rep("v_perm_b32 v{d}, v{a}, v{b}, v{b}", 32),
     "pkfma": "\n".join(f"    v_pk_fma_f32 v[{8+2*i}:{9+2*i}], v[{48+2*(i%8)}:{49+2*(i%8)}], v[{48+2*(i%8)}:{49+2*(i%8)}], v[{80+2*(i%8)}:{81+2*(i%8)}]" for i in range(16)) + "\n" +
              "\n".join(f"    v_pk_fma_f32 v[{8+2*i}:{9+2*i}], v[{48+2*(i%8)}:{49+2*(i%8)}], v[{48+2*(i%8)}:{49+2*(i%8)}], v[{80+2*(i%8)}:{81+2*(i%8)}]" for i in range(16)),
     "exp_add": "\n".join(f"    v_exp_f32 v{8+i}, v{48+i}\n    v_add_f32 v{80+i}, v{48+i}, v{49+i}" for i in range(16)),
     "exp_2add": "\n".join(f"    v_exp_f32 v{8+i}, v{48+i}\n    v_add_f32 v{80+i}, v{48+i}, v{49+i}\n    v_add_f32 v{100+i}, v{48+i}, v{49+i}" for i in range(16)),
     "exp16": rep("v_exp_f16 v{d}, v{a}", 32),
    }
    for t, body in tests.items():
        n = body.count("\n") + 1
        for th in (256, 512, 1024):
            files.append(wrap(f"t_{t}_{th}.s", f"{t} x{n} threads={th} (per instr per wave)", body, th, IT, IT * n))
    print(" ".join(files))
```

```python
import sys
sys.path.insert(0, 'gen')
from gen1 import wrap
files = []
KV_TILE, KV_V, KV_K2 = 2368, 1024, 2240
def vr(b, n=4): return f"v[{b}:{b+n-1}]"
class Ctx:
    def __init__(self, nq):
        self.nq = nq
        r = 8
        self.Q1 = []; self.Q2 = []; self.SB = []; self.P = []; self.O = []
        for q in range(nq):
            self.Q1.append(r); r += 4
            self.Q2.append(r); r += 4
            self.SB.append((r, r + 16)); r += 32
            self.P.append(r); r += 8
            self.O.append(r); r += 16
        self.KS = (r, r + 8); r += 16
        self.VS = (r, r + 8); r += 16
        self.n = r
    def rdK(s, t):
        k = s.KS[t % 2]; o = t * KV_TILE
        return [f"ds_read_b128 {vr(k)}, v3 offset:{o}", f"ds_read_b32 v{k+4}, v4 offset:{o+KV_K2}"]
    def rdV(s, t):
        v = s.VS[t % 2]; o = t * KV_TILE + KV_V
        return [f"ds_read_b128 {vr(v)}, v5 offset:{o}", f"ds_read_b128 {vr(v+4)}, v5 offset:{o+608}"]
    def M1(s, q, t): return f"v_mfma_f32_32x32x16_bf16 {vr(s.SB[q][t%2],16)}, {vr(s.KS[t%2])}, {vr(s.Q1[q])}, 0"
    def M2(s, q, t): return f"v_mfma_f32_32x32x8_bf16 {vr(s.SB[q][t%2],16)}, {vr(s.KS[t%2]+4,2)}, {vr(s.Q2[q],2)}, {vr(s.SB[q][t%2],16)}"
    def PV(s, q, t, b): return f"v_mfma_f32_32x32x16_bf16 {vr(s.O[q],16)}, {vr(s.VS[t%2]+4*b)}, {vr(s.P[q]+4*b)}, {vr(s.O[q],16)}"
    def ec(s, q, t):
        b = s.SB[q][t % 2]
        return ([f"v_exp_f32 v{b+i}, v{b+i}" for i in range(16)], [f"v_cvt_pk_bf16_f32 v{s.P[q]+i}, v{b+2*i}, v{b+2*i+1}" for i in range(8)])

def stepA(c, t):
    e, cv = c.ec(0, t)
    L = ["s_waitcnt lgkmcnt(0)", c.M1(0, t + 1)] + e[0:4] + [c.PV(0, t - 1, 1)] + c.rdK(t + 2) + c.rdV(t + 1)
    L += e[4:8] + cv[0:2] + [c.M2(0, t + 1)] + cv[2:4] + e[8:12] + [c.PV(0, t, 0)] + e[12:16] + cv[4:8]
    return L
def stepB(c, t):
    e, cv = c.ec(0, t)
    rk = c.rdK(t + 2); rv = c.rdV(t + 1)
    L = ["s_waitcnt lgkmcnt(0)", c.M1(0, t + 1)] + e[0:2] + [rk[0]] + e[2:4] + [rk[1]] + [e[4]] + [c.PV(0, t - 1, 1)]
    L += e[5:7] + [rv[0]] + [e[7]] + cv[0:2] + [rv[1]] + cv[2:4] + [c.M2(0, t + 1)] + e[8:13] + [c.PV(0, t, 0)] + e[13:16] + cv[4:8]
    return L
def stepC(c, t):
    e, cv = c.ec(0, t)
    rk = c.rdK(t + 2); rv = c.rdV(t + 1)
    L = ["s_waitcnt lgkmcnt(0)", c.M1(0, t + 1)] + e[0:3] + [c.M2(0, t + 1)] + rk + e[3:8] + cv[0:4] + [e[8]] + [c.PV(0, t, 0)] + e[9:16] + cv[4:8] + ["s_nop 0", rv[0], c.PV(0, t, 1), rv[1]]
    return L
def step2q(c, t):
    L = ["s_waitcnt lgkmcnt(0)"]
    rk = c.rdK(t + 2); rv = c.rdV(t + 1)
    for q in range(2):
        e, cv = c.ec(q, t)
        prev = c.PV(1, t - 1, 1) if q == 0 else c.PV(0, t, 1)
        x1 = rk if q == 0 else []
        x2 = rv if q == 0 else []
        L += [c.M1(q, t + 1)] + e[0:3] + x1[:1] + e[3:5] + x1[1:] + [prev] + e[5:8] + x2[:1] + cv[0:2] + x2[1:] + cv[2:4] + [c.M2(q, t + 1)] + e[8:13] + [c.PV(q, t, 0)] + e[13:16] + cv[4:8]
    return L

def mk(name, stepf, nq, threads, prio=None, tiles_total=128):
    c = Ctx(nq)
    nw = threads // 64
    pre = f"""
    s_waitcnt lgkmcnt(0)
    s_mov_b32 s20, s4
    s_mov_b32 s21, s5
    s_mov_b32 s22, 0x4000000
    s_mov_b32 s23, 0x20000
    s_lshl_b32 s28, s10, 10
    s_mov_b32 m0, s28
    s_nop 0
"""
    for r in range(64 // nw):
        pre += f"    buffer_load_dwordx4 v3, s[20:23], m0 offen lds\n    s_add_u32 m0, m0, {nw*1024}\n    s_nop 0\n"
    for q in range(nq):
        pre += f"    buffer_load_dwordx4 {vr(c.Q1[q])}, v3, s[20:23], s28 offen offset:{q*16}\n"
        pre += f"    v_mov_b32 v{c.Q2[q]}, 0\n    v_mov_b32 v{c.Q2[q]+1}, 0xc000\n"
    pre += f"""    v_and_b32 v6, 31, v2
    v_lshlrev_b32 v4, 2, v6
    v_lshrrev_b32 v7, 5, v2
    v_mul_u32_u24 v5, 19, v7
    v_add_lshl_u32 v5, v5, v6, 4
    v_add_u32 v7, 0x30000, v5
    v_cmp_gt_u32 vcc, 19, v6
    s_nop 1
    v_cndmask_b32 v5, v7, v5, vcc
    v_mov_b32 v{c.KS[0]+5}, 0x3f803f80
    v_mov_b32 v{c.KS[1]+5}, 0x3f803f80
    s_waitcnt vmcnt(0)
"""
    if prio == "young":
        pre += f"    s_cmp_ge_u32 s10, {nw//2}\n    s_cbranch_scc0 L_np\n    s_setprio 1\nL_np:\n"
    body = []
    for t in range(16):
        body += stepf(c, t)
    if prio == "bar":
        body += ["s_barrier"]
    b = "\n".join("    " + l for l in body)
    wps = nw // 4
    IT = tiles_total // (16 * nq * wps)
    files.append(wrap(f"b_{name}.s", f"attn {name} thr={threads} (cyc per tile per SIMD, use max)", b, threads, IT, tiles_total, lds=65536, pre=pre, nv=max(c.n, 64)))

def stepD(c, t):
    e, cv = c.ec(0, t)
    rk = c.rdK(t + 2); rv = c.rdV(t + 1)
    L = ["s_waitcnt lgkmcnt(0)", c.M1(0, t + 1), rk[0]] + e[0:4] + [c.PV(0, t - 1, 1), rv[0]]
    L += e[4:8] + cv[0:2] + [c.M2(0, t + 1), rv[1]] + cv[2:4] + e[8:12] + [c.PV(0, t, 0), rk[1]] + e[12:16] + cv[4:8]
    return L
def stepE(c, t):
    e, cv = c.ec(0, t)
    rk = c.rdK(t + 2); rv = c.rdV(t + 1)
    L = ["s_waitcnt lgkmcnt(0)", c.M1(0, t + 1)] + e[0:4] + [rk[0], c.PV(0, t - 1, 1)]
    L += e[4:8] + cv[0:2] + [rv[0], c.M2(0, t + 1)] + cv[2:4] + e[8:12] + [rv[1], c.PV(0, t, 0), rk[1]] + e[12:16] + cv[4:8]
    return L
def stepF(c, t):
    e, cv = c.ec(0, t)
    rk = c.rdK(t + 2); rv = c.rdV(t + 1)
    L = [c.M1(0, t + 1)] + rk + e[0:4] + [c.PV(0, t - 1, 1)] + rv
    L += e[4:8] + cv[0:2] + [c.M2(0, t + 1)] + cv[2:4] + e[8:12] + [c.PV(0, t, 0), "s_waitcnt lgkmcnt(0)"] + e[12:16] + cv[4:8]
    return L
def stepG(c, t):
    e, cv = c.ec(0, t)
    rk = c.rdK(t + 2); rv = c.rdV(t + 1)
    L = ["s_waitcnt lgkmcnt(0)", c.M1(0, t + 1), rk[0]] + e[0:4] + cv[0:1] + [c.PV(0, t - 1, 1), rv[0]]
    L += e[4:8] + cv[1:3] + [c.M2(0, t + 1), rv[1]] + e[8:12] + cv[3:5] + ["s_nop 0", c.PV(0, t, 0), rk[1]] + e[12:16] + cv[5:8]
    return L
def stepN(c, t):
    e, cv = c.ec(0, t)
    L = [c.M1(0, t + 1)] + e[0:4] + [c.PV(0, t - 1, 1)]
    L += e[4:8] + cv[0:2] + [c.M2(0, t + 1)] + cv[2:4] + e[8:12] + [c.PV(0, t, 0)] + e[12:16] + cv[4:8]
    return L

def stepH(c, t):
    e, cv = c.ec(0, t)
    rk = c.rdK(t + 2)[:1]; rv = c.rdV(t + 1)
    if t % 4 == 0: rk = rk + [f"ds_read_b128 {vr(c.KS[(t//4)%2]+4)}, v3 offset:{t*KV_TILE+512}"]
    k2 = c.KS[((t+1)//4 + 1) % 2] + 4 + 2 * (((t + 1) // 2) % 2)
    m1 = f"v_mfma_f32_32x32x16_bf16 {vr(c.SB[0][(t+1)%2],16)}, {vr(c.KS[(t+1)%2])}, {vr(c.Q1[0])}, v[112:127]"
    m2 = f"v_mfma_f32_32x32x8_bf16 {vr(c.SB[0][(t+1)%2],16)}, {vr(k2,2)}, {vr(c.Q2[0] + 2*((t+1)%2),2)}, {vr(c.SB[0][(t+1)%2],16)}"
    L = [m1] + rk + e[0:4] + [c.PV(0, t - 1, 1)] + rv
    L += e[4:8] + cv[0:2] + [m2] + cv[2:4] + e[8:12] + [c.PV(0, t, 0), "s_waitcnt lgkmcnt(0)"] + e[12:16] + cv[4:8]
    return L
T = 256
_old = Ctx.__init__
def _init(self, nq):
    _old(self, nq); self.n = 128
Ctx.__init__ = _init
for nm, f in (("F", stepF), ("H", stepH), ("F2", stepF), ("H2", stepH)):
    mk(nm + "_w1", f, 1, 256, tiles_total=T)
    mk(nm + "_w2", f, 1, 512, tiles_total=T)
print(" ".join(files))
```

```python
from gen1 import wrap
files = []
def mk(name, shape, slot_kb=36, nslots=4, pf=4, dma=True, IT=8, nw=4, grp=1, order="AB", zero_b=False, xl=0, xd=0, agpr=False):
    m = slot_kb if nw == 4 else slot_kb // 2
    dper = slot_kb // nw
    threads = nw * 64
    NF = 8
    FB = 96
    BB = 128
    pre = f"""
    s_waitcnt lgkmcnt(0)
    s_mov_b32 s20, s4
    s_mov_b32 s21, s5
    s_mov_b32 s22, 0x4000000
    s_mov_b32 s23, 0x20000
    s_and_b32 s25, s2, 7
    s_lshl_b32 s25, s25, 1
    s_lshr_b32 s26, s2, 3
    s_and_b32 s26, s26, 1
    s_add_u32 s25, s25, s26
    s_lshl_b32 s25, s25, 20
    s_lshl_b32 s28, s10, 10     ; wave*1024
    s_add_u32 s25, s25, s28
    s_mov_b32 s30, 0
    v_mov_b32 v4, v3
    s_lshl_b32 s31, s10, 12
    s_add_u32 s31, s31, 147456
    s_mov_b32 s29, s25
"""
    if nw == 8:
        pre += f"""    s_lshr_b32 s26, s10, 2
    s_mul_i32 s26, s26, {slot_kb//2*1024}
    v_add_u32 v4, s26, v3
"""
    for i in range(32):
        pre += f"    s_mov_b32 s29, {0x2000000 + i*1024*4}\n    buffer_load_dwordx4 v[{BB+4*i}:{BB+4*i+3}], v3, s[20:23], s29 offen\n"
    pre += "    s_waitcnt vmcnt(0)\n"
    if zero_b:
        for i in range(128):
            pre += f"    v_pk_max_i16 v{BB+i}, v{BB+i}, 0\n"
    body = []
    total = nslots * m
    def rd(t):
        t %= total
        sl, j = divmod(t, m)
        r = FB + (t % NF) * 4
        off = sl * slot_kb * 1024 + j * 1024
        base = 4 + (off >> 16)
        return f"ds_read_b128 v[{r}:{r+3}], v{base} offset:{off & 0xffff}"
    pre += "    v_add_u32 v5, 0x10000, v4\n    v_add_u32 v6, 0x20000, v4\n"
    for t in range(pf):
        pre += "    " + rd(t) + "\n"
    for sl in range(nslots):
        if dma:
            body.append(f"s_waitcnt vmcnt({(nslots-3)*(dper+xl+xd)})")
        body.append("s_barrier")
        dpos = [ (k * m) // dper + 1 for k in range(dper)]
        for j0 in range(0, m, 2):
            t = sl * m + j0
            body.append(f"s_waitcnt lgkmcnt({pf-2})")
            r0 = FB + (t % NF) * 4
            r1 = FB + ((t+1) % NF) * 4
            ks = (t // 2)
            if shape == 32:
                b = BB + (ks % 32) * 4
                ms = [f"v_mfma_f32_32x32x16_bf16 v[16:31], v[{r0}:{r0+3}], v[{b}:{b+3}], v[16:31]",
                      f"v_mfma_f32_32x32x16_bf16 v[32:47], v[{r1}:{r1+3}], v[{b}:{b+3}], v[32:47]"]
                body += [ms[0], rd(t + pf), ms[1], rd(t + pf + 1)]
            else:
                b0 = BB + ((2*ks) % 32) * 4; b1 = BB + ((2*ks+1) % 32) * 4
                M = lambda acc, a, b: f"v_mfma_f32_16x16x32_bf16 v[{acc}:{acc+3}], v[{a}:{a+3}], v[{b}:{b+3}], v[{acc}:{acc+3}]"
                if order == "AB":
                    ms = [M(16, r0, b0), M(20, r0, b1), M(24, r1, b1), M(28, r1, b0)]
                else:
                    ms = [M(16, r0, b0), M(28, r1, b0), M(24, r1, b1), M(20, r0, b1)]
                body += [ms[0], ms[1], rd(t + pf) if order == "AB" else "", ms[2], ms[3], rd(t + pf + 1), rd(t + pf) if order != "AB" else ""]
            if xl and (j0 // 2) % (18 // xl) == 1 and (j0 // 2) // (18 // xl) < xl:
                q = (j0 // 2) // (18 // xl)
                body.append(f"buffer_load_dwordx4 {'a' if agpr else 'v'}[{48+4*q}:{51+4*q}], v3, s[20:23], s29 offen offset:{(q%4)*1024}")
            if xd and (j0 // 2) % (18 // xd) == 1 and (j0 // 2) // (18 // xd) < xd:
                q = (j0 // 2) // (18 // xd)
                body.append(f"s_add_u32 m0, s31, {(q%4)*1024}")
                body.append(f"ds_read_b128 v[{48+4*q}:{51+4*q}], v6 offset:{16384 + (q%4)*1024}")
                body.append(f"buffer_load_dwordx4 v3, s[20:23], s29 offen lds")
            for j in (j0, j0 + 1):
              if dma and j in dpos:
                k = dpos.index(j)
                dst = ((sl - 1) % nslots) * slot_kb * 1024 + k * nw * 1024
                body.append(f"s_add_u32 m0, s28, {dst}")
                body.append(f"s_add_u32 s29, s25, s30")
                body.append(f"buffer_load_dwordx4 v3, s[20:23], s29 offen lds")
                body.append(f"s_add_u32 s30, s30, {nw*1024}")
        body.append(f"s_and_b32 s30, s30, {16*1024*1024-1}")
    b = "\n".join("    " + l for l in body if l)
    f = wrap(f"h_{name}.s", f"ffn shape={shape} nw={nw} order={order} zb={zero_b} (cyc/32cyc-unit)", b, threads, IT, IT * total, lds=nslots * slot_kb * 1024 + 16384, pre=pre, nv=256)
    if agpr:
        t = open(f).read().replace(".amdhsa_next_free_vgpr 256", ".amdhsa_next_free_vgpr 512"); open(f, "w").write(t)
    files.append(f)

mk("x0", 16, pf=6)
mk("xl6", 16, pf=6, xl=6)
mk("xa6", 16, pf=6, xl=6, agpr=True)
mk("xd6", 16, pf=6, xd=6)
print(" ".join(files))
```
